```python
import torch

def _softmax(x, axis=-1):
    return torch.softmax(x, dim=axis)
def _gelu(x):
    return torch.nn.functional.gelu(x, approximate="tanh")
def _silu(x):
    return torch.nn.functional.silu(x)
def _sigmoid(x):
    return torch.sigmoid(x)
def _layernorm(x, axis=-1, eps=1e-5):
    m = x.mean(dim=axis, keepdim=True)
    v = x.var(dim=axis, keepdim=True, unbiased=False)
    return (x - m) / torch.sqrt(v + eps)
def _scatter_add(tgt, idx, src, axis=0):
    return tgt.clone().index_add_(axis, idx, src)
def _segment_sum(src, seg, n):
    out = torch.zeros((n,) + src.shape[1:], dtype=src.dtype)
    return out.index_add_(0, seg, src)
def _pad(x, pw):
    flat = tuple(v for pair in reversed(pw) for v in pair)
    return torch.nn.functional.pad(x, flat)

kernel_name = 'interleave_layers__linear_attn_block__dense_activation_gelu__prompt'

def setup_inputs():

    _w = (lambda a: (lambda t: t.to(torch.bfloat16) if t.is_floating_point() else t)(torch.as_tensor(a)))
    def _A_setup():
        B, S, D = 1, 2048, 1024
        return {
            "x": _w((lambda *s: torch.randn(*s, dtype=torch.bfloat16) * 0.05)(B, S, D)),
            "wqkv": _w((lambda *s: torch.randn(*s, dtype=torch.bfloat16) * 0.05)(D, 3 * D)),
            "wo": _w((lambda *s: torch.randn(*s, dtype=torch.bfloat16) * 0.05)(D, D)),
        }
    _A_in = _A_setup()

    def _B_setup():
        B, S, D, F = 1, 2048, 1024, 3584
        return {
            "x": _w((lambda *s: torch.randn(*s, dtype=torch.bfloat16) * 0.05)(B, S, D)),
            "w1": _w((lambda *s: torch.randn(*s, dtype=torch.bfloat16) * 3.2)(D, F) * (D ** -0.5)),
            "b1": _w((lambda *s: torch.randn(*s, dtype=torch.bfloat16) * 0.8)(F) * 0.01),
            "w2": _w((lambda *s: torch.randn(*s, dtype=torch.bfloat16) * 0.8)(F, D) * (F ** -0.5)),
            "b2": _w((lambda *s: torch.randn(*s, dtype=torch.bfloat16) * 0.8)(D) * 0.01),
        }
    _B_in = _B_setup()

    return {
        "A_x": _A_in["x"],
        "A_wqkv": _A_in["wqkv"],
        "A_wo": _A_in["wo"],
        "B_x": _B_in["x"],
        "B_w1": _B_in["w1"],
        "B_b1": _B_in["b1"],
        "B_w2": _B_in["w2"],
        "B_b2": _B_in["b2"],
    }

def reference(A_x, A_wqkv, A_wo, B_x, B_w1, B_b1, B_w2, B_b2):
    def _A_ref(x, wqkv, wo):
        B, S, D = x.shape
        H = 32; Dh = D // H
        qkv = (lambda x, *d: x.permute(*d))((x @ wqkv).reshape(B, S, 3, H, Dh), 2, 0, 3, 1, 4)
        q, k, v = qkv[0], qkv[1], qkv[2]
        phi = lambda t: torch.where(t > 0, t + 1, torch.exp(t)) + 1e-6
        pq, pk = phi(q), phi(k)
        kv = torch.einsum("bhsd,bhse->bhde", pk, v)
        z = torch.einsum("bhsd->bhd", pk)
        num = torch.einsum("bhqd,bhde->bhqe", pq, kv)
        den = torch.einsum("bhqd,bhd->bhq", pq, z)[..., None] + 1e-6
        o = num / den
        return (lambda x, *d: x.permute(*d))(o, 0, 2, 1, 3).reshape(B, S, D) @ wo

    def _B_ref(x, w1, b1, w2, b2):
        h = torch.einsum("bsd,df->bsf", x, w1) + b1
        h = _gelu(h)
        return torch.einsum("bsf,fd->bsd", h, w2) + b2

    x = A_x
    x = x + _A_ref(_layernorm(x, axis=-1), A_wqkv, A_wo)
    x = x + _B_ref(_layernorm(x, axis=-1), B_w1, B_b1, B_w2, B_b2)
    x = x + _A_ref(_layernorm(x, axis=-1), A_wqkv, A_wo)
    x = x + _B_ref(_layernorm(x, axis=-1), B_w1, B_b1, B_w2, B_b2)
    return x
```

```python
import re
TRANS=("v_exp_f32","v_log_f32","v_rcp_f32","v_rsq_f32","v_sqrt_f32","v_sin_f32","v_cos_f32")
_rx=re.compile(r"^(-|abs\()?([vas])(?:(\d+)|\[(\d+):(\d+)\])\)?$")
def regs(op):
    op=op.strip()
    if op in("vcc","exec","m0","scc"): return [op]
    if op in("vcc_lo","vcc_hi"): return ["vcc"]
    if op in("exec_lo","exec_hi"): return ["exec"]
    m=_rx.match(op)
    if not m: return []
    k=m.group(2)
    if m.group(3) is not None: return [(k,int(m.group(3)))]
    return [(k,i) for i in range(int(m.group(4)),int(m.group(5))+1)]
class I:
    __slots__=("text","op","kind","rd","wr","srcs","states","wide","lds")
    def __init__(s,text):
        s.text=text; p=text.split(None,1); s.op=p[0]; rest=p[1] if len(p)>1 else ""
        ops=[]
        for x in rest.split(","):
            x=x.strip()
            if x: ops.append(x.split()[0])
        op=s.op; s.states=1; s.wide=False; s.lds=False; s.srcs=[]
        R=lambda l:[r for o in l for r in regs(o)]
        if op.endswith(":") or op.startswith("."): s.kind="label"; s.rd=[]; s.wr=[]; s.states=0
        elif op=="s_nop": s.kind="nop"; s.rd=[]; s.wr=[]; s.states=int(ops[0])+1
        elif op.startswith("v_mfma"):
            s.kind="mfma"; s.wr=R(ops[:1]); s.srcs=[regs(o) for o in ops[1:4]]; s.rd=R(ops[1:4])
        elif op.startswith("buffer_load"):
            s.kind="vmem"; s.lds=(" lds" in text)
            if s.lds: s.wr=[]; s.rd=R(ops)+["m0"]
            else: s.wr=R(ops[:1]); s.rd=R(ops[1:])
        elif op.startswith("buffer_store") or op.startswith("buffer_atomic"):
            s.kind="vmem"; s.wr=[]; s.rd=R(ops); s.wide=op.endswith("x4") or op.endswith("x3"); s.srcs=[regs(ops[0])]
            assert not(op.startswith("buffer_atomic") and " sc0" in text)
        elif op.startswith("ds_read") or op.startswith("ds_bpermute"):
            s.kind="ds"; s.wr=R(ops[:1]); s.rd=R(ops[1:])
        elif op.startswith("ds_write"): s.kind="ds"; s.wr=[]; s.rd=R(ops)
        elif op.startswith("v_"):
            s.kind="valu"
            if op.startswith("v_permlane"): s.wr=R(ops[:2]); s.rd=R(ops[:2])
            elif op.startswith("v_writelane") or op.startswith("v_fmac") or op.startswith("v_dot2c"): s.wr=R(ops[:1]); s.rd=R(ops)
            elif op.endswith("_dpp"): s.wr=R(ops[:1]); s.rd=R(ops)
            else: s.wr=R(ops[:1]); s.rd=R(ops[1:])
            s.srcs=[regs(o) for o in ops[1:]]
        elif op.startswith("s_"):
            s.kind="salu"
            if op in("s_waitcnt","s_barrier","s_sleep","s_endpgm","s_setprio","s_branch") : s.rd=[]; s.wr=[]
            elif op.startswith("s_cbranch"): s.rd=["vcc"] if "vcc" in op else []; s.wr=[]
            elif op.startswith("s_cmp"): s.rd=R(ops); s.wr=[]
            elif op.startswith("s_load") or op.startswith("s_mem"): s.kind="smem"; s.wr=R(ops[:1]); s.rd=R(ops[1:])
            else: s.wr=R(ops[:1]); s.rd=R(ops[1:])
        else: raise ValueError(text)
def isv(r): return isinstance(r,tuple) and r[0] in "va"
def iss(r): return r=="vcc" or (isinstance(r,tuple) and r[0]=="s")
def need(p,c):
    n=0; pw=set(p.wr); crd=set(c.rd); cwr=set(c.wr)
    if p.kind=="mfma":
        pas=4 if "16x16x32" in p.op else 8
        if c.kind=="mfma":
            if pw&(set(c.srcs[0])|set(c.srcs[1])): n=max(n,pas+4)
            if pw&set(c.srcs[2]) and p.wr!=c.srcs[2]: n=max(n,pas+2)
            if pw&cwr and p.wr!=c.srcs[2]: n=max(n,pas+2)
        elif c.kind in("valu","vmem","ds"):
            if pw&(crd|cwr): n=max(n,pas+4)
            if set(p.srcs[2])&cwr: n=max(n,pas-1)
    elif p.kind=="valu":
        wv={r for r in pw if isv(r)}; ws={r for r in pw if iss(r)}
        if c.kind=="mfma" and wv&crd: n=max(n,3 if p.op.startswith("v_dot2") else 2)
        if c.kind=="valu":
            if wv&crd:
                if c.op.startswith("v_permlane") or c.op.endswith("_dpp"): n=max(n,2)
                if c.op.startswith("v_readlane") or c.op.startswith("v_readfirstlane"): n=max(n,1)
                if p.op in TRANS or "op_sel" in p.text or "sdwa" in p.op: n=max(n,1)
            if p.op.startswith("v_dot2") and wv&(crd|cwr):
                if c.op!=p.op or wv&(set(c.srcs[0])|set(c.srcs[1])): n=max(n,3)
            if ws&crd: n=max(n,4 if c.op.startswith(("v_readlane","v_writelane")) else 2)
        if c.kind in("vmem","ds") and p.op.startswith("v_dot2") and wv&crd: n=max(n,3)
        if c.kind in("vmem","ds") and p.op in TRANS and wv&crd: n=max(n,1)
        if c.kind=="vmem" and ws&crd: n=max(n,5)
        if c.kind in("salu","smem") and ws&crd: n=max(n,1)
    elif p.kind=="salu":
        if "m0" in pw and "m0" in crd and c.kind in("vmem","valu"): n=max(n,1)
    elif p.kind=="vmem":
        if p.wide and set(p.srcs[0])&cwr: n=max(n,2)
    return n
class Prog:
    def __init__(s):
        s.out=[]; s.hist=[]; s.nvm=0; s.nlg=0; s.vmdone=0; s.lgdone=0; s.pvm={}; s.plg={}; s.nops=0; s.cyc=0; s.autow=0
    def raw(s,text): s.out.append(text)
    def _put(s,i):
        s.out.append(i.text)
        if i.states: s.hist.append(i); s.hist=s.hist[-24:]
        s.cyc+= 8 if (i.kind=="mfma" or i.op in TRANS) else 4*i.states
    def wait(s,vm=None,lg=None):
        parts=[]
        if vm is not None and vm>s.vmdone:
            n=min(s.nvm-vm,63); parts.append(f"vmcnt({n})"); s.vmdone=s.nvm-n
        if lg is not None and lg>s.lgdone:
            n=min(s.nlg-lg,15); parts.append(f"lgkmcnt({n})"); s.lgdone=s.nlg-n
        if parts: s._put(I("s_waitcnt "+" ".join(parts)))
        return bool(parts)
    def waitall(s,vm=True,lg=True):
        p=[]
        if vm: p.append("vmcnt(0)"); s.vmdone=s.nvm
        if lg: p.append("lgkmcnt(0)"); s.lgdone=s.nlg
        s._put(I("s_waitcnt "+" ".join(p)))
    def __call__(s,text):
        t=None
        for l in text.split("\n"):
            l=l.split(";")[0].strip()
            if l: t=s.one(l)
        return t
    def one(s,text):
        i=I(text)
        touched=list(i.rd)+list(i.wr)
        vm=max([s.pvm.get(r,0) for r in touched]+[0]); lg=max([s.plg.get(r,0) for r in touched]+[0])
        if s.wait(vm or None,lg or None): s.autow+=1
        d=0; k=0
        for p in reversed(s.hist):
            k=max(k,need(p,i)-d); d+=p.states
            if d>=14: break
        if k>0: s.nops+=k; s._put(I(f"s_nop {k-1}"))
        s._put(i)
        if i.kind=="vmem":
            s.nvm+=1
            for r in i.wr: s.pvm[r]=s.nvm
            return s.nvm
        if i.kind=="ds":
            s.nlg+=1
            for r in i.wr: s.plg[r]=s.nlg
            return s.nlg
    def text(s): return "\n".join(s.out)+"\n"
```

```python
import sys, math, struct
from ir import *
NAME="interleave_layers__linear_attn_block__dense_activation_gelu__prompt_kernel"
def f2u(x): return struct.unpack("<I",struct.pack("<f",x))[0]
def F(x): return hex(f2u(x))
LOG2E=1.4426950408889634; LN2=0.6931471805599453
MB=1<<20
WS_ROWF=0; WS_COLF=16384; WS_CSQ=1*MB; WS_CS1=1*MB+0x40000; WS_KV=2*MB; WS_ST=3*MB; WS_TS=4*MB
WS_X=8*MB; WS_O=24*MB; WS_EX=32*MB; WS_H=48*MB
OOB=0x40000000
L_SCR=131072; L_EXT1=147456; L_EXT3=L_EXT1+4096; L_B2=L_EXT3+4096; LDS_BYTES=L_B2+256
RQ,R2,R1=6144,2048,7168
class S: pass
_s=["I","J","W","MBk","PAR","IT","ST","T0","T1","T2","T3","WOFF","AOFF","LDSW","SOFF","STG","TO",
    "BQ4","BQ2","BO","B14","B12","B11","B2Q","B2Q6","B2S","B2S6","B2K","B2K6",
    "XP","OP","HR","HW","XW","STP","KV","EXW","EXR","RFR","RFW","CFR","CFW","ONCE","C_EPS","C_LN2"]
for n,x in enumerate(_s): setattr(S,x,f"s{32+n}")
S_NEXT=32+len(_s); S_NEXT+=S_NEXT&1
WQ,WO,W1,W2,WS,TS,B1="s[4:7]","s[8:11]","s[12:15]","s[16:19]","s[20:23]","s[24:27]","s[28:31]"
V_L16=0; V_ONE=1; V_FALL=2; V_STAT=3
V_PQ=4; V_P2=8; V_P1=12; V_PS=16; V_RD=20; V_RS=28
V_WF=32
V_EXT=60; V_FLG=61; V_TS=62; V_LANE=63
V_RES=64
V_XE=80
V_LC=88
V_ACC=96
V_T=208
def v(a,n=1): return f"v{a}" if n==1 else f"v[{a}:{a+n-1}]"
def a_(a,n=4): return f"a[{a}:{a+n-1}]"
MF="v_mfma_f32_16x16x32_bf16"
SC="sc1"

class Gen:
    def __init__(g,**o):
        g.o=dict(D=6,WE=3,L1=8,L4=16,DEPTH=400,COST=66,prof=False,stop=None,vp1=4.0,vp3=3.3,vp4=2.6,touch=True)
        g.o.update(o); g.p=Prog(); g.slow=[]; g.nlab=0; g.nts=0; g.tsq=[]
        g.slots=[]; g.dma_t={}; g.lastrd={}; g.ready=set(); g.released=set(); g.nextD=0; g.t=0; g.free_at=0; g.ev=set()
        g.nunit=0
    def stamp(g,name):
        if not g.o["prof"]: return
        r=S_NEXT+2*len(g.tsq); assert r+1<102
        g.p(f"s_memrealtime s[{r}:{r+1}]"); g.tsq.append((name,r))
    def flush_stamps(g):
        if not g.o["prof"] or not g.tsq: return
        p=g.p; p.waitall(vm=False)
        for name,r in g.tsq:
            p(f"s_lshl_b32 m0, {S.IT}, 5\ns_add_u32 m0, m0, {g.nts}\nv_writelane_b32 v{V_TS}, s{r}, m0"); g.names.append(name); g.nts+=1
        g.tsq=[]
    def vm(g,text,cost=None):
        t=g.p(text); c=g.o["COST"] if cost is None else cost
        g.free_at=max(g.free_at,g.t)+c; return t
    def barrier(g):
        p=g.p; p("s_barrier")
        for s,t in g.lastrd.items():
            if t<=p.lgdone: g.released.add(s)
        for s,(t,n) in g.dma_t.items():
            if n==4 and t<=p.vmdone: g.ready.add(s)
    def dma_ok(g):
        s=g.nextD//4
        return s<len(g.slots) and (s<8 or (s-8) in g.released)
    def dma(g):
        s,q=divmod(g.nextD,4); g.nextD+=1; sl=g.slots[s]; p=g.p
        if q==0: p(f"s_add_u32 m0, {S.LDSW}, {(s%8)*16384}\ns_add_u32 {S.WOFF}, {sl['base']}, {sl['c']}")
        elif g.m0dirty: p(f"s_add_u32 m0, {S.LDSW}, {(s%8)*16384}")
        g.m0dirty=False
        t=g.vm(f"buffer_load_dwordx4 v{sl['pat']+q}, {sl['srd']}, {S.WOFF} offen offset:{q*1024} lds",g.o["COST"]*(2 if sl['pat']==V_PS else 1))
        g.dma_t[s]=(t,q+1)
    m0dirty=False
    def pump(g,n):
        while n>0 and g.dma_ok(): g.dma(); n-=1
    def flag_store(g,soff,stage_expr,ticket):
        p=g.p; p(stage_expr); p(f"v_mov_b32 v{V_FLG}, {S.STG}"); p.wait(vm=ticket)
        g.vm(f"buffer_store_dword v{V_FLG}, v{V_ONE}, {WS}, {soff} offen {SC}",8)
    def poll_issue(g,dst,voff,soff,srd=WS): return g.vm(f"buffer_load_dword v{dst}, v{voff}, {srd}, {soff} offen {SC}",8)
    def poll_check(g,dst,voff,soff,stage_expr,srd=WS):
        p=g.p; n=g.nlab; g.nlab+=1
        p(stage_expr); p(f"v_cmp_gt_u32 vcc, {S.STG}, v{dst}\ns_cbranch_vccnz L_slow{n}"); p.raw(f"L_back{n}:")
        g.slow.append(f"""L_slow{n}:
buffer_load_dword v{dst}, v{voff}, {srd}, {soff} offen {SC}
s_sub_u32 {S.TO}, {S.TO}, 1
s_cbranch_scc1 L_abort
s_waitcnt vmcnt(0)
v_cmp_gt_u32 vcc, {S.STG}, v{dst}
s_nop 0
s_cbranch_vccnz L_slow{n}
s_branch L_back{n}""")
    def rowst(g,k): return f"s_add_u32 {S.STG}, {S.ST}, {k}"
    def slot(g,base,c,pat,srd):
        g.slots.append(dict(base=base,c=c,pat=pat,srd=srd)); return len(g.slots)-1
    def mkunit(g,s,off,d2,ar,hi,ks,accs,tr,first):
        off+=(s%8)*16384
        if off>=65536: off-=65536; ar+=hi
        A=[a_(8*(ks%32)),a_(8*(ks%32)+4)]
        return dict(slot=s,rd=[(ar,off),(ar,off+d2)],x=A,acc=accs,tr=tr,first=first,needA=ks)
    def quad(g,s,ks0,accf,tr,first):
        return [g.mkunit(s,((b>>2)+2*k)*4096,2048,V_RD+(b&3),4,ks0+k,accf(b),tr,first(ks0+k,b)) for k in range(2) for b in range(8)]
    def pair(g,s,ks0,accf,tr,first):
        return [g.mkunit(s,k*4096,2048,V_RD+b,4,ks0+k,accf(b),tr,first(ks0+k,b)) for k in range(4) for b in range(4)]
    def single(g,s,ks0,accf,tr,first):
        return [g.mkunit(s,k*2048,1024,V_RS+b,2,ks0+k,accf(b),tr,first(ks0+k,b)) for k in range(8) for b in range(2)]
    def ext(g,off,accs,tr,first,ev):
        return dict(slot=None,extoff=off,x=[v(V_XE,4),v(V_XE+4,4)],acc=accs,tr=tr,first="0" if first else None,needA=None,ev=ev)
    def stream(g,U,Aq,side,vpu,burst=8,lat=550):
        p=g.p; D=g.o["D"]; WE=g.o["WE"]; NF=D+1; N=len(U); base=g.nunit
        firstuse={}; lastu={}; firstu={}
        for n,u in enumerate(U):
            if u["needA"] is not None: firstuse.setdefault(u["akey"],n)
            if u["slot"] is not None: lastu[u["slot"]]=n; firstu.setdefault(u["slot"],n)
        At={}; rd_t={}; st=dict(n=-1,until=0)
        def side_step(force=False):
            if not side: return None
            it=side[0]
            if it[0]=="at":
                if st["n"]<it[1]:
                    assert not force,("forced past at",it,st["n"]); return None
                side.pop(0); return 0
            if it[0]=="delay":
                if len(it)==2: side[0]=it=("delay",it[1],g.t+it[1])
                if g.t<it[2] and not force: return None
                side.pop(0); return 0
            side.pop(0)
            if it[0]=="ev": g.ev.add(it[1]); return 0
            c0=p.cyc
            if it[0]=="fn": it[1]()
            elif it[0]=="vm": g.vm(it[1],it[2] if len(it)>2 else None)
            else: p(it[1])
            return (p.cyc-c0)/4
        def drain(b):
            while b>0:
                c=side_step()
                if c is None: break
                b-=c
            return b
        def until(ev):
            while ev not in g.ev: side_step(True)
        def issueA():
            x=Aq.pop(0); At[x["id"]]=x["emit"]()
        def A_ok(): return Aq and Aq[0]["ok"](st["n"]) and (Aq[0].get("ev") is None or Aq[0]["ev"] in g.ev)
        def vm_step(force=False):
            if not force and g.free_at-g.t>g.o["DEPTH"]: return False
            da=firstuse.get(Aq[0]["id"][:2],1e8) if A_ok() else None
            dd=(firstu.get(g.nextD//4,1e9)-D) if g.dma_ok() else None
            if da is None and dd is None: return False
            if dd is None or (da is not None and da<=dd): issueA()
            else: g.dma()
            return True
        def rd(n,half):
            u=U[n]; r=V_WF+4*((base+n)%NF)
            if u["slot"] is None:
                if half==0:
                    until(u["ev"]); rd_t[n]=p(f"ds_read_b128 {v(r,4)}, v{V_EXT} offset:{u['extoff']}")
                return
            s=u["slot"]
            if half==0 and firstu[s]==n:
                while g.nextD<4*(s+1):
                    if not g.dma_ok(): p.waitall(vm=False); g.barrier()
                    g.dma()
                if s not in g.ready: p.wait(vm=g.dma_t[s][0])
                g.barrier(); assert s in g.ready
            ar,off=u["rd"][half]
            t=p(f"ds_read_b64_tr_b16 {v(r+2*half,2)}, v{ar} offset:{off}")
            if half:
                rd_t[n]=t
                if lastu[s]==n: g.lastrd[s]=t
        for _ in range(burst): vm_step(True)
        for n in range(min(D,N)): rd(n,0); rd(n,1)
        drain(40)
        g.t+=lat
        carry=0.0
        for n,u in enumerate(U):
            c0=p.cyc; r=V_WF+4*((base+n)%NF)
            if u.get("pre"): until(u["pre"])
            if u.get("stamp"): g.stamp(u["stamp"])
            tv=None
            if u["needA"] is not None and firstuse[u["akey"]]==n:
                k=u["akey"]+(1,)
                while k not in At:
                    if Aq[0].get("ev"): until(Aq[0]["ev"])
                    assert Aq[0]["ok"](st["n"]); issueA()
                tv=At[k]
            p.wait(vm=tv,lg=rd_t.get(min(n+WE-1-(n%WE),N-1,n+D-1)))
            carry=min(carry,0)+vpu(n)
            for mh in range(2):
                acc=v(u["acc"][mh],4); c=u["first"] or acc; w=v(r,4); x=u["x"][mh]
                p(f"{MF} {acc}, {x}, {w}, {c}" if u["tr"] else f"{MF} {acc}, {w}, {x}, {c}")
                if mh: st["n"]=n
                if n+D<N: rd(n+D,mh)
                if mh==0: carry=carry/2+drain(carry/2)
            if vm_step(): carry-=1
            carry=drain(carry)
            g.t+=max(32,p.cyc-c0)
        g.nunit+=N; assert not Aq
        p.waitall(vm=False); g.barrier()
        st["n"]=1e9
        while side:
            c0=p.cyc; side_step(True); g.t+=p.cyc-c0
    def aloads(g,key,nks,sbase,ok=lambda ks:(lambda n:True),ev=lambda ks:None):
        q=[]
        for ks in range(nks):
            for mh in range(2):
                f=2*ks+mh
                def emit(f=f,ks=ks,mh=mh):
                    if f%4==0: g.p(f"s_add_u32 {S.AOFF}, {sbase}, {f*1024}")
                    return g.vm(f"buffer_load_dwordx4 {a_(8*(ks%32)+4*mh)}, v{V_L16}, {WS}, {S.AOFF} offen offset:{(f%4)*1024} {SC}")
                q.append(dict(id=(key,ks,mh),emit=emit,ok=ok(ks),ev=ev(ks)))
        return q
    def setkey(g,U,key):
        for u in U:
            if u["needA"] is not None and "akey" not in u: u["akey"]=(key,u["needA"])
        return U
    def red4(g,a,b,c,d):
        return [f"v_permlane32_swap_b32 v{a}, v{c}",f"v_permlane32_swap_b32 v{b}, v{d}",f"v_add_f32 v{a}, v{a}, v{c}",f"v_add_f32 v{b}, v{b}, v{d}",
                f"v_permlane16_swap_b32 v{a}, v{b}",f"v_add_f32 v{a}, v{a}, v{b}"]
    def publish_x(g,stage,pumps=(8,8)):
        p=g.p; T=V_T
        for k in range(4): g.vm(f"buffer_store_dwordx4 {v(V_RES+4*k,4)}, v{V_L16}, {WS}, {S.XW} offen offset:{k*1024} {SC}")
        p(f"v_mov_b32 v{T+4}, 0x3f803f80")
        for i in range(8):
            for mh in range(2):
                r=V_RES+8*(i>>2)+4*mh+(i&3)
                p(f"v_dot2_f32_bf16 v{T+2*mh}, v{r}, v{T+4}, {'0' if i==0 else v(T+2*mh)}")
                p(f"v_dot2_f32_bf16 v{T+2*mh+1}, v{r}, v{r}, {'0' if i==0 else v(T+2*mh+1)}")
        for x in g.red4(T,T+1,T+2,T+3): p(x)
        p(f"s_lshl_b32 {S.T0}, {S.J}, 8\ns_add_u32 {S.T0}, {S.T0}, {S.STP}")
        return g.vm(f"buffer_store_dword v{T}, v{V_STAT}, {WS}, {S.T0} offen {SC}",16)
    def sync_row(g,ticket,stage,pre=None):
        g.pump(8); g.flag_store(S.RFW,g.rowst(stage),ticket)
        g.poll_issue(V_FLG,V_FALL,S.RFR); g.pump(8)
        if pre: pre()
        g.flush_stamps(); g.m0dirty=True
        g.poll_check(V_FLG,V_FALL,S.RFR,g.rowst(stage)); g.t+=1200; g.free_at=g.t
    def side_stats(g,p3):
        T=V_T; s=[]
        for t in range(4): s.append(("vm",f"buffer_load_dwordx4 {v(T+4*t,4)}, v{V_L16}, {WS}, {S.STP} offen offset:{t*1024} {SC}"))
        s.append(("delay",900)); o=[]
        for c in range(4): o+=[f"v_add_f32 v{T+c}, v{T+c}, v{T+4+c}",f"v_add_f32 v{T+8+c}, v{T+8+c}, v{T+12+c}"]
        for c in range(4): o+=[f"v_add_f32 v{T+c}, v{T+c}, v{T+8+c}"]
        for sw in("32","16"):
            for c in range(4): o+=[f"v_mov_b32 v{T+4+c}, v{T+c}"]
            for c in range(4): o+=[f"v_permlane{sw}_swap_b32 v{T+c}, v{T+4+c}"]
            for c in range(4): o+=[f"v_add_f32 v{T+c}, v{T+c}, v{T+4+c}"]
        for mh in range(2): o+=[f"v_mul_f32 v{T+2*mh}, {F(-1/1024)}, v{T+2*mh}",f"v_mul_f32 v{T+2*mh+1}, {F(1/1024)}, v{T+2*mh+1}"]
        for mh in range(2): o+=[f"v_fma_f32 v{T+2*mh+1}, -v{T+2*mh}, v{T+2*mh}, v{T+2*mh+1}"]
        for mh in range(2): o+=[f"v_max_f32 v{T+2*mh+1}, 0, v{T+2*mh+1}"]
        for mh in range(2): o+=[f"v_add_f32 v{T+2*mh+1}, {F(1e-5)}, v{T+2*mh+1}"]
        for mh in range(2): o+=[f"v_rsq_f32 v{T+4+mh}, v{T+2*mh+1}"]
        o+=[f"v_cmp_gt_u32 vcc, 16, v{V_LANE}"]
        for mh in range(2): o+=[f"v_mul_f32 v{T+2*mh+1}, v{T+2*mh+1}, v{T+4+mh}"]
        for mh in range(2):
            m,sg,X=T+2*mh,T+2*mh+1,V_XE+4*mh
            o+=[f"v_cvt_pk_bf16_f32 v{T+6}, v{m}, v{m}",f"v_cvt_pk_bf16_f32 v{T+7}, v{sg}, v{sg}",
                f"v_lshlrev_b32 v{T+8}, 16, v{T+6}",f"v_lshlrev_b32 v{T+9}, 16, v{T+7}",
                f"v_sub_f32 v{T+8}, v{m}, v{T+8}",f"v_sub_f32 v{T+9}, v{sg}, v{T+9}",
                f"v_cvt_pk_bf16_f32 v{T+8}, v{T+8}, v{sg}",f"v_cvt_pk_bf16_f32 v{T+9}, v{T+9}, 0",
                f"v_cndmask_b32 v{X}, 0, v{T+6}, vcc",f"v_cndmask_b32 v{X+1}, 0, v{T+8}, vcc",f"v_cndmask_b32 v{X+2}, 0, v{T+9}, vcc"]
        if p3:
            c0=-2*math.sqrt(2/math.pi)*LOG2E
            for mh in range(2):
                r=T+4+mh; L=V_LC+3*mh
                o+=[f"v_mul_f32 v{L}, {F(c0)}, v{r}",f"v_mul_f32 v{T+6}, v{r}, v{r}",f"v_mov_b32 v{L+2}, v{T+2*mh+1}",
                    f"v_mul_f32 v{T+6}, {F(0.044715)}, v{T+6}",f"v_mul_f32 v{L+1}, v{T+6}, v{L}"]
        else:
            for mh in range(2): o+=[f"v_mul_f32 v{T+46+mh}, {F(LOG2E)}, v{T+4+mh}"]
            o+=[f"v_and_b32 v{T+6}, 48, v{V_LANE}"]
            for mh in range(2):
                for r in range(4): o+=[f"ds_bpermute_b32 v{V_LC+4*mh+r}, v{T+6}, v{T+46+mh} offset:{4*r}"]
        return s+[("i",x) for x in o]
    def side_table(g,p3,ev):
        T=V_T+16; s=[]; rowb=16384 if p3 else 12288
        o=[f"v_lshrrev_b32 v{T+16}, 4, v{V_LANE}",f"v_and_b32 v{T+17}, 15, v{V_LANE}",f"v_mul_u32_u24 v{T+18}, {rowb}, v{T+16}",
           f"v_lshl_add_u32 v{T+18}, v{T+17}, 4, v{T+18}",f"v_lshl_add_u32 v{T+17}, v{T+17}, 2, v{T+16}"]
        if p3: o+=[f"s_lshl_b32 {S.T0}, {S.J}, 2",f"s_add_u32 {S.T0}, {S.T0}, {S.W}",f"s_lshl_b32 {S.T0}, {S.T0}, 8",f"s_add_u32 {S.T0}, {S.T0}, {WS_CS1}"]
        else: o+=[f"s_min_u32 {S.T0}, {S.W}, 2",f"s_mul_i32 {S.T1}, {S.J}, 3",f"s_add_u32 {S.T0}, {S.T0}, {S.T1}",f"s_lshl_b32 {S.T0}, {S.T0}, 8",f"s_add_u32 {S.T0}, {S.T0}, {WS_CSQ}"]
        s+=[("i",x) for x in o]
        for t in range(4):
            s.append(("vm",f"buffer_load_dwordx4 {v(T+4*t,4)}, v{T+18}, {WS}, {S.T0} offen {SC}"))
            if t<3: s.append(("i",f"s_add_u32 {S.T0}, {S.T0}, {4*rowb}"))
        if p3:
            s+=[("i",x) for x in [f"v_lshlrev_b32 v{T+18}, 1, v{T+17}"]+g.segcol(S.T0)]
            s.append(("vm",f"buffer_load_ushort v{T+19}, v{T+18}, {B1}, {S.T0} offen",16))
        s.append(("delay",900)); o=[]
        for c in range(4): o+=[f"v_add_f32 v{T+c}, v{T+c}, v{T+4+c}",f"v_add_f32 v{T+8+c}, v{T+8+c}, v{T+12+c}"]
        for c in range(4): o+=[f"v_add_f32 v{T+c}, v{T+c}, v{T+8+c}"]
        o+=g.red4(T,T+1,T+2,T+3)
        o+=[f"v_cvt_pk_bf16_f32 v{T+5}, v{T}, 0",f"s_lshl_b32 {S.T0}, {S.W}, 10",f"v_lshlrev_b32 v{T+8}, 16, v{T+5}",f"v_sub_f32 v{T+8}, v{T}, v{T+8}",
            f"v_cvt_pk_bf16_f32 v{T+4}, v{T}, v{T+8}",f"s_add_u32 {S.T0}, {S.T0}, {L_EXT3 if p3 else L_EXT1}",f"v_mov_b32 v{T+7}, 0"]
        if p3: o+=[f"v_lshl_add_u32 v{T+5}, v{T+19}, 16, v{T+5}",f"v_mov_b32 v{T+6}, v{T+19}"]
        else: o+=[f"v_mov_b32 v{T+6}, 0"]
        o+=[f"v_lshl_add_u32 v{T+17}, v{T+17}, 4, {S.T0}"]
        s+=[("i",x) for x in o]
        tk={}
        s.append(("fn",lambda:tk.__setitem__(0,g.p(f"ds_write_b128 v{T+17}, {v(T+4,4)}"))))
        s.append(("delay",150))
        s.append(("fn",lambda:(g.p.wait(lg=tk[0]),g.barrier())))
        s.append(("ev",ev))
        return s
    def segcol(g,d):
        return [f"s_mul_i32 {S.T1}, {S.J}, 448",f"s_lshl_b32 {S.T2}, {S.PAR}, 6",f"s_lshl_b32 {d}, {S.W}, 7",f"s_add_u32 {d}, {d}, {S.T2}",
                f"s_cmp_eq_u32 {d}, 448\ns_cselect_b32 {d}, 0, {d}",f"s_add_u32 {d}, {d}, {S.T1}"]
    def colsum_loads(g,T,srd,rs,pat):
        o=[("i",f"v_lshrrev_b32 v{pat}, 3, v{V_LANE}"),("i",f"v_and_b32 v{pat+1}, 7, v{V_LANE}"),("i",f"v_mul_u32_u24 v{pat}, {rs}, v{pat}"),("i",f"v_lshl_add_u32 v{pat}, v{pat+1}, 4, v{pat}")]
        for q in range(8):
            o.append(("vm",f"buffer_load_dwordx4 {v(T+4*q,4)}, v{pat}, {srd}, {S.T3} offen"))
            if q<7: o.append(("i",f"s_add_u32 {S.T3}, {S.T3}, {8*rs}"))
        return o
    def colsum_reduce(g,T,X,tk):
        o=[f"v_and_b32 v{X+8}, 15, v{V_LANE}",f"v_lshlrev_b32 v{X+9}, 4, v{X+8}",f"v_and_b32 v{X+9}, 16, v{X+9}",f"v_mov_b32 v{X+4}, 0x3f80",f"v_lshlrev_b32 v{X+9}, v{X+9}, v{X+4}",f"v_lshrrev_b32 v{X+8}, 1, v{X+8}"]
        for r in range(4): o+=[f"v_cmp_eq_u32 vcc, {r}, v{X+8}",f"v_cndmask_b32 v{X+r}, 0, v{X+9}, vcc"]
        for q in range(8): o+=[f"{MF} {v(X+4,4)}, {v(X,4)}, {v(T+4*q,4)}, {'0' if q==0 else v(X+4,4)}"]
        o+=[f"v_and_b32 v{X+8}, 7, v{V_LANE}",f"v_lshlrev_b32 v{X+8}, 5, v{X+8}",f"v_and_b32 v{X+9}, 16, v{V_LANE}",f"v_add_u32 v{X+8}, v{X+8}, v{X+9}",
            f"v_and_b32 v{X+9}, 40, v{V_LANE}",f"v_lshl_add_u32 v{X+8}, v{X+9}, 25, v{X+8}"]
        for r in range(4): o+=[f"v_add_f32_dpp v{X+r}, v{X+4+r}, v{X+4+r} row_ror:8 row_mask:0xf bank_mask:0xf"]
        s=[("i",x) for x in o]
        s.append(("fn",lambda:tk.__setitem__(0,g.vm(f"buffer_store_dwordx4 {v(X,4)}, v{X+8}, {WS}, {S.T3} offen {SC}",16))))
        return s
    def run_list(g,l):
        for it in l:
            if it[0]=="i": g.p(it[1])
            elif it[0]=="vm": g.vm(it[1],it[2] if len(it)>2 else None)
            elif it[0]=="fn": it[1]()
    def end_dbg(g,tag):
        if g.o["stop"]==tag: g.p.waitall(); g.p("s_branch L_fin"); return True
    def build(g):
        p=g.p; o=g.o; g.names=[]; T=V_T; ACC=V_ACC
        L1,L4=o["L1"],o["L4"]
        s1q=[g.slot(S.BQ4,64*t*RQ,V_PQ,WQ) for t in range((32-L1)//2)]
        s1k=[g.slot(S.BQ2,(32-L1+4*t)*32*RQ+2048,V_PQ,WQ) for t in range(L1//4)]
        s1v=[g.slot(S.BQ2,(32-L1+4*t)*32*RQ+4096,V_PQ,WQ) for t in range(L1//4)]
        s1Q=[g.slot(S.BQ2,128*t*RQ,V_PQ,WQ) for t in range(8)]
        s2=[g.slot(S.BO,128*t*R2,V_P2,WO) for t in range(8)]
        s3a=[g.slot(S.B14,64*t*R1,V_P1,W1) for t in range(16)]
        s3b=[g.slot(S.B12,128*t*R1,V_P1,W1) for t in range(8)]
        s3c=[g.slot(S.B11,256*t*R1,V_PS,W1) for t in range(4)]
        def s4(ks,b5,b6):
            b,jj=divmod(ks,8)
            return g.slot(b6,448*jj*R2,V_P2,W2) if b==6 else g.slot(b5,(448*jj+32*b)*R2,V_P2,W2)
        s4q=[s4(ks,S.B2Q,S.B2Q6) for ks in range(0,56-L4,2)]
        s4s=[s4(ks,S.B2S,S.B2S6) for ks in range(56-L4,56,4)]
        s4k=[s4(ks,S.B2K,S.B2K6) for ks in range(56-L4,56,4)]
        assert len(g.slots)==88
        for t in range(8): g.slots.append(g.slots[t])
        p.raw(f"{NAME}:")
        p(f"s_cmp_ge_u32 s2, 256\ns_cbranch_scc1 L_end")
        p("s_load_dwordx4 s[80:83], s[0:1], 0\ns_load_dwordx2 s[8:9], s[0:1], 16\ns_load_dwordx2 s[12:13], s[0:1], 32\ns_load_dwordx2 s[28:29], s[0:1], 40")
        p("s_load_dwordx4 s[84:87], s[0:1], 48\ns_load_dwordx2 s[88:89], s[0:1], 72\ns_load_dwordx2 s[20:21], s[0:1], 80")
        p(f"v_lshrrev_b32 v{T}, 6, v0\nv_and_b32 v{V_LANE}, 63, v0\nv_readfirstlane_b32 {S.W}, v{T}\nv_lshlrev_b32 v{V_L16}, 4, v{V_LANE}")
        p(f"""s_and_b32 {S.PAR}, s2, 1
s_bfe_u32 {S.T0}, s2, 0x20001
s_bfe_u32 {S.T1}, s2, 0x20003
s_lshl_b32 {S.T0}, {S.T0}, 2
s_add_u32 {S.I}, {S.T0}, {S.T1}
s_lshr_b32 {S.T0}, s2, 5
s_lshl_b32 {S.T0}, {S.T0}, 1
s_add_u32 {S.J}, {S.T0}, {S.PAR}
s_lshl_b32 {S.MBk}, {S.I}, 2
s_add_u32 {S.MBk}, {S.MBk}, {S.W}
s_mov_b32 {S.IT}, 0
s_mov_b32 {S.ST}, 0
s_mov_b32 {S.ONCE}, 0
s_mov_b32 {S.TO}, 0x40000
s_lshl_b32 {S.LDSW}, {S.W}, 12""")
        p(f"""v_and_b32 v{T}, 15, v{V_LANE}
v_lshlrev_b32 v{T+1}, 11, v{T}
v_and_b32 v{T+2}, 16, v{V_LANE}
v_lshl_add_u32 v{T+1}, v{T+2}, 1, v{T+1}
v_lshrrev_b32 v{T+2}, 5, v{V_LANE}
v_lshl_add_u32 v{T+1}, v{T+2}, 4, v{T+1}
s_lshl_b32 {S.T0}, {S.MBk}, 16
s_lshl_b32 {S.T1}, {S.J}, 7
s_add_u32 {S.T0}, {S.T0}, {S.T1}
s_add_u32 {S.T1}, {S.T0}, 32768""")
        p.waitall(vm=False)
        p(f"""s_mov_b32 s24, s80
s_mov_b32 s25, s81
s_mov_b32 s26, 0x400000
s_mov_b32 s27, 0x20000
s_mov_b32 s22, 0x10000000
s_mov_b32 s23, 0x20000""")
        g.stamp("start")
        p(f"v_mov_b32 v{T+4}, 0\nv_mov_b32 v{T+5}, 0\nv_mov_b32 v{T+6}, 0\nv_mov_b32 v{T+7}, 0")
        p(f"s_cmp_lg_u32 s2, 0\ns_cbranch_scc1 L_noinit\ns_mul_i32 {S.T2}, {S.W}, 5120")
        for k in range(4): p.raw(f"buffer_store_dwordx4 {v(T+4,4)}, v{V_L16}, {WS}, {S.T2} offen offset:{k*1024} {SC}")
        p.raw(f"s_add_u32 {S.T2}, {S.T2}, 4096\nbuffer_store_dwordx4 {v(T+4,4)}, v{V_L16}, {WS}, {S.T2} offen {SC}\nL_noinit:")
        for k2 in range(2):
            for mh in range(2): g.vm(f"buffer_load_dwordx4 {v(V_RES+8*k2+4*mh,4)}, v{T+1}, {TS}, {S.T1 if mh else S.T0} offen offset:{64*k2}")
        p(f"""s_mov_b32 s4, s82
s_mov_b32 s5, s83
s_mov_b32 s6, {1024*RQ}
s_mov_b32 s7, 0x20000
s_mov_b32 s10, {1024*R2}
s_mov_b32 s11, 0x20000
s_mov_b32 s14, {1024*R1}
s_mov_b32 s15, 0x20000
s_mov_b32 s16, s84
s_mov_b32 s17, s85
s_mov_b32 s18, {3584*R2}
s_mov_b32 s19, 0x20000
s_mov_b32 s30, 7168
s_mov_b32 s31, 0x20000""")
        p(f"""s_min_u32 {S.T0}, {S.W}, 2
s_add_u32 {S.T1}, {S.T0}, 1
s_cmp_eq_u32 {S.T0}, 2
s_cselect_b32 {S.T1}, 0, {S.T1}
s_lshl_b32 {S.T1}, {S.T1}, 11
s_mul_i32 {S.T3}, {S.I}, {64*RQ}
s_add_u32 {S.T3}, {S.T3}, {S.T1}
s_lshl_b32 {S.T1}, {S.J}, 7
s_add_u32 {S.T3}, {S.T3}, {S.T1}""")
        g.run_list(g.colsum_loads(ACC,WQ,RQ,T+2))
        p(f"""s_lshl_b32 {S.KV}, {S.J}, 15
s_add_u32 {S.KV}, {S.KV}, {WS_KV}
s_lshl_b32 {S.T0}, {S.MBk}, 9
s_add_u32 {S.T0}, {S.T0}, {S.KV}
v_lshlrev_b32 v{T+2}, 3, v{V_LANE}""")
        g.vm(f"buffer_store_dwordx2 {v(T+4,2)}, v{T+2}, {WS}, {S.T0} offen {SC}")
        p(f"s_mov_b32 s24, s86\ns_mov_b32 s25, s87\ns_mov_b32 s26, 2048\nv_lshlrev_b32 v{T+2}, 1, v{V_LANE}\ns_lshl_b32 {S.T0}, {S.J}, 7")
        g.vm(f"buffer_load_ushort v{T+8}, v{T+2}, {TS}, {S.T0} offen")
        p(f"s_mov_b32 s24, s88\ns_mov_b32 s25, s89\ns_mov_b32 s26, 256")
        p(f"v_lshrrev_b32 v{T+2}, 3, v{V_LANE}\nv_and_b32 v{T+3}, 7, v{V_LANE}\nv_and_b32 v{T+9}, 6, v{T+2}\nv_xor_b32 v{T+3}, v{T+3}, v{T+9}\nv_lshlrev_b32 v{T+3}, 4, v{T+3}")
        for pat,rs in((V_PQ,RQ),(V_P2,R2),(V_P1,R1)):
            p(f"v_mul_u32_u24 v{pat}, {rs}, v{T+2}\nv_add_u32 v{pat}, v{pat}, v{T+3}")
            for q in range(1,4): p(f"v_add_u32 v{pat+q}, {q*(8*rs-1024)}, v{pat}")
        p(f"""v_lshrrev_b32 v{T+2}, 2, v{V_LANE}
v_and_b32 v{T+3}, 3, v{V_LANE}
v_lshrrev_b32 v{T+9}, 1, v{T+2}
v_and_b32 v{T+9}, 2, v{T+9}
v_xor_b32 v{T+9}, v{T+3}, v{T+9}
v_mul_u32_u24 v{V_PS}, {R1}, v{T+2}
v_lshl_add_u32 v{V_PS}, v{T+9}, 4, v{V_PS}""")
        for q in range(1,4): p(f"v_add_u32 v{V_PS+q}, {q*(16*R1-1024)}, v{V_PS}")
        p(f"""v_lshlrev_b32 v{T+3}, 3, v{T+3}
v_lshl_add_u32 v{V_RD}, v{T+2}, 7, v{T+3}
v_and_b32 v{T+9}, 6, v{T+2}
v_lshl_add_u32 v{V_RD}, v{T+9}, 4, v{V_RD}
v_lshl_add_u32 v{V_RS}, v{T+2}, 6, v{T+3}
v_and_b32 v{T+9}, 4, v{T+2}
v_lshl_add_u32 v{V_RS}, v{T+9}, 3, v{V_RS}
v_xor_b32 v{V_RS+1}, 32, v{V_RS}""")
        for b in range(1,4): p(f"v_xor_b32 v{V_RD+b}, {32*b}, v{V_RD}")
        for b in range(4): p(f"v_add_u32 v{V_RD+4+b}, 0x10000, v{V_RD+b}")
        for b in range(2): p(f"v_add_u32 v{V_RS+2+b}, 0x10000, v{V_RS+b}")
        p(f"""v_lshlrev_b32 v{V_FALL}, 2, v{T}
v_lshrrev_b32 v{T+2}, 4, v{V_LANE}
v_lshlrev_b32 v{T+2}, 2, v{T+2}
v_lshl_add_u32 v{V_STAT}, v{T}, 4, v{T+2}
v_lshlrev_b32 v{V_EXT}, 4, v{T}
v_add_u32 v{V_EXT}, {L_EXT1}, v{V_EXT}
v_min_u32 v{V_ONE}, 1, v{V_LANE}
v_lshlrev_b32 v{V_ONE}, 30, v{V_ONE}
v_mov_b32 v{V_XE+3}, 0
v_mov_b32 v{V_XE+7}, 0
v_mov_b32 v{V_TS}, 0""")
        p(f"""s_lshr_b32 {S.T0}, {S.W}, 1
s_and_b32 {S.T1}, {S.W}, 1
s_lshl_b32 {S.T2}, {S.J}, 7
s_mul_i32 {S.BQ2}, {S.W}, {32*RQ}
s_add_u32 {S.BQ2}, {S.BQ2}, {S.T2}
s_mul_i32 {S.BQ4}, {S.T0}, {32*RQ}
s_add_u32 {S.BQ4}, {S.BQ4}, {S.T2}
s_lshl_b32 {S.T3}, {S.T1}, 11
s_add_u32 {S.BQ4}, {S.BQ4}, {S.T3}
s_add_u32 {S.BQ4}, {S.BQ4}, 2048""")
        g.pump(8)
        p(f"""s_mul_i32 {S.BO}, {S.W}, {32*R2}
s_add_u32 {S.BO}, {S.BO}, {S.T2}
s_mul_i32 {S.T2}, {S.J}, 448
s_mul_i32 {S.B11}, {S.W}, {64*R1}
s_add_u32 {S.B11}, {S.B11}, {S.T2}
s_xor_b32 {S.T3}, {S.PAR}, 1
s_mul_i32 {S.T3}, {S.T3}, 384
s_add_u32 {S.B11}, {S.B11}, {S.T3}
s_lshl_b32 {S.T3}, {S.PAR}, 6
s_add_u32 {S.T2}, {S.T2}, {S.T3}
s_mul_i32 {S.B12}, {S.W}, {32*R1}
s_add_u32 {S.B12}, {S.B12}, {S.T2}
s_add_u32 {S.B12}, {S.B12}, 256
s_mul_i32 {S.B14}, {S.T0}, {32*R1}
s_add_u32 {S.B14}, {S.B14}, {S.T2}
s_lshl_b32 {S.T3}, {S.T1}, 7
s_add_u32 {S.B14}, {S.B14}, {S.T3}
s_mul_i32 {S.T2}, {S.PAR}, {256*R2}
s_mul_i32 {S.B2Q}, {S.T0}, {448*R2}
s_add_u32 {S.B2Q}, {S.B2Q}, {S.T2}
s_xor_b32 {S.T3}, {S.J}, {S.T1}
s_lshl_b32 {S.T3}, {S.T3}, 7
s_add_u32 {S.B2Q}, {S.B2Q}, {S.T3}
s_mul_i32 {S.B2K}, {S.W}, {448*R2}
s_add_u32 {S.B2K}, {S.B2K}, {S.T2}
s_lshl_b32 {S.T3}, {S.J}, 7
s_add_u32 {S.B2K}, {S.B2K}, {S.T3}
s_xor_b32 {S.B2S}, {S.B2K}, 128
s_mul_i32 {S.T2}, {S.PAR}, {224*R2}
s_sub_u32 {S.T2}, {192*R2}, {S.T2}
s_add_u32 {S.B2Q6}, {S.B2Q}, {S.T2}
s_add_u32 {S.B2S6}, {S.B2S}, {S.T2}
s_add_u32 {S.B2K6}, {S.B2K}, {S.T2}
s_lshl_b32 {S.T2}, {S.MBk}, 16
s_add_u32 {S.XP}, {S.T2}, {WS_X}
s_add_u32 {S.OP}, {S.T2}, {WS_O}
s_lshl_b32 {S.T3}, {S.J}, 12
s_add_u32 {S.XW}, {S.XP}, {S.T3}
s_mul_i32 {S.HR}, {S.MBk}, 229376
s_mul_i32 {S.T2}, {S.PAR}, 114688
s_add_u32 {S.HR}, {S.HR}, {S.T2}
s_add_u32 {S.HR}, {S.HR}, {WS_H}
s_lshr_b32 {S.T2}, {S.J}, 1
s_lshl_b32 {S.T2}, {S.T2}, 11
s_add_u32 {S.HW}, {S.HR}, {S.T2}
s_lshl_b32 {S.STP}, {S.MBk}, 12
s_add_u32 {S.STP}, {S.STP}, {WS_ST}
s_lshl_b32 {S.T2}, {S.MBk}, 4
s_add_u32 {S.T2}, {S.T2}, {S.J}
s_lshl_b32 {S.EXR}, {S.T2}, 13
s_add_u32 {S.EXR}, {S.EXR}, {WS_EX}
s_xor_b32 {S.EXW}, {S.EXR}, 8192
s_lshl_b32 {S.RFR}, {S.MBk}, 8
s_lshl_b32 {S.T2}, {S.J}, 2
s_add_u32 {S.RFW}, {S.RFR}, {S.T2}
s_lshl_b32 {S.CFR}, {S.J}, 8
s_add_u32 {S.CFR}, {S.CFR}, {WS_COLF}
s_lshl_b32 {S.T2}, {S.MBk}, 2
s_add_u32 {S.CFW}, {S.CFR}, {S.T2}
s_mov_b32 {S.C_EPS}, {F(1e-6*LOG2E)}
s_mov_b32 {S.C_LN2}, {F(LN2)}""")
        for k in range(4):
            p(f"v_permlane16_swap_b32 v{V_RES+4*k}, v{V_RES+4*k+2}\nv_permlane16_swap_b32 v{V_RES+4*k+1}, v{V_RES+4*k+3}")
        p(f"s_cmp_lg_u32 s2, 0\ns_cbranch_scc1 L_noinit2\ns_lshl_b32 {S.T2}, {S.W}, 2\nv_mov_b32 v{V_FLG}, 1")
        p.raw(f"buffer_store_dword v{V_FLG}, v{V_ONE}, {TS}, {S.T2} offen {SC}\nL_noinit2:")
        tk=g.publish_x(1)
        p(f"v_and_b32 v{T+10}, 12, v{V_FALL}")
        g.poll_issue(V_FLG,T+10,"0",TS); g.pump(8)
        g.poll_check(V_FLG,T+10,"0",f"s_mov_b32 {S.STG}, 1",TS)
        g.flag_store(S.RFW,g.rowst(1),tk)
        p(f"v_lshlrev_b32 v{T+8}, 16, v{T+8}\nv_lshlrev_b32 v{T+9}, 2, v{V_LANE}\nv_add_u32 v{T+9}, {L_B2}, v{T+9}\nds_write_b32 v{T+9}, v{T+8}")
        p(f"s_mul_i32 {S.T3}, {S.I}, 12288\ns_min_u32 {S.T0}, {S.W}, 2\ns_mul_i32 {S.T1}, {S.J}, 3\ns_add_u32 {S.T0}, {S.T0}, {S.T1}\ns_lshl_b32 {S.T0}, {S.T0}, 8\ns_add_u32 {S.T3}, {S.T3}, {S.T0}\ns_add_u32 {S.T3}, {S.T3}, {WS_CSQ}")
        tk={}; g.run_list(g.colsum_reduce(ACC,T+12,tk))
        g.pump(8); g.flag_store(S.CFW,f"s_mov_b32 {S.STG}, 1",tk[0])
        g.poll_issue(V_FLG,V_FALL,S.RFR); g.pump(8)
        assert g.nextD==32
        p("s_load_dwordx2 s[24:25], s[0:1], 64\ns_mov_b32 s26, 0x400000"); p.waitall(vm=False)
        g.stamp("p0end"); g.flush_stamps()
        p.raw("L_iter:"); head=(p.nvm-p.pvm[("v",V_FLG)],{s:p.nvm-g.dma_t[s][0] for s in range(8)}); p.hist=[]
        g.m0dirty=True
        g.poll_check(V_FLG,V_FALL,S.RFR,g.rowst(1)); g.t=0; g.free_at=0
        if g.end_dbg("p0"): return g.finish()
        g.stamp("p1start")
        aK=lambda b:(ACC+8*b,ACC+8*b+4); aV=lambda b:(ACC+32+8*b,ACC+32+8*b+4)
        aN=lambda base:(lambda b:(base+16*(b>>1)+4*(b&1),base+16*(b>>1)+8+4*(b&1)))
        z0=lambda ks,b:"0" if ks==0 else None; no=lambda ks,b:None
        U=[]
        for t,s in enumerate(s1q): U+=g.quad(s,2*t,aK,True,z0)
        for b in range(8): U.append(g.ext(256*b,aK(b),True,False,"tab1"))
        for t,s in enumerate(s1k): U+=g.pair(s,32-L1+4*t,aK,True,no)
        nK=len(U)-1
        for t,s in enumerate(s1v): U+=g.pair(s,32-L1+4*t,aV,True,no)
        nV=len(U)-1; aQ=aN(ACC+64)
        for b in range(4): U.append(g.ext(2048+256*b,aQ(b),False,True,"tab1"))
        U[nV+1]["pre"]="cs1done"; U[nV+1]["stamp"]="p1q"
        for t,s in enumerate(s1Q): U+=g.pair(s,4*t,aQ,False,no)
        g.setkey(U,"x1")
        side=g.side_stats(False)
        side+=[("i",f"v_lshlrev_b32 v{T+40}, 2, v{V_LANE}"),("fn",lambda:g.poll_issue(V_FLG,T+40,S.CFR)),("delay",800),
               ("fn",lambda:g.poll_check(V_FLG,T+40,S.CFR,f"s_mov_b32 {S.STG}, 1"))]
        side+=g.side_table(False,"tab1")
        side+=[("i",x) for x in g.segcol(S.T3)+[f"s_mul_i32 {S.T0}, {S.I}, {64*R1}",f"s_add_u32 {S.T3}, {S.T3}, {S.T0}",f"s_add_u32 {S.T3}, {S.T3}, {S.ONCE}"]]
        side+=g.colsum_loads(ACC+64,W1,R1,T+10)
        if o["touch"]:
            side+=[("i",x) for x in [f"v_lshlrev_b32 v{T+10}, 7, v{V_LANE}",f"s_lshl_b32 {S.T0}, s2, 2",f"s_add_u32 {S.T0}, {S.T0}, {S.W}",f"s_mul_i32 {S.T1}, {S.T0}, 7168",f"s_add_u32 {S.T1}, {S.T1}, {S.ONCE}",
                                     f"s_lshl_b32 {S.T0}, {S.T0}, 11",f"s_add_u32 {S.T0}, {S.T0}, {S.ONCE}",f"v_and_b32 v{T+11}, 0x780, v{T+10}"]]
            side+=[("vm",f"buffer_load_dword v{T+12}, v{T+11}, {WO}, {S.T0} offen",132),("vm",f"buffer_load_dword v{T+13}, v{T+10}, {W2}, {S.T1} offen",500)]
        side+=[("delay",1200)]
        side+=[("i",x) for x in [f"s_lshl_b32 {S.T3}, {S.I}, 14",f"s_lshl_b32 {S.T0}, {S.J}, 2",f"s_add_u32 {S.T0}, {S.T0}, {S.W}",f"s_lshl_b32 {S.T0}, {S.T0}, 8",
                                 f"s_add_u32 {S.T3}, {S.T3}, {S.T0}",f"s_add_u32 {S.T3}, {S.T3}, {WS_CS1}",f"s_add_u32 {S.T3}, {S.T3}, {S.ONCE}"]]
        side+=g.colsum_reduce(ACC+64,T,{})+[("ev","cs1done")]
        def phi(x,r,t,n):
            s=[f"v_mul_f32 v{x[i]}, v{x[i]}, v{r[i]}" for i in range(n)]
            s+=[f"v_exp_f32 v{t+i}, v{x[i]} clamp" for i in range(n)]
            s+=[f"v_max_f32 v{x[i]}, {S.C_EPS}, v{x[i]}" for i in range(n)]
            s+=[f"v_fma_f32 v{x[i]}, v{x[i]}, {S.C_LN2}, v{t+i}" for i in range(n)]
            return s
        AW,AR,ARV,FR=T+41,T+42,T+43,T+8
        side+=[("i",x) for x in [f"s_add_u32 {S.T0}, {S.LDSW}, {L_SCR}",f"v_add_u32 v{AW}, {S.T0}, v{V_L16}",f"s_lshl_b32 {S.T0}, {S.W}, 10",f"s_add_u32 {S.T0}, {S.T0}, {L_SCR}",
                                 f"v_add_u32 v{ARV}, {S.T0}, v{V_L16}",f"v_and_b32 v{AR}, 0xfffffbff, v{ARV}"]]
        side+=[("at",nK+1)]; tk={}
        for b in range(4):
            f=FR+4*(b&1)
            for mh in range(2):
                x=[aK(b)[mh]+i for i in range(4)]
                side+=[("i",y) for y in phi(x,[V_LC+4*mh+i for i in range(4)],T,4)+[f"v_cvt_pk_bf16_f32 v{f+2*mh+i}, v{x[2*i]}, v{x[2*i+1]}" for i in range(2)]]
            side.append(("fn",lambda b=b,f=f:tk.__setitem__(0,p(f"ds_write_b128 v{AW}, {v(f,4)} offset:{b*1024}"))))
        side+=[("delay",100),("fn",lambda:(p.wait(lg=tk[0]),g.barrier()))]
        KF,ZF,VF=ACC,ACC+96,T+16
        for sw in range(4):
            for dh in range(2): side.append(("i",f"ds_read_b128 {v(KF+8*sw+4*dh,4)}, v{AR} offset:{sw*4096+dh*1024}"))
            side.append(("fn",lambda sw=sw:tk.__setitem__(1,p(f"ds_read_b128 {v(ZF+4*sw,4)}, v{ARV} offset:{sw*4096}"))))
        ON,ZD,KD=T,T+4,T+32
        side+=[("i",f"v_mov_b32 v{ON+i}, 0x3f803f80") for i in range(4)]
        side+=[("i",x) for x in [f"v_and_b32 v{T+44}, 48, v{V_LANE}",f"v_lshl_add_u32 v{T+45}, v{T+44}, 26, v{V_FALL}",f"v_lshl_add_u32 v{T+44}, v{T+44}, 4, v{V_FALL}"]]
        side+=[("fn",lambda:(p.wait(lg=tk[1]),g.barrier()))]
        side+=[("i",f"{MF} {v(ZD,4)}, {v(ON,4)}, {v(ZF+4*sw,4)}, {'0' if sw==0 else v(ZD,4)}") for sw in range(4)]
        side+=[("at",nV+1)]
        for b in range(4):
            f=FR+4*(b&1); x=[aV(b)[0]+i for i in range(8)]
            side+=[("i",f"v_mul_f32 v{x[i]}, v{x[i]}, v{V_LC+i}") for i in range(8)]
            side+=[("i",f"v_cvt_pk_bf16_f32 v{f+i}, v{x[2*i]}, v{x[2*i+1]}") for i in range(4)]
            side.append(("fn",lambda b=b,f=f:tk.__setitem__(0,p(f"ds_write_b128 v{AW}, {v(f,4)} offset:{b*1024}"))))
        side+=[("i",f"s_lshl_b32 {S.T0}, {S.W}, 6"),("i",f"s_add_u32 {S.T0}, {S.T0}, {S.KV}"),("i",f"s_add_u32 {S.T0}, {S.T0}, 8192"),
               ("vm",f"buffer_atomic_add_f32 v{ZD}, v{T+45}, {WS}, {S.T0} offen sc1",16),
               ("i",f"s_lshl_b32 {S.T0}, {S.W}, 11"),("i",f"s_add_u32 {S.T0}, {S.T0}, {S.KV}")]
        side+=[("delay",64),("fn",lambda:(p.wait(lg=tk[0]),g.barrier()))]
        side+=[("i",f"ds_read_b128 {v(VF+4*sw,4)}, v{ARV} offset:{sw*4096}") for sw in range(4)]+[("delay",96)]
        for sw in range(4):
            for dh in range(2): side.append(("i",f"{MF} {v(KD+4*dh,4)}, {v(VF+4*sw,4)}, {v(KF+8*sw+4*dh,4)}, {'0' if sw==0 else v(KD+4*dh,4)}"))
        side+=[("delay",40)]
        for dh in range(2):
            for r in range(4): side.append(("fn",lambda dh=dh,r=r:tk.__setitem__(2,g.vm(f"buffer_atomic_add_f32 v{KD+4*dh+r}, v{T+44}, {WS}, {S.T0} offen offset:{dh*1024+r*64} sc1",24))))
        cst=f"s_add_u32 {S.STG}, {S.IT}, 2"
        side+=[("delay",o.get("kvd1",1500)),("fn",lambda:g.flag_store(S.CFW,cst,tk[2])),("delay",o.get("kvd2",500)),("fn",lambda:g.poll_issue(V_FLG,T+40,S.CFR))]
        side+=[("i",x) for x in [f"v_and_b32 v{T+45}, 48, v{V_LANE}",f"v_lshl_add_u32 v{T+44}, v{V_FALL}, 4, v{T+45}",f"s_add_u32 {S.T0}, {S.KV}, 4096",f"s_add_u32 {S.T1}, {S.KV}, 8192"]]
        side+=[("delay",o.get("kvd3",600)),("fn",lambda:g.poll_check(V_FLG,T+40,S.CFR,cst))]
        KR=ACC
        for h in range(2):
            for e in range(2):
                for dh in range(2): side.append(("vm",f"buffer_load_dwordx4 {v(KR+24*h+8*e+4*dh,4)}, v{T+44}, {WS}, {S.T0 if h else S.KV} offen offset:{e*2048+dh*1024} {SC}"))
            for dh in range(2): side.append(("vm",f"buffer_load_dwordx4 {v(KR+24*h+16+4*dh,4)}, v{T+45}, {WS}, {S.T1} offen offset:{h*128+dh*64} {SC}",16))
        side+=[("at",len(U)-1),("fn",lambda:g.stamp("p1mf"))]
        PQ=T+8
        for h in range(2):
            for mh in range(2):
                x=[ACC+64+16*h+8*mh+i for i in range(8)]
                side+=[("i",y) for y in phi(x,[T+46+mh]*8,T,8)+[f"v_cvt_pk_bf16_f32 v{PQ+8*h+4*mh+i}, v{x[2*i]}, v{x[2*i+1]}" for i in range(4)]]
        g.stream(U,g.aloads("x1",32,S.XP),side,lambda n:(o["vp1"] if n>nK else 2.0)+(3 if nV<n<nV+24 else 0))
        g.stamp("p1qe")
        for h in range(2):
            for e in range(3):
                for i in range(4): p(f"v_cvt_pk_bf16_f32 v{KR+24*h+8*e+i}, v{KR+24*h+8*e+2*i}, v{KR+24*h+8*e+2*i+1}")
        OD=ACC+64
        for h in range(2):
            for mh in range(2):
                for e in(2,0,1): p(f"{MF} {v(OD+24*h+12*mh+4*e,4)}, {v(KR+24*h+8*e,4)}, {v(PQ+8*h+4*mh,4)}, 0")
        p(f"s_lshl_b32 {S.T0}, {S.J}, 12\ns_add_u32 {S.T0}, {S.T0}, {S.OP}\nv_mov_b32 v{T+4}, {F(LOG2E)}")
        for k in range(4): p(f"v_fma_f32 v{T+k}, v{OD+12*k+8}, v{T+4}, {S.C_EPS}")
        for k in range(4): p(f"v_rcp_f32 v{T+k}, v{T+k}")
        for k in range(4):
            d=OD+12*k
            for i in range(8): p(f"v_mul_f32 v{d+i}, v{d+i}, v{T+k}")
            for i in range(4): p(f"v_cvt_pk_bf16_f32 v{d+8+i}, v{d+2*i}, v{d+2*i+1}")
            tk=g.vm(f"buffer_store_dwordx4 {v(d+8,4)}, v{V_L16}, {WS}, {S.T0} offen offset:{k*1024} {SC}")
        g.stamp("p1end")
        def res2acc():
            for k in range(16): p(f"v_lshlrev_b32 v{ACC+2*k}, 16, v{V_RES+k}\nv_and_b32 v{ACC+2*k+1}, 0xffff0000, v{V_RES+k}")
            p(f"s_add_u32 {S.XP}, {S.XP}, {4*MB}\ns_add_u32 {S.XW}, {S.XW}, {4*MB}\ns_add_u32 {S.STP}, {S.STP}, 0x40000\ns_mov_b32 {S.ONCE}, {OOB}")
        g.sync_row(tk,2,res2acc)
        if g.end_dbg("p1"): return g.finish()
        g.stamp("p2start")
        U=[]
        for t,s in enumerate(s2): U+=g.pair(s,4*t,aN(ACC),False,no)
        g.setkey(U,"o")
        g.stream(U,g.aloads("o",32,S.OP),[],lambda n:0)
        g.stamp("p2mf")
        for k in range(16): p(f"v_cvt_pk_bf16_f32 v{V_RES+k}, v{ACC+2*k}, v{ACC+2*k+1}")
        tk=g.publish_x(3); g.stamp("p2end")
        g.sync_row(tk,3)
        if g.end_dbg("p2"): return g.finish()
        g.stamp("p3start")
        U=[]
        for t,s in enumerate(s3a):
            if t==14:
                for b in range(8): U.append(g.ext(4096+256*b,aN(ACC)(b),False,False,"tab3"))
            U+=g.quad(s,2*t,aN(ACC),False,z0)
        nA=len(U)-1
        for b in range(4): U.append(g.ext(4096+2048+256*b,aN(ACC+64)(b),False,True,"tab3"))
        for t,s in enumerate(s3b): U+=g.pair(s,4*t,aN(ACC+64),False,no)
        nB=len(U)-1
        for b in range(2): U.append(g.ext(4096+3072+256*b,aN(ACC+96)(b),False,True,"tab3"))
        nC0=len(U)
        for t,s in enumerate(s3c): U+=g.single(s,8*t,aN(ACC+96),False,no)
        nC=len(U)-1; g.setkey(U,"x3")
        B2R=T+32
        f4=lambda ks,b:(None if ks else (v(B2R+4*b,4) if b<4 else "0"))
        for t,s in enumerate(s4q): U+=g.quad(s,2*t,aN(ACC),False,f4)
        for t,s in enumerate(s4s): U+=g.pair(s,56-L4+4*t,aN(ACC+32),False,no)
        nS=len(U)-1
        for t,s in enumerate(s4k): U+=g.pair(s,56-L4+4*t,aN(ACC),False,no)
        g.setkey(U,"h")
        U[nA+1]["stamp"]="p3b"; U[nC+1]["pre"]="e3"; U[nC+1]["stamp"]="p4start"; U[min(nS+1,len(U)-1)]["stamp"]="p4k"
        lastuse={}
        for n,u in enumerate(U):
            if u["needA"] is not None: lastuse[u["akey"]]=n
        FB=o.get("FB",(2,4,6,7))
        evh=lambda ks:"hf%d"%min(i for i,x in enumerate(FB) if ks//8<x)
        Aq=g.aloads("x3",32,S.XP)+g.aloads("h",56,S.HR,ok=lambda ks:(lambda n:n>=lastuse[("x3",ks) if ks<32 else ("h",ks-32)]),ev=evh)
        side=g.side_stats(True)+g.side_table(True,"tab3")
        VP=T+30
        side+=[("i",x) for x in [f"v_and_b32 v{VP}, 7, v{V_LANE}",f"v_lshlrev_b32 v{VP}, 3, v{VP}",f"s_lshl_b32 {S.T0}, {S.PAR}, 2",f"v_add_u32 v{VP}, {S.T0}, v{VP}",
                                 f"v_and_b32 v{T}, 48, v{V_LANE}",f"v_add_u32 v{T}, {L_B2}, v{T}"]]
        side+=[("i",f"ds_read_b128 {v(B2R+4*b,4)}, v{T} offset:{64*b}") for b in range(4)]
        tk={}; pend=[]
        def tick(lst):
            if pend: lst+=pend.pop(0)
        for b in range(7):
            side.append(("at",(nA if b<4 else nB if b<6 else nC)+1))
            side.append(("i",f"s_add_u32 {S.SOFF}, {S.HW}, {b*16384}"))
            for mh in range(2):
                Oo=T+8+4*mh; L=V_LC+3*mh
                for c in range(2):
                    x=[ACC+16*b+8*mh+4*c+i for i in range(4)]; t=[T+i for i in range(4)]; l=[]
                    l+=[f"v_mul_f32 v{t[i]}, v{x[i]}, v{x[i]}" for i in range(4)]
                    l+=[f"v_fma_f32 v{t[i]}, v{t[i]}, v{L+1}, v{L}" for i in range(4)]
                    l+=[f"v_mul_f32 v{t[i]}, v{t[i]}, v{x[i]}" for i in range(4)]
                    l+=[f"v_exp_f32 v{t[i]}, v{t[i]}" for i in range(4)]
                    l+=[f"v_fma_f32 v{t[i]}, v{t[i]}, v{L+2}, v{L+2}" for i in range(4)]
                    l+=[f"v_rcp_f32 v{t[i]}, v{t[i]}" for i in range(4)]
                    l+=[f"v_mul_f32 v{t[i]}, v{t[i]}, v{x[i]}" for i in range(4)]
                    l+=[f"v_cvt_pk_bf16_f32 v{Oo+2*c+i}, v{t[2*i]}, v{t[2*i+1]}" for i in range(2)]
                    side+=[("i",y) for y in l]
                    tick(side)
                side.append(("fn",lambda b=b,mh=mh,Oo=Oo:tk.__setitem__(b,g.vm(f"buffer_store_dwordx4 {v(Oo,4)}, v{V_L16}, {WS}, {S.SOFF} offen offset:{mh*1024} {SC}"))))
            if b==3: side.append(("ev","e3"))
            if b+1 in FB:
                i=FB.index(b+1)
                while pend: side.append(("delay",300)); tick(side)
                pend=[[],[("fn",lambda b=b,i=i:g.flag_store(S.RFW,g.rowst(4+i),tk[b]))],[],[("fn",lambda:g.poll_issue(V_FLG,VP,S.RFR))],[],
                      [("fn",lambda i=i:g.poll_check(V_FLG,VP,S.RFR,g.rowst(4+i))),("ev",f"hf{i}")]]
        while pend: side.append(("delay",350)); tick(side)
        side+=[("i",f"s_mul_i32 {S.T0}, {S.IT}, {OOB}"),("i",f"s_add_u32 {S.BQ4}, {S.BQ4}, {S.T0}")]
        side+=[("i",f"s_add_u32 {S.T0}, {S.EXW}, 4096"),("i",f"s_xor_b32 {S.T3}, {S.RFW}, 4"),("i",f"v_mov_b32 v{VP}, 0"),("at",nS+1 if L4 else nS)]
        for k in range(8): side.append(("fn",lambda k=k:tk.__setitem__(8,g.vm(f"buffer_store_dwordx4 {v(ACC+32+4*k,4)}, v{V_L16}, {WS}, {S.T0 if k>3 else S.EXW} offen offset:{(k%4)*1024} {SC}"))))
        RS_=ACC+64
        for k in range(16): side+=[("i",f"v_lshlrev_b32 v{RS_+2*k}, 16, v{V_RES+k}"),("i",f"v_and_b32 v{RS_+2*k+1}, 0xffff0000, v{V_RES+k}")]
        side+=[("delay",o.get("exd1",300)),("fn",lambda:g.flag_store(S.RFW,g.rowst(8),tk[8])),("delay",o.get("exd2",300)),("fn",lambda:g.poll_issue(V_FLG,VP,S.T3)),
               ("i",f"s_add_u32 {S.T0}, {S.EXR}, 4096"),("delay",o.get("exd3",450)),("fn",lambda:g.poll_check(V_FLG,VP,S.T3,g.rowst(8)))]
        for k in range(8): side.append(("vm",f"buffer_load_dwordx4 {v(ACC+32+4*k,4)}, v{V_L16}, {WS}, {S.T0 if k>3 else S.EXR} offen offset:{(k%4)*1024} {SC}"))
        side+=[("at",len(U)-1),("fn",lambda:g.stamp("p4mf"))]
        side+=[("i",f"v_add_f32 v{ACC+k}, v{ACC+k}, v{RS_+k}") for k in range(32)]
        g.bqmark=len(g.slots)
        g.stream(U,Aq,side,lambda n:2.0 if n<=nA else o["vp3"] if n<=nC else o["vp4"] if n<=nS else 4.0)
        for k in range(16):
            p(f"v_add_f32 v{ACC+2*k}, v{ACC+2*k}, v{ACC+32+2*k}\nv_add_f32 v{ACC+2*k+1}, v{ACC+2*k+1}, v{ACC+33+2*k}\nv_cvt_pk_bf16_f32 v{V_RES+k}, v{ACC+2*k}, v{ACC+2*k+1}")
        p(f"s_cmp_eq_u32 {S.IT}, 1\ns_cbranch_scc1 L_final"); saved=(list(g.tsq),g.nts)
        p(f"s_add_u32 {S.XP}, {S.XP}, {4*MB}\ns_add_u32 {S.XW}, {S.XW}, {4*MB}\ns_add_u32 {S.STP}, {S.STP}, 0x40000")
        tk=g.publish_x(17); g.stamp("p4end")
        left=96*4-g.nextD
        g.pump(max(left-head[0],0)); g.flag_store(S.RFW,g.rowst(17),tk)
        g.poll_issue(V_FLG,V_FALL,S.RFR); n0=p.nvm; g.pump(8)
        assert g.nextD==96*4
        g.flush_stamps()
        p(f"""s_add_u32 {S.OP}, {S.OP}, {4*MB}
s_add_u32 {S.HR}, {S.HR}, {16*MB}
s_add_u32 {S.HW}, {S.HW}, {16*MB}
s_add_u32 {S.EXR}, {S.EXR}, {8*MB}
s_add_u32 {S.EXW}, {S.EXW}, {8*MB}
s_add_u32 {S.KV}, {S.KV}, 16384
s_mov_b32 {S.IT}, 1
s_mov_b32 {S.ST}, 16""")
        if p.nvm-n0<head[0]: p.waitall(lg=False)
        else:
            for s in range(8): assert p.nvm-g.dma_t[88+s][0]>=head[1][s]
        if o["stop"]=="p4": p.waitall(); p("s_branch L_fin")
        p("s_nop 7\ns_branch L_iter")
        p.raw("L_final:")
        p(f"""v_and_b32 v{T}, 15, v{V_LANE}
v_lshlrev_b32 v{T+1}, 11, v{T}
v_and_b32 v{T+2}, 16, v{V_LANE}
v_lshl_add_u32 v{T+1}, v{T+2}, 1, v{T+1}
v_lshrrev_b32 v{T+2}, 5, v{V_LANE}
v_lshl_add_u32 v{T+1}, v{T+2}, 4, v{T+1}
s_lshl_b32 {S.T0}, {S.MBk}, 16
s_lshl_b32 {S.T1}, {S.J}, 7
s_add_u32 {S.T0}, {S.T0}, {S.T1}
s_add_u32 {S.T1}, {S.T0}, 32768""")
        for k in range(4):
            p(f"v_permlane16_swap_b32 v{V_RES+4*k}, v{V_RES+4*k+2}\nv_permlane16_swap_b32 v{V_RES+4*k+1}, v{V_RES+4*k+3}")
            p(f"buffer_store_dwordx4 {v(V_RES+4*k,4)}, v{T+1}, {TS}, {S.T1 if k&1 else S.T0} offen offset:{64*(k>>1)}")
        g.tsq,g.nts=saved; nn=list(g.names); g.flush_stamps(); g.names=nn
        return g.finish()
    def finish(g):
        p=g.p; p.raw("L_fin:")
        if g.o["prof"]:
            g.tsq=[]; p.waitall(); g.nts=31; g.stamp("end"); g.flush_stamps(); g.names.pop()
            p(f"s_lshl_b32 {S.T0}, s2, 2\ns_add_u32 {S.T0}, {S.T0}, {S.W}\ns_lshl_b32 {S.T0}, {S.T0}, 8\ns_add_u32 {S.T0}, {S.T0}, {WS_TS}\nv_lshlrev_b32 v{V_T}, 2, v{V_LANE}")
            p(f"buffer_store_dword v{V_TS}, v{V_T}, {WS}, {S.T0} offen")
        p.raw("L_abort:\nL_end:\ns_endpgm")
        for s in g.slow: p.raw(s)
        hdr=open("cdna_kernels/"+NAME[:-7]+".s.ref").read().split("; Override")[0]
        hdr+=f"; @launch grid=(256,1,1) block=(256,1,1) lds={LDS_BYTES}\n"
        hdr+=f'.amdgcn_target "amdgcn-amd-amdhsa--gfx950"\n.text\n.globl {NAME}\n.p2align 8\n.type {NAME},@function\n'
        kd=f""".section .rodata,"a"
.p2align 6
.amdhsa_kernel {NAME}
  .amdhsa_next_free_vgpr 512
  .amdhsa_next_free_sgpr 102
  .amdhsa_accum_offset 256
  .amdhsa_group_segment_fixed_size 0
  .amdhsa_kernarg_size 88
  .amdhsa_user_sgpr_count 2
  .amdhsa_user_sgpr_kernarg_segment_ptr 1
  .amdhsa_system_sgpr_workgroup_id_x 1
  .amdhsa_float_denorm_mode_32 3
.end_amdhsa_kernel
"""
        return hdr+p.text()+kd
def make(**o):
    g=Gen(**o); s=g.build(); return s,g
if __name__=="__main__":
    o={}
    for x in sys.argv[2:]:
        k,val=x.split("="); o[k]=eval(val)
    s,g=make(**o); open(sys.argv[1],"w").write(s)
    print("bytes",len(s),"lines",s.count("\n"),"nops",g.p.nops,"autowaits",g.p.autow,"est cyc",g.t, "sgpr",S_NEXT)
```

```python
import re
TRANS=("v_exp_f32","v_log_f32","v_rcp_f32","v_rsq_f32","v_sqrt_f32","v_sin_f32","v_cos_f32")
_rx=re.compile(r"^(-|abs\()?([vas])(?:(\d+)|\[(\d+):(\d+)\])\)?$")
def regs(op):
    op=op.strip()
    if op in("vcc","exec","m0","scc"): return [op]
    if op in("vcc_lo","vcc_hi"): return ["vcc"]
    if op in("exec_lo","exec_hi"): return ["exec"]
    m=_rx.match(op)
    if not m: return []
    k=m.group(2)
    if m.group(3) is not None: return [(k,int(m.group(3)))]
    return [(k,i) for i in range(int(m.group(4)),int(m.group(5))+1)]
class I:
    __slots__=("text","op","kind","rd","wr","srcs","states","wide","lds")
    def __init__(s,text):
        s.text=text; p=text.split(None,1); s.op=p[0]; rest=p[1] if len(p)>1 else ""
        ops=[]
        for x in rest.split(","):
            x=x.strip()
            if x: ops.append(x.split()[0])
        op=s.op; s.states=1; s.wide=False; s.lds=False; s.srcs=[]
        R=lambda l:[r for o in l for r in regs(o)]
        if op.endswith(":") or op.startswith("."): s.kind="label"; s.rd=[]; s.wr=[]; s.states=0
        elif op=="s_nop": s.kind="nop"; s.rd=[]; s.wr=[]; s.states=int(ops[0])+1
        elif op.startswith("v_mfma"):
            s.kind="mfma"; s.wr=R(ops[:1]); s.srcs=[regs(o) for o in ops[1:4]]; s.rd=R(ops[1:4])
        elif op.startswith("buffer_load"):
            s.kind="vmem"; s.lds=(" lds" in text)
            if s.lds: s.wr=[]; s.rd=R(ops)+["m0"]
            else: s.wr=R(ops[:1]); s.rd=R(ops[1:])
        elif op.startswith("global_load"):
            s.kind="vmem"; s.lds=("_lds_" in op)
            if s.lds: s.wr=[]; s.rd=R(ops)+["m0"]
            else: s.wr=R(ops[:1]); s.rd=R(ops[1:])
        elif op.startswith("buffer_store") or op.startswith("buffer_atomic"):
            s.kind="vmem"; s.wr=[]; s.rd=R(ops); s.wide=op.endswith("x4") or op.endswith("x3"); s.srcs=[regs(ops[0])]
            if op.startswith("buffer_atomic") and " sc0" in text: s.wr=R(ops[:1])
        elif op.startswith("ds_read") or op.startswith("ds_bpermute"):
            s.kind="ds"; s.wr=R(ops[:1]); s.rd=R(ops[1:])
        elif op.startswith("ds_write"): s.kind="ds"; s.wr=[]; s.rd=R(ops)
        elif op.startswith("v_"):
            s.kind="valu"
            if op.startswith("v_permlane"): s.wr=R(ops[:2]); s.rd=R(ops[:2])
            elif op.startswith("v_writelane") or op.startswith("v_fmac") or op.startswith("v_dot2c"): s.wr=R(ops[:1]); s.rd=R(ops)
            elif op.endswith("_dpp"): s.wr=R(ops[:1]); s.rd=R(ops)
            else: s.wr=R(ops[:1]); s.rd=R(ops[1:])
            s.srcs=[regs(o) for o in ops[1:]]
        elif op.startswith("s_"):
            s.kind="salu"
            if op in("s_waitcnt","s_barrier","s_sleep","s_endpgm","s_setprio","s_branch") : s.rd=[]; s.wr=[]
            elif op.startswith("s_cbranch"): s.rd=["vcc"] if "vcc" in op else []; s.wr=[]
            elif op.startswith("s_cmp"): s.rd=R(ops); s.wr=[]
            elif op.startswith("s_load") or op.startswith("s_mem"): s.kind="smem"; s.wr=R(ops[:1]); s.rd=R(ops[1:])
            else: s.wr=R(ops[:1]); s.rd=R(ops[1:])
        else: raise ValueError(text)
def isv(r): return isinstance(r,tuple) and r[0] in "va"
def iss(r): return r=="vcc" or (isinstance(r,tuple) and r[0]=="s")
def need(p,c):
    n=0; pw=set(p.wr); crd=set(c.rd); cwr=set(c.wr)
    if p.kind=="mfma":
        pas=4 if "16x16x32" in p.op else 8
        if c.kind=="mfma":
            if pw&(set(c.srcs[0])|set(c.srcs[1])): n=max(n,pas+4)
            if pw&set(c.srcs[2]) and p.wr!=c.srcs[2]: n=max(n,pas+2)
            if pw&cwr and p.wr!=c.srcs[2]: n=max(n,pas+2)
        elif c.kind in("valu","vmem","ds"):
            if pw&(crd|cwr): n=max(n,pas+4)
            if set(p.srcs[2])&cwr: n=max(n,pas-1)
    elif p.kind=="valu":
        wv={r for r in pw if isv(r)}; ws={r for r in pw if iss(r)}
        if c.kind=="mfma" and wv&crd: n=max(n,3 if p.op.startswith("v_dot2") else 2)
        if c.kind=="valu":
            if wv&crd:
                if c.op.startswith("v_permlane") or c.op.endswith("_dpp"): n=max(n,2)
                if c.op.startswith("v_readlane") or c.op.startswith("v_readfirstlane"): n=max(n,1)
                if p.op in TRANS or "op_sel" in p.text or "sdwa" in p.op: n=max(n,1)
            if p.op.startswith("v_dot2") and wv&(crd|cwr):
                if c.op!=p.op or wv&(set(c.srcs[0])|set(c.srcs[1])): n=max(n,3)
            if ws&crd: n=max(n,4 if c.op.startswith(("v_readlane","v_writelane")) else 2)
        if c.kind in("vmem","ds") and p.op.startswith("v_dot2") and wv&crd: n=max(n,3)
        if c.kind in("vmem","ds") and p.op in TRANS and wv&crd: n=max(n,1)
        if c.kind=="vmem" and ws&crd: n=max(n,5)
        if c.kind in("salu","smem") and ws&crd: n=max(n,1)
    elif p.kind=="salu":
        if "m0" in pw and "m0" in crd and c.kind in("vmem","valu"): n=max(n,1)
    elif p.kind=="vmem":
        if p.wide and set(p.srcs[0])&cwr: n=max(n,2)
    return n
class Prog:
    def __init__(s):
        s.out=[]; s.hist=[]; s.nvm=0; s.nlg=0; s.vmdone=0; s.lgdone=0; s.pvm={}; s.plg={}; s.nops=0; s.cyc=0; s.autow=0
    def raw(s,text): s.out.append(text)
    def _put(s,i):
        s.out.append(i.text)
        if i.states: s.hist.append(i); s.hist=s.hist[-24:]
        s.cyc+= 8 if (i.kind=="mfma" or i.op in TRANS or i.op.startswith("global_")) else 12 if i.kind=="vmem" else 4*i.states
    def wait(s,vm=None,lg=None):
        parts=[]
        if vm is not None and vm>s.vmdone:
            n=min(s.nvm-vm,63); parts.append(f"vmcnt({n})"); s.vmdone=s.nvm-n
        if lg is not None and lg>s.lgdone:
            n=min(s.nlg-lg,15); parts.append(f"lgkmcnt({n})"); s.lgdone=s.nlg-n
        if parts: s._put(I("s_waitcnt "+" ".join(parts)))
        return bool(parts)
    def waitall(s,vm=True,lg=True):
        p=[]
        if vm: p.append("vmcnt(0)"); s.vmdone=s.nvm
        if lg: p.append("lgkmcnt(0)"); s.lgdone=s.nlg
        s._put(I("s_waitcnt "+" ".join(p)))
    def __call__(s,text):
        t=None
        for l in text.split("\n"):
            l=l.split(";")[0].strip()
            if l: t=s.one(l)
        return t
    def one(s,text):
        i=I(text)
        touched=list(i.rd)+list(i.wr)
        vm=max([s.pvm.get(r,0) for r in touched]+[0]); lg=max([s.plg.get(r,0) for r in touched]+[0])
        if s.wait(vm or None,lg or None): s.autow+=1
        d=0; k=0
        for p in reversed(s.hist):
            k=max(k,need(p,i)-d); d+=p.states
            if d>=14: break
        if k>0: s.nops+=k; s._put(I(f"s_nop {k-1}"))
        s._put(i)
        if i.kind=="vmem":
            s.nvm+=1
            for r in i.wr: s.pvm[r]=s.nvm
            return s.nvm
        if i.kind=="ds":
            s.nlg+=1
            for r in i.wr: s.plg[r]=s.nlg
            return s.nlg
    def text(s): return "\n".join(s.out)+"\n"
```

```python
import sys, math, struct
from ir import *
NAME="interleave_layers__linear_attn_block__dense_activation_gelu__prompt_kernel"
def f2u(x): return struct.unpack("<I",struct.pack("<f",x))[0]
def F(x): return hex(f2u(x))
LOG2E=1.4426950408889634; LN2=0.6931471805599453
MB=1<<20
WS_ROWF=0; WS_COLF=16384; WS_CSQ=1*MB; WS_CS1=1*MB+0x40000; WS_KV=2*MB; WS_ST=3*MB; WS_TS=4*MB
WS_X=8*MB; WS_O=28*MB; WS_EX=40*MB; WS_H=56*MB
XB=5*MB; KVS=8704
OOB=0x40000000
L_SCR=131072; L_EXT1=147456; L_EXT3=L_EXT1+4096; L_B2=L_EXT3+4096; LDS_BYTES=L_B2+256
RQ,R2,R1=6144,2048,7168
class S: pass
_s=["I","J","W","MBk","PAR","IT","ST","T0","T1","T2","T3","LDSW","WOFF","WHI","AOFF","AHI","TD","SOFF","STG","TO",
    "BQ4","BQ2","BO","B14","B12","B11","B2Q","B2Q6","B2S","B2S6","B2K","B2K6",
    "XP","OP","HR","HW","XW","STP","KV","EXW","EXR","RF","RFH","RFE","CF","CT","ONCE","C_EPS","C_LN2"]
for n,x in enumerate(_s): setattr(S,x,f"s{32+n}")
assert int(S.WOFF[1:])%2==0 and int(S.AOFF[1:])%2==0
WP=f"s[{S.WOFF[1:]}:{S.WHI[1:]}]"; AP=f"s[{S.AOFF[1:]}:{S.AHI[1:]}]"
S_NEXT=32+len(_s); S_NEXT+=S_NEXT&1
WQ,WO,W1,W2,WS,TS,B1="s[4:7]","s[8:11]","s[12:15]","s[16:19]","s[20:23]","s[24:27]","s[28:31]"
V_L16=0; V_ONE=1; V_FALL=2; V_STAT=3
V_PQ=4; V_P2=8; V_P1=12; V_PS=16; V_RD=20; V_RS=28
V_WF=32
V_EXT=60; V_FLG=61; V_TS=62; V_LANE=63
V_RES=64
V_XE=80
V_LC=88
V_ACC=96
V_T=208
V_A=V_T+40
WFR=[V_WF+4*i for i in range(7)]+[V_T+32,V_T+36]
def lo(srd): return int(srd[2:srd.index(":")])
def icost(t):
    c=0
    for l in t.split("\n"):
        op=l.split()[0]
        c+=8 if (op in TRANS or op.startswith(("v_mfma","global_"))) else 12 if op.startswith("buffer_") else 4
    return c
def v(a,n=1): return f"v{a}" if n==1 else f"v[{a}:{a+n-1}]"
def a_(a,n=4): return f"a[{a}:{a+n-1}]"
MF="v_mfma_f32_16x16x32_bf16"
SC="sc1"

class Gen:
    def __init__(g,**o):
        g.o=dict(D=7,WE=4,L1=8,L4=16,DEPTH=400,LOW=150,URG=48,COST=66,prof=False,stop=None,vp0=1.5,vp1=4.0,vp3=3.3,vp4=2.6,touch=True,SK=512,noW=False,noA=False,pu1=6,pu2=6)
        g.o.update(o); g.p=Prog(); g.slow=[]; g.nlab=0; g.nts=0; g.tsq=[]
        g.slots=[]; g.dma_t={}; g.lastrd={}; g.ready=set(); g.released=set(); g.nextD=0; g.t=0; g.free_at=0; g.ev=set()
        g.nunit=0; g.cur={}
    def stamp(g,name):
        if not g.o["prof"]: return
        fine=g.o.get("fine")
        if fine and not(name[0]=="u" or name.endswith("start") and name!="p4start" or name in("end","p2mf")): return
        r=S_NEXT+2*len(g.tsq); assert r+1<102
        g.p(f"{'s_memtime' if g.o['prof']=='cy' else 's_memrealtime'} s[{r}:{r+1}]"); g.tsq.append((name,r))
    def flush_stamps(g):
        if not g.o["prof"] or not g.tsq: return
        p=g.p; p.waitall(vm=False)
        for name,r in g.tsq:
            p(f"s_lshl_b32 m0, {S.IT}, 5\ns_add_u32 m0, m0, {g.nts}\nv_writelane_b32 v{V_TS}, s{r}, m0"); g.names.append(name); g.nts+=1
        g.tsq=[]
    def vm(g,text,cost=None):
        t=g.p(text); c=g.o["COST"] if cost is None else cost
        g.free_at=max(g.free_at,g.t)+c; return t
    def barrier(g):
        p=g.p; p("s_barrier")
        for s,t in g.lastrd.items():
            if t<=p.lgdone: g.released.add(s)
        for s,(t,n) in g.dma_t.items():
            if n==4 and t<=p.vmdone: g.ready.add(s)
    def dma_ok(g):
        s=g.nextD//4
        return s<len(g.slots) and (s<8 or (s-8) in g.released)
    def dma_ops(g):
        s,q=divmod(g.nextD,4); g.nextD+=1; sl=g.slots[s]; p=g.p; ops=[]; pat=sl['pat']
        I_=lambda t:ops.append((icost(t),lambda:p(t)))
        if q==0 or g.m0dirty: I_(f"s_add_u32 m0, {S.LDSW}, {(s%8)*16384}")
        if q==0:
            if g.cur[pat]!=sl['base']:
                I_(f"s_sub_u32 {S.TD}, {sl['base']}, {g.cur[pat]}")
                for k in range(4): I_(f"v_add_u32 v{pat+k}, {S.TD}, v{pat+k}")
                g.cur[pat]=sl['base']
            I_(f"s_add_u32 {S.WOFF}, s{lo(sl['srd'])}, {sl['c']}\ns_addc_u32 {S.WHI}, s{lo(sl['srd'])+1}, 0")
        g.m0dirty=False
        def go(): g.dma_t[s]=(g.vm(f"global_load_lds_dwordx4 v{pat+q}, {WP} offset:{q*1024}",g.o["COST"]*(2 if pat==V_PS else 1)),q+1)
        ops.append((8,go)); return ops
    def dma(g):
        for c,f in g.dma_ops(): f()
    m0dirty=False
    def pump(g,n):
        while n>0 and g.dma_ok(): g.dma(); n-=1
    def arrive(g,soff,off,ticket,ret=False,vo=V_ONE):
        p=g.p; p(f"v_mov_b32 v{V_FLG}, 1"); p.wait(vm=ticket)
        g.vm(f"buffer_atomic_add v{V_FLG}, v{vo}, {WS}, {soff} offen offset:{off} {'sc0 ' if ret else ''}sc1",8)
    def poll_issue(g,soff,off,vo=V_ONE):
        g.p(f"v_mov_b32 v{V_FLG}, 0"); g.vm(f"buffer_atomic_add v{V_FLG}, v{vo}, {WS}, {soff} offen offset:{off} sc0 sc1",8)
    def poll_check(g,soff,off,first,target,vo=V_ONE):
        p=g.p; n=g.nlab; g.nlab+=1
        p(f"v_readfirstlane_b32 {S.STG}, v{V_FLG}"); p(f"s_cmp_lt_u32 {S.STG}, {first}\ns_cbranch_scc1 L_slow{n}"); p.raw(f"L_back{n}:")
        g.slow.append(f"""L_slow{n}:
v_mov_b32 v{V_FLG}, 0
buffer_atomic_add v{V_FLG}, v{vo}, {WS}, {soff} offen offset:{off} sc0 sc1
s_sub_u32 {S.TO}, {S.TO}, 1
s_cbranch_scc1 L_abort
s_waitcnt vmcnt(0)
v_readfirstlane_b32 {S.STG}, v{V_FLG}
s_nop 0
s_cmp_lt_u32 {S.STG}, {target}
s_cbranch_scc1 L_slow{n}
s_branch L_back{n}""")
    def slot(g,base,c,pat,srd):
        g.slots.append(dict(base=base,c=c,pat=pat,srd=srd)); return len(g.slots)-1
    def mkunit(g,s,off,d2,ar,hi,ks,accs,tr,first):
        off+=(s%8)*16384
        if off>=65536: off-=65536; ar+=hi
        A=[a_(8*(ks%32)),a_(8*(ks%32)+4)]
        return dict(slot=s,rd=[(ar,off),(ar,off+d2)],x=A,acc=accs,tr=tr,first=first,needA=ks)
    def quad(g,s,ks0,accf,tr,first):
        return [g.mkunit(s,((b>>2)+2*k)*4096,2048,V_RD+(b&3),4,ks0+k,accf(b),tr,first(ks0+k,b)) for k in range(2) for b in range(8)]
    def pair(g,s,ks0,accf,tr,first):
        return [g.mkunit(s,k*4096,2048,V_RD+b,4,ks0+k,accf(b),tr,first(ks0+k,b)) for k in range(4) for b in range(4)]
    def single(g,s,ks0,accf,tr,first):
        return [g.mkunit(s,k*2048,1024,V_RS+b,2,ks0+k,accf(b),tr,first(ks0+k,b)) for k in range(8) for b in range(2)]
    def ext(g,off,accs,tr,first,ev):
        return dict(slot=None,extoff=off,x=[v(V_XE,4),v(V_XE+4,4)],acc=accs,tr=tr,first="0" if first else None,needA=None,ev=ev)
    def stream(g,U,Aq,side,vpu,sync,burst=8,lat=550):
        p=g.p; D=g.o["D"]; WE=g.o["WE"]; NF=D+1; N=len(U); base=g.nunit
        firstuse={}; lastu={}; firstu={}
        for n,u in enumerate(U):
            if u["needA"] is not None: firstuse.setdefault(u["akey"],n)
            if u["slot"] is not None: lastu[u["slot"]]=n; firstu.setdefault(u["slot"],n)
        At={}; rd_t={}; st=dict(n=-1); mq=[]
        def side_peek(force=False):
            while side:
                it=side[0]
                if it[0]=="at":
                    if st["n"]<it[1]:
                        assert not force,("forced past at",it,st["n"]); return None
                elif it[0]=="delay":
                    if len(it)==2: side[0]=it=("delay",it[1],g.t+it[1])
                    if g.t<it[2] and not force: return None
                elif it[0]=="ev": g.ev.add(it[1])
                else:
                    if it[0]=="vm" and not force and g.free_at-g.t>g.o["DEPTH"]+100: return None
                    return 8 if it[0]=="fn" else icost(it[1])
                side.pop(0)
            return None
        def side_emit():
            it=side.pop(0)
            if it[0]=="fn": it[1]()
            elif it[0]=="vm": g.vm(it[1],it[2] if len(it)>2 else None)
            else: p(it[1])
        def until(ev):
            while True:
                while side and side[0][0]=="ev": g.ev.add(side.pop(0)[1])
                if ev in g.ev: return
                g.forced+=1
                if side[0][0] in("at","delay"):
                    assert side[0][0]=="delay" or st["n"]>=side[0][1],("forced past at",side[0],st["n"]); side.pop(0)
                else: side_emit()
        def flush():
            while mq: mq.pop(0)[1]()
        def nextA():
            x=Aq.pop(0); return x["ops"](At)
        def A_ok(): return Aq and Aq[0]["ok"](st["n"]) and (Aq[0].get("ev") is None or Aq[0]["ev"] in g.ev)
        def refill(force=False):
            if mq or (not force and g.free_at-g.t>g.o["DEPTH"]): return
            da=firstuse.get(Aq[0]["id"][:2],1e8) if A_ok() else None
            dd=(firstu.get(g.nextD//4,1e9)-D) if g.dma_ok() else None
            if da is None and dd is None: return
            st["dl"]=min(x for x in(da,dd) if x is not None)
            mq.extend(nextA() if dd is None or (da is not None and da<=dd) else g.dma_ops())
        def rd(n,half):
            u=U[n]; r=WFR[(base+n)%NF]
            if u["slot"] is None:
                if half==0:
                    until(u["ev"]); rd_t[n]=p(f"ds_read_b128 {v(r,4)}, v{V_EXT} offset:{u['extoff']}")
                return
            s=u["slot"]
            if half==0 and firstu[s]==n:
                if g.dma_t.get(s,(0,0))[1]<4:
                    flush(); g.forced+=1
                    while g.nextD<4*(s+1):
                        if not g.dma_ok(): p.waitall(vm=False); g.barrier()
                        g.dma()
                if s not in g.ready: p.wait(vm=g.dma_t[s][0])
                g.barrier(); assert s in g.ready
            ar,off=u["rd"][half]
            t=p(f"ds_read_b64_tr_b16 {v(r+2*half,2)}, v{ar} offset:{off}")
            if half:
                rd_t[n]=t
                if lastu[s]==n: g.lastrd[s]=t
        cr=dict(c=0.0)
        def peek():
            refill()
            if mq: return mq[0][0]
            return side_peek()
        def emit():
            if mq: mq.pop(0)[1]()
            else: cr["c"]-=side_peek(); side_emit()
        for n in range(min(D,N)): rd(n,0); rd(n,1)
        sync()
        for _ in range(burst): refill(True); flush()
        for _ in range(40):
            if side_peek() is None: break
            side_emit()
        g.t+=lat
        for n,u in enumerate(U):
            c0=p.cyc; r=WFR[(base+n)%NF]
            if u.get("pre"): until(u["pre"])
            if u.get("stamp"): g.stamp(u["stamp"])
            fine=g.o.get("fine")
            if fine and fine[0]<=base+n<fine[0]+8*fine[1] and (base+n-fine[0])%fine[1]==0: g.stamp(f"u{base+n}_{g.t}_{p.nvm}")
            tv=None
            for m in range(n,min(N,n+WE-n%WE)):
                w=U[m]
                if w["needA"] is not None and firstuse[w["akey"]]==m:
                    k=w["akey"]+(1,)
                    if m==n and k not in At:
                        flush(); g.forced+=1
                        while k not in At:
                            if Aq[0].get("ev"): until(Aq[0]["ev"])
                            assert Aq[0]["ok"](st["n"]); mq.extend(nextA()); flush()
                    if k in At and (m==n or n%WE==0): tv=At[k]
            if n%WE==0:
                for m in range(n+D,min(N,n+D+WE)):
                    s=U[m]["slot"]
                    if s is not None and firstu[s]==m and g.dma_t.get(s,(0,0))[1]==4: tv=max(tv or 0,g.dma_t[s][0])
            p.wait(vm=tv,lg=rd_t.get(min(n+WE-1-(n%WE),N-1,n+D-1)))
            cr["c"]=max(min(cr["c"],16),-8)+4*vpu(n)
            def mf(mh):
                acc=v(u["acc"][mh],4); c=u["first"] or acc; w=v(r,4); x=u["x"][mh]
                p(f"{MF} {acc}, {x}, {w}, {c}" if u["tr"] else f"{MF} {acc}, {w}, {x}, {c}")
            mf(0); c1=p.cyc; r1=n+D<N
            if r1: rd(n+D,0)
            wnext=4 if (n+1)%WE==0 else 0
            while True:
                free=8-(p.cyc-c1); c=peek()
                if c is not None and c<=free: emit()
                else: break
            if r1 and free>=4 and (c is not None or wnext): rd(n+D,1); r1=False
            mf(1); st["n"]=n; c1=p.cyc
            if r1: rd(n+D,1)
            while True:
                free=8-wnext-(p.cyc-c1); c=peek()
                if c is None: break
                if c<=free or (mq and g.free_at-g.t<g.o["LOW"] and st["dl"]-n<g.o["URG"]): emit(); continue
                break
            while True:
                c=side_peek()
                if c is None or cr["c"]<c: break
                cr["c"]-=c; side_emit()
            g.t+=max(32,p.cyc-c0)
        g.nunit+=N; flush(); assert not Aq
        p.waitall(vm=False); g.barrier()
        st["n"]=1e9
        while side_peek(True) is not None:
            c0=p.cyc; side_emit(); g.t+=p.cyc-c0
    forced=0
    def aloads(g,key,nks,sbase,ok=lambda ks:(lambda n:True),ev=lambda ks:None):
        q=[]; p=g.p
        for ks in range(nks):
            for mh in range(2):
                f=2*ks+mh
                def ops(At,f=f,ks=ks,mh=mh):
                    l=[]
                    if f==0: l.append((4,lambda:p(f"v_add_u32 v{V_A}, {sbase}, v{V_L16}")))
                    if f%8==0: l.append((8,lambda:p(f"s_add_u32 {S.AOFF}, s{lo(WS)}, {f*1024+4096}\ns_addc_u32 {S.AHI}, s{lo(WS)+1}, 0")))
                    l.append((8,lambda:At.__setitem__((key,ks,mh),g.vm(f"global_load_dwordx4 {a_(8*(ks%32)+4*mh)}, v{V_A}, {AP} offset:{(f%8)*1024-4096} {SC}"))))
                    return l
                q.append(dict(id=(key,ks,mh),ops=ops,ok=ok(ks),ev=ev(ks)))
        return q
    def setkey(g,U,key):
        for u in U:
            if u["needA"] is not None and "akey" not in u: u["akey"]=(key,u["needA"])
        return U
    def red4(g,a,b,c,d):
        return [f"v_permlane32_swap_b32 v{a}, v{c}",f"v_permlane32_swap_b32 v{b}, v{d}",f"v_add_f32 v{a}, v{a}, v{c}",f"v_add_f32 v{b}, v{b}, v{d}",
                f"v_permlane16_swap_b32 v{a}, v{b}",f"v_add_f32 v{a}, v{a}, v{b}"]
    def publish_x(g,stage,pumps=(8,8)):
        p=g.p; T=V_T
        for k in range(4): g.vm(f"buffer_store_dwordx4 {v(V_RES+4*k,4)}, v{V_L16}, {WS}, {S.XW} offen offset:{k*1024} {SC}")
        p(f"v_mov_b32 v{T+4}, 0x3f803f80")
        for i in range(8):
            for mh in range(2):
                r=V_RES+8*(i>>2)+4*mh+(i&3)
                p(f"v_dot2_f32_bf16 v{T+2*mh}, v{r}, v{T+4}, {'0' if i==0 else v(T+2*mh)}")
                p(f"v_dot2_f32_bf16 v{T+2*mh+1}, v{r}, v{r}, {'0' if i==0 else v(T+2*mh+1)}")
        for x in g.red4(T,T+1,T+2,T+3): p(x)
        p(f"s_lshl_b32 {S.T0}, {S.J}, 8\ns_add_u32 {S.T0}, {S.T0}, {S.STP}")
        return g.vm(f"buffer_store_dword v{T}, v{V_STAT}, {WS}, {S.T0} offen {SC}",16)
    def sync_row(g,ticket,stage,name,pre=None):
        g.pump(g.o["pu1"]); g.arrive(S.RF,4*stage,ticket,True); g.pump(g.o["pu2"])
        if pre: pre()
        g.flush_stamps(); g.m0dirty=True
        def chk(): g.poll_check(S.RF,4*stage,15,16); g.t+=1200; g.free_at=g.t; g.stamp(name)
        return chk
    def side_stats(g,p3,mid):
        T=V_T; s=[]
        for t in range(4): s.append(("vm",f"buffer_load_dwordx4 {v(T+4*t,4)}, v{V_L16}, {WS}, {S.STP} offen offset:{t*1024} {SC}"))
        s+=mid; o=[]
        for c in range(4): o+=[f"v_add_f32 v{T+c}, v{T+c}, v{T+4+c}",f"v_add_f32 v{T+8+c}, v{T+8+c}, v{T+12+c}"]
        for c in range(4): o+=[f"v_add_f32 v{T+c}, v{T+c}, v{T+8+c}"]
        for sw in("32","16"):
            for c in range(4): o+=[f"v_mov_b32 v{T+4+c}, v{T+c}"]
            for c in range(4): o+=[f"v_permlane{sw}_swap_b32 v{T+c}, v{T+4+c}"]
            for c in range(4): o+=[f"v_add_f32 v{T+c}, v{T+c}, v{T+4+c}"]
        for mh in range(2): o+=[f"v_mul_f32 v{T+2*mh}, {F(-1/1024)}, v{T+2*mh}",f"v_mul_f32 v{T+2*mh+1}, {F(1/1024)}, v{T+2*mh+1}"]
        for mh in range(2): o+=[f"v_fma_f32 v{T+2*mh+1}, -v{T+2*mh}, v{T+2*mh}, v{T+2*mh+1}"]
        for mh in range(2): o+=[f"v_max_f32 v{T+2*mh+1}, 0, v{T+2*mh+1}"]
        for mh in range(2): o+=[f"v_add_f32 v{T+2*mh+1}, {F(1e-5)}, v{T+2*mh+1}"]
        for mh in range(2): o+=[f"v_rsq_f32 v{T+4+mh}, v{T+2*mh+1}"]
        o+=[f"v_cmp_gt_u32 vcc, 16, v{V_LANE}"]
        for mh in range(2): o+=[f"v_mul_f32 v{T+2*mh+1}, v{T+2*mh+1}, v{T+4+mh}"]
        for mh in range(2):
            m,sg,X=T+2*mh,T+2*mh+1,V_XE+4*mh
            o+=[f"v_cvt_pk_bf16_f32 v{T+6}, v{m}, v{m}",f"v_cvt_pk_bf16_f32 v{T+7}, v{sg}, v{sg}",
                f"v_lshlrev_b32 v{T+8}, 16, v{T+6}",f"v_lshlrev_b32 v{T+9}, 16, v{T+7}",
                f"v_sub_f32 v{T+8}, v{m}, v{T+8}",f"v_sub_f32 v{T+9}, v{sg}, v{T+9}",
                f"v_cvt_pk_bf16_f32 v{T+8}, v{T+8}, v{sg}",f"v_cvt_pk_bf16_f32 v{T+9}, v{T+9}, 0",
                f"v_cndmask_b32 v{X}, 0, v{T+6}, vcc",f"v_cndmask_b32 v{X+1}, 0, v{T+8}, vcc",f"v_cndmask_b32 v{X+2}, 0, v{T+9}, vcc"]
        if p3:
            c0=-2*math.sqrt(2/math.pi)*LOG2E
            for mh in range(2):
                r=T+4+mh; L=V_LC+3*mh
                o+=[f"v_mul_f32 v{L}, {F(c0)}, v{r}",f"v_mul_f32 v{T+6}, v{r}, v{r}",f"v_mov_b32 v{L+2}, v{T+2*mh+1}",
                    f"v_mul_f32 v{T+6}, {F(0.044715)}, v{T+6}",f"v_mul_f32 v{L+1}, v{T+6}, v{L}"]
        else:
            for mh in range(2): o+=[f"v_mul_f32 v{T+46+mh}, {F(LOG2E)}, v{T+4+mh}"]
            o+=[f"v_and_b32 v{T+6}, 48, v{V_LANE}"]
            for mh in range(2):
                for r in range(4): o+=[f"ds_bpermute_b32 v{V_LC+4*mh+r}, v{T+6}, v{T+46+mh} offset:{4*r}"]
        return s+[("i",x) for x in o]
    def side_table(g,p3,ev,mid):
        T=V_T; s=[]; rowb=16384 if p3 else 12288
        o=[f"v_lshrrev_b32 v{T+16}, 4, v{V_LANE}",f"v_and_b32 v{T+17}, 15, v{V_LANE}",f"v_mul_u32_u24 v{T+18}, {rowb}, v{T+16}",
           f"v_lshl_add_u32 v{T+18}, v{T+17}, 4, v{T+18}",f"v_lshl_add_u32 v{T+17}, v{T+17}, 2, v{T+16}"]
        if p3: o+=[f"s_lshl_b32 {S.T0}, {S.J}, 2",f"s_add_u32 {S.T0}, {S.T0}, {S.W}",f"s_lshl_b32 {S.T0}, {S.T0}, 8",f"s_add_u32 {S.T0}, {S.T0}, {WS_CS1}"]
        else: o+=[f"s_min_u32 {S.T0}, {S.W}, 2",f"s_mul_i32 {S.T1}, {S.J}, 3",f"s_add_u32 {S.T0}, {S.T0}, {S.T1}",f"s_lshl_b32 {S.T0}, {S.T0}, 8",f"s_add_u32 {S.T0}, {S.T0}, {WS_CSQ}"]
        s+=[("i",x) for x in o]
        for t in range(4):
            s.append(("vm",f"buffer_load_dwordx4 {v(T+4*t,4)}, v{T+18}, {WS}, {S.T0} offen {SC}"))
            if t<3: s.append(("i",f"s_add_u32 {S.T0}, {S.T0}, {4*rowb}"))
        if p3:
            s+=[("i",x) for x in [f"v_lshlrev_b32 v{T+18}, 1, v{T+17}"]+g.segcol(S.T0)]
            s.append(("vm",f"buffer_load_ushort v{T+19}, v{T+18}, {B1}, {S.T0} offen",16))
        s+=mid; o=[]
        for c in range(4): o+=[f"v_add_f32 v{T+c}, v{T+c}, v{T+4+c}",f"v_add_f32 v{T+8+c}, v{T+8+c}, v{T+12+c}"]
        for c in range(4): o+=[f"v_add_f32 v{T+c}, v{T+c}, v{T+8+c}"]
        o+=g.red4(T,T+1,T+2,T+3)
        o+=[f"v_cvt_pk_bf16_f32 v{T+5}, v{T}, 0",f"s_lshl_b32 {S.T0}, {S.W}, 10",f"v_lshlrev_b32 v{T+8}, 16, v{T+5}",f"v_sub_f32 v{T+8}, v{T}, v{T+8}",
            f"v_cvt_pk_bf16_f32 v{T+4}, v{T}, v{T+8}",f"s_add_u32 {S.T0}, {S.T0}, {L_EXT3 if p3 else L_EXT1}",f"v_mov_b32 v{T+7}, 0"]
        if p3: o+=[f"v_lshl_add_u32 v{T+5}, v{T+19}, 16, v{T+5}",f"v_mov_b32 v{T+6}, v{T+19}"]
        else: o+=[f"v_mov_b32 v{T+6}, 0"]
        o+=[f"v_lshl_add_u32 v{T+17}, v{T+17}, 4, {S.T0}"]
        s+=[("i",x) for x in o]
        tk={}
        s.append(("fn",lambda:tk.__setitem__(0,g.p(f"ds_write_b128 v{T+17}, {v(T+4,4)}"))))
        s.append(("delay",150))
        s.append(("fn",lambda:(g.p.wait(lg=tk[0]),g.barrier())))
        s.append(("ev",ev))
        return s
    def segcol(g,d):
        return [f"s_mul_i32 {S.T1}, {S.J}, 448",f"s_lshl_b32 {S.T2}, {S.PAR}, 6",f"s_lshl_b32 {d}, {S.W}, 7",f"s_add_u32 {d}, {d}, {S.T2}",
                f"s_cmp_eq_u32 {d}, 448\ns_cselect_b32 {d}, 0, {d}",f"s_add_u32 {d}, {d}, {S.T1}"]
    def colsum_loads(g,T,srd,rs,pat):
        o=[("i",f"v_lshrrev_b32 v{pat}, 3, v{V_LANE}"),("i",f"v_and_b32 v{pat+1}, 7, v{V_LANE}"),("i",f"v_mul_u32_u24 v{pat}, {rs}, v{pat}"),("i",f"v_lshl_add_u32 v{pat}, v{pat+1}, 4, v{pat}")]
        for q in range(8):
            o.append(("vm",f"buffer_load_dwordx4 {v(T+4*q,4)}, v{pat}, {srd}, {S.T3} offen"))
            if q<7: o.append(("i",f"s_add_u32 {S.T3}, {S.T3}, {8*rs}"))
        return o
    def colsum_reduce(g,T,X,tk):
        o=[f"v_and_b32 v{X+8}, 15, v{V_LANE}",f"v_lshlrev_b32 v{X+9}, 4, v{X+8}",f"v_and_b32 v{X+9}, 16, v{X+9}",f"v_mov_b32 v{X+4}, 0x3f80",f"v_lshlrev_b32 v{X+9}, v{X+9}, v{X+4}",f"v_lshrrev_b32 v{X+8}, 1, v{X+8}"]
        for r in range(4): o+=[f"v_cmp_eq_u32 vcc, {r}, v{X+8}",f"v_cndmask_b32 v{X+r}, 0, v{X+9}, vcc"]
        for q in range(8): o+=[f"{MF} {v(X+4,4)}, {v(X,4)}, {v(T+4*q,4)}, {'0' if q==0 else v(X+4,4)}"]
        o+=[f"v_and_b32 v{X+8}, 7, v{V_LANE}",f"v_lshlrev_b32 v{X+8}, 5, v{X+8}",f"v_and_b32 v{X+9}, 16, v{V_LANE}",f"v_add_u32 v{X+8}, v{X+8}, v{X+9}",
            f"v_and_b32 v{X+9}, 40, v{V_LANE}",f"v_lshl_add_u32 v{X+8}, v{X+9}, 25, v{X+8}"]
        for r in range(4): o+=[f"v_add_f32_dpp v{X+r}, v{X+4+r}, v{X+4+r} row_ror:8 row_mask:0xf bank_mask:0xf"]
        s=[("i",x) for x in o]
        s.append(("fn",lambda:tk.__setitem__(0,g.vm(f"buffer_store_dwordx4 {v(X,4)}, v{X+8}, {WS}, {S.T3} offen {SC}",16))))
        return s
    def run_list(g,l):
        for it in l:
            if it[0]=="i": g.p(it[1])
            elif it[0]=="vm": g.vm(it[1],it[2] if len(it)>2 else None)
            elif it[0]=="fn": it[1]()
    def end_dbg(g,tag):
        if g.o["stop"]==tag: g.p.waitall(); g.p("s_branch L_fin"); return True
    def build(g):
        p=g.p; o=g.o; g.names=[]; T=V_T; ACC=V_ACC
        L1,L4=o["L1"],o["L4"]
        s1q=[g.slot(S.BQ4,64*t*RQ,V_PQ,WQ) for t in range((32-L1)//2)]
        s1k=[g.slot(S.BQ2,(32-L1+4*t)*32*RQ+2048,V_PQ,WQ) for t in range(L1//4)]
        s1v=[g.slot(S.BQ2,(32-L1+4*t)*32*RQ+4096,V_PQ,WQ) for t in range(L1//4)]
        s1Q=[g.slot(S.BQ2,128*t*RQ,V_PQ,WQ) for t in range(8)]
        s2=[g.slot(S.BO,128*t*R2,V_P2,WO) for t in range(8)]
        s3a=[g.slot(S.B14,64*t*R1,V_P1,W1) for t in range(16)]
        s3b=[g.slot(S.B12,128*t*R1,V_P1,W1) for t in range(8)]
        s3c=[g.slot(S.B11,256*t*R1,V_PS,W1) for t in range(4)]
        def s4(ks,b5,b6):
            b,jj=divmod(ks,8)
            return g.slot(b6,448*jj*R2,V_P2,W2) if b==6 else g.slot(b5,(448*jj+32*b)*R2,V_P2,W2)
        s4q=[s4(ks,S.B2Q,S.B2Q6) for ks in range(0,56-L4,2)]
        s4s=[s4(ks,S.B2S,S.B2S6) for ks in range(56-L4,56,4)]
        s4k=[s4(ks,S.B2K,S.B2K6) for ks in range(56-L4,56,4)]
        assert len(g.slots)==88
        if o.get("short"): g.slots=g.slots[:32]
        NS=len(g.slots)
        for t in range(8): g.slots.append(g.slots[t])
        p.raw(f"{NAME}:")
        p(f"s_cmp_ge_u32 s2, 256\ns_cbranch_scc1 L_end")
        p("s_load_dwordx2 s[24:25], s[0:1], 0\ns_load_dwordx2 s[4:5], s[0:1], 8\ns_load_dwordx2 s[8:9], s[0:1], 16\ns_load_dwordx2 s[12:13], s[0:1], 32\ns_load_dwordx2 s[28:29], s[0:1], 40")
        p("s_load_dwordx2 s[16:17], s[0:1], 48\ns_load_dwordx2 s[94:95], s[0:1], 56\ns_load_dwordx2 s[96:97], s[0:1], 72\ns_load_dwordx2 s[20:21], s[0:1], 80")
        p(f"v_lshrrev_b32 v{T}, 6, v0\nv_and_b32 v{V_LANE}, 63, v0\nv_readfirstlane_b32 {S.W}, v{T}\nv_lshlrev_b32 v{V_L16}, 4, v{V_LANE}")
        p(f"""s_and_b32 {S.PAR}, s2, 1
s_bfe_u32 {S.T0}, s2, 0x20001
s_bfe_u32 {S.T1}, s2, 0x20003
s_lshl_b32 {S.T0}, {S.T0}, 2
s_add_u32 {S.I}, {S.T0}, {S.T1}
s_lshr_b32 {S.T0}, s2, 5
s_lshl_b32 {S.T0}, {S.T0}, 1
s_add_u32 {S.J}, {S.T0}, {S.PAR}
s_lshl_b32 {S.MBk}, {S.I}, 2
s_add_u32 {S.MBk}, {S.MBk}, {S.W}
s_mov_b32 {S.IT}, 0
s_mov_b32 {S.ST}, 0
s_mov_b32 {S.ONCE}, 0
s_mov_b32 {S.TO}, 0x40000
s_lshl_b32 {S.LDSW}, {S.W}, 12""")
        p(f"""v_and_b32 v{T}, 15, v{V_LANE}
v_lshlrev_b32 v{T+1}, 11, v{T}
v_and_b32 v{T+2}, 16, v{V_LANE}
v_lshl_add_u32 v{T+1}, v{T+2}, 1, v{T+1}
v_lshrrev_b32 v{T+2}, 5, v{V_LANE}
v_lshl_add_u32 v{T+1}, v{T+2}, 4, v{T+1}
s_lshl_b32 {S.T0}, {S.MBk}, 16
s_lshl_b32 {S.T1}, {S.J}, 7
s_add_u32 {S.T0}, {S.T0}, {S.T1}
s_add_u32 {S.T1}, {S.T0}, 32768""")
        p.waitall(vm=False)
        p(f"""s_mov_b32 s26, 0x400000
s_mov_b32 s27, 0x20000
s_mov_b32 s22, 0x10000000
s_mov_b32 s23, 0x20000""")
        g.stamp("start")
        p(f"v_mov_b32 v{T+4}, 0\nv_mov_b32 v{T+5}, 0\nv_mov_b32 v{T+6}, 0\nv_mov_b32 v{T+7}, 0")
        p(f"v_min_u32 v{V_ONE}, 1, v{V_LANE}\nv_lshlrev_b32 v{V_ONE}, 30, v{V_ONE}\ns_mov_b32 s98, 256\ns_mov_b32 s99, 0x20000")
        p(f"s_add_u32 {S.T2}, s2, {S.W}\ns_cmp_lg_u32 {S.T2}, 0\ns_cbranch_scc1 L_noinit")
        for k in range(20):
            p.raw(f"buffer_store_dwordx4 {v(T+4,4)}, v{V_L16}, {WS}, {S.T2} offen offset:{(k%4)*1024} {SC}")
            if k%4==3: p.raw(f"s_add_u32 {S.T2}, {S.T2}, 4096")
        p.raw(f"v_mov_b32 v{V_FLG}, 1\ns_waitcnt vmcnt(0)\nbuffer_store_dword v{V_FLG}, v{V_ONE}, s[96:99], 0 offen {SC}\nL_noinit:")
        for k2 in range(2):
            for mh in range(2): g.vm(f"buffer_load_dwordx4 {v(V_RES+8*k2+4*mh,4)}, v{T+1}, {TS}, {S.T1 if mh else S.T0} offen offset:{64*k2}")
        p(f"""s_mov_b32 s6, {1024*RQ}
s_mov_b32 s7, 0x20000
s_mov_b32 s10, {1024*R2}
s_mov_b32 s11, 0x20000
s_mov_b32 s14, {1024*R1}
s_mov_b32 s15, 0x20000
s_mov_b32 s18, {3584*R2}
s_mov_b32 s19, 0x20000
s_mov_b32 s30, 7168
s_mov_b32 s31, 0x20000""")
        if o["noW"]: p("s_mov_b32 s6, 0\ns_mov_b32 s10, 0\ns_mov_b32 s14, 0\ns_mov_b32 s18, 0")
        p(f"""s_min_u32 {S.T0}, {S.W}, 2
s_add_u32 {S.T1}, {S.T0}, 1
s_cmp_eq_u32 {S.T0}, 2
s_cselect_b32 {S.T1}, 0, {S.T1}
s_lshl_b32 {S.T1}, {S.T1}, 11
s_mul_i32 {S.T3}, {S.I}, {64*RQ}
s_add_u32 {S.T3}, {S.T3}, {S.T1}
s_lshl_b32 {S.T1}, {S.J}, 7
s_add_u32 {S.T3}, {S.T3}, {S.T1}""")
        g.run_list(g.colsum_loads(ACC,WQ,RQ,T+2))
        p(f"""s_mul_i32 {S.KV}, {S.J}, {KVS}
s_add_u32 {S.KV}, {S.KV}, {WS_KV}
s_and_b32 {S.T0}, {S.MBk}, 31
s_min_u32 {S.T0}, {S.T0}, 16
s_lshl_b32 {S.T0}, {S.T0}, 9
s_lshr_b32 {S.T1}, {S.MBk}, 5
s_mul_i32 {S.T1}, {S.T1}, {16*KVS}
s_add_u32 {S.T0}, {S.T0}, {S.T1}
s_add_u32 {S.T0}, {S.T0}, {S.KV}
v_lshlrev_b32 v{T+2}, 3, v{V_LANE}""")
        g.vm(f"buffer_store_dwordx2 {v(T+4,2)}, v{T+2}, {WS}, {S.T0} offen {SC}")
        p(f"s_mov_b32 s24, s94\ns_mov_b32 s25, s95\ns_mov_b32 s26, 2048\nv_lshlrev_b32 v{T+2}, 1, v{V_LANE}\ns_lshl_b32 {S.T0}, {S.J}, 7")
        g.vm(f"buffer_load_ushort v{T+8}, v{T+2}, {TS}, {S.T0} offen")
        p(f"v_lshrrev_b32 v{T+2}, 3, v{V_LANE}\nv_and_b32 v{T+3}, 7, v{V_LANE}\nv_and_b32 v{T+9}, 6, v{T+2}\nv_xor_b32 v{T+3}, v{T+3}, v{T+9}\nv_lshlrev_b32 v{T+3}, 4, v{T+3}")
        for pat,rs in((V_PQ,RQ),(V_P2,R2),(V_P1,R1)):
            p(f"v_mul_u32_u24 v{pat}, {rs}, v{T+2}\nv_add_u32 v{pat}, v{pat}, v{T+3}")
            for q in range(1,4): p(f"v_add_u32 v{pat+q}, {q*(8*rs-1024)}, v{pat}")
        p(f"""v_lshrrev_b32 v{T+2}, 2, v{V_LANE}
v_and_b32 v{T+3}, 3, v{V_LANE}
v_lshrrev_b32 v{T+9}, 1, v{T+2}
v_and_b32 v{T+9}, 2, v{T+9}
v_xor_b32 v{T+9}, v{T+3}, v{T+9}
v_mul_u32_u24 v{V_PS}, {R1}, v{T+2}
v_lshl_add_u32 v{V_PS}, v{T+9}, 4, v{V_PS}""")
        for q in range(1,4): p(f"v_add_u32 v{V_PS+q}, {q*(16*R1-1024)}, v{V_PS}")
        p(f"""v_lshlrev_b32 v{T+3}, 3, v{T+3}
v_lshl_add_u32 v{V_RD}, v{T+2}, 7, v{T+3}
v_and_b32 v{T+9}, 6, v{T+2}
v_lshl_add_u32 v{V_RD}, v{T+9}, 4, v{V_RD}
v_lshl_add_u32 v{V_RS}, v{T+2}, 6, v{T+3}
v_and_b32 v{T+9}, 4, v{T+2}
v_lshl_add_u32 v{V_RS}, v{T+9}, 3, v{V_RS}
v_xor_b32 v{V_RS+1}, 32, v{V_RS}""")
        for b in range(1,4): p(f"v_xor_b32 v{V_RD+b}, {32*b}, v{V_RD}")
        for b in range(4): p(f"v_add_u32 v{V_RD+4+b}, 0x10000, v{V_RD+b}")
        for b in range(2): p(f"v_add_u32 v{V_RS+2+b}, 0x10000, v{V_RS+b}")
        p(f"""v_lshlrev_b32 v{V_FALL}, 2, v{T}
v_lshrrev_b32 v{T+2}, 4, v{V_LANE}
v_lshlrev_b32 v{T+2}, 2, v{T+2}
v_lshl_add_u32 v{V_STAT}, v{T}, 4, v{T+2}
v_lshlrev_b32 v{V_EXT}, 4, v{T}
v_add_u32 v{V_EXT}, {L_EXT1}, v{V_EXT}
v_mov_b32 v{V_XE+3}, 0
v_mov_b32 v{V_XE+7}, 0
v_mov_b32 v{V_TS}, 0""")
        p(f"""s_lshr_b32 {S.T0}, {S.W}, 1
s_and_b32 {S.T1}, {S.W}, 1
s_lshl_b32 {S.T2}, {S.J}, 7
s_mul_i32 {S.BQ2}, {S.W}, {32*RQ}
s_add_u32 {S.BQ2}, {S.BQ2}, {S.T2}
s_mul_i32 {S.BQ4}, {S.T0}, {32*RQ}
s_add_u32 {S.BQ4}, {S.BQ4}, {S.T2}
s_lshl_b32 {S.T3}, {S.T1}, 11
s_add_u32 {S.BQ4}, {S.BQ4}, {S.T3}
s_add_u32 {S.BQ4}, {S.BQ4}, 2048""")
        for k in range(4): p(f"v_add_u32 v{V_PQ+k}, {S.BQ4}, v{V_PQ+k}")
        g.cur={V_PQ:S.BQ4,V_P2:S.BO,V_P1:S.B14,V_PS:S.B11}
        g.pump(8)
        p(f"""s_mul_i32 {S.BO}, {S.W}, {32*R2}
s_add_u32 {S.BO}, {S.BO}, {S.T2}
s_mul_i32 {S.T2}, {S.J}, 448
s_mul_i32 {S.B11}, {S.W}, {64*R1}
s_add_u32 {S.B11}, {S.B11}, {S.T2}
s_xor_b32 {S.T3}, {S.PAR}, 1
s_mul_i32 {S.T3}, {S.T3}, 384
s_add_u32 {S.B11}, {S.B11}, {S.T3}
s_lshl_b32 {S.T3}, {S.PAR}, 6
s_add_u32 {S.T2}, {S.T2}, {S.T3}
s_mul_i32 {S.B12}, {S.W}, {32*R1}
s_add_u32 {S.B12}, {S.B12}, {S.T2}
s_add_u32 {S.B12}, {S.B12}, 256
s_mul_i32 {S.B14}, {S.T0}, {32*R1}
s_add_u32 {S.B14}, {S.B14}, {S.T2}
s_lshl_b32 {S.T3}, {S.T1}, 7
s_add_u32 {S.B14}, {S.B14}, {S.T3}
s_mul_i32 {S.T2}, {S.PAR}, {256*R2}
s_mul_i32 {S.B2Q}, {S.T0}, {448*R2}
s_add_u32 {S.B2Q}, {S.B2Q}, {S.T2}
s_xor_b32 {S.T3}, {S.J}, {S.T1}
s_lshl_b32 {S.T3}, {S.T3}, 7
s_add_u32 {S.B2Q}, {S.B2Q}, {S.T3}
s_mul_i32 {S.B2K}, {S.W}, {448*R2}
s_add_u32 {S.B2K}, {S.B2K}, {S.T2}
s_lshl_b32 {S.T3}, {S.J}, 7
s_add_u32 {S.B2K}, {S.B2K}, {S.T3}
s_xor_b32 {S.B2S}, {S.B2K}, 128
s_mul_i32 {S.T2}, {S.PAR}, {224*R2}
s_sub_u32 {S.T2}, {192*R2}, {S.T2}
s_add_u32 {S.B2Q6}, {S.B2Q}, {S.T2}
s_add_u32 {S.B2S6}, {S.B2S}, {S.T2}
s_add_u32 {S.B2K6}, {S.B2K}, {S.T2}
s_mul_i32 {S.T2}, {S.MBk}, {65536+o["SK"]}
s_add_u32 {S.XP}, {S.T2}, {WS_X}
s_add_u32 {S.OP}, {S.T2}, {WS_O}
s_lshl_b32 {S.T3}, {S.J}, 12
s_add_u32 {S.XW}, {S.XP}, {S.T3}
s_mul_i32 {S.HR}, {S.MBk}, {229376+o["SK"]}
s_mul_i32 {S.T2}, {S.PAR}, 114688
s_add_u32 {S.HR}, {S.HR}, {S.T2}
s_add_u32 {S.HR}, {S.HR}, {WS_H}
s_lshr_b32 {S.T2}, {S.J}, 1
s_lshl_b32 {S.T2}, {S.T2}, 11
s_add_u32 {S.HW}, {S.HR}, {S.T2}
s_lshl_b32 {S.STP}, {S.MBk}, 12
s_add_u32 {S.STP}, {S.STP}, {WS_ST}
s_lshl_b32 {S.T2}, {S.MBk}, 4
s_add_u32 {S.T2}, {S.T2}, {S.J}
s_lshl_b32 {S.EXR}, {S.T2}, 13
s_add_u32 {S.EXR}, {S.EXR}, {WS_EX}
s_xor_b32 {S.EXW}, {S.EXR}, 8192
s_lshl_b32 {S.RF}, {S.MBk}, 8
s_lshl_b32 {S.T2}, {S.PAR}, 2
s_add_u32 {S.RFH}, {S.RF}, {S.T2}
s_lshr_b32 {S.T2}, {S.J}, 1
s_lshl_b32 {S.T2}, {S.T2}, 2
s_add_u32 {S.RFE}, {S.RF}, {S.T2}
s_lshl_b32 {S.CF}, {S.J}, 8
s_add_u32 {S.CF}, {S.CF}, {WS_COLF}
s_min_u32 {S.T2}, {S.W}, 1
s_lshl_b32 {S.T3}, {S.T2}, 30
s_add_u32 {S.CF}, {S.CF}, {S.T3}
s_xor_b32 {S.T2}, {S.T2}, 1
s_lshl_b32 {S.CT}, {S.T2}, 4
s_mov_b32 {S.C_EPS}, {F(1e-6*LOG2E)}
s_mov_b32 {S.C_LN2}, {F(LN2)}""")
        for pat in(V_P2,V_P1,V_PS):
            for k in range(4): p(f"v_add_u32 v{pat+k}, {g.cur[pat]}, v{pat+k}")
        for k in range(4):
            p(f"v_permlane16_swap_b32 v{V_RES+4*k}, v{V_RES+4*k+2}\nv_permlane16_swap_b32 v{V_RES+4*k+1}, v{V_RES+4*k+3}")
        g.stamp("p0x")
        tk=g.publish_x(0)
        g.vm(f"buffer_load_dword v{V_FLG}, v{V_ONE}, s[96:99], 0 offen {SC}",8); g.pump(8)
        p(f"v_readfirstlane_b32 {S.STG}, v{V_FLG}"); p(f"s_cmp_eq_u32 {S.STG}, 0\ns_cbranch_scc1 L_slowi"); p.raw("L_backi:")
        g.slow.append(f"""L_slowi:
buffer_load_dword v{V_FLG}, v{V_ONE}, s[96:99], 0 offen {SC}
s_sub_u32 {S.TO}, {S.TO}, 1
s_cbranch_scc1 L_abort
s_waitcnt vmcnt(0)
v_readfirstlane_b32 {S.STG}, v{V_FLG}
s_nop 0
s_cmp_eq_u32 {S.STG}, 0
s_cbranch_scc1 L_slowi
s_branch L_backi""")
        g.arrive(S.RF,0,tk); g.stamp("p0arr")
        p(f"v_lshlrev_b32 v{T+8}, 16, v{T+8}\nv_lshlrev_b32 v{T+9}, 2, v{V_LANE}\nv_add_u32 v{T+9}, {L_B2}, v{T+9}\nds_write_b32 v{T+9}, v{T+8}")
        p(f"s_mul_i32 {S.T3}, {S.I}, 12288\ns_min_u32 {S.T0}, {S.W}, 2\ns_mul_i32 {S.T1}, {S.J}, 3\ns_add_u32 {S.T0}, {S.T0}, {S.T1}\ns_lshl_b32 {S.T0}, {S.T0}, 8\ns_add_u32 {S.T3}, {S.T3}, {S.T0}\ns_add_u32 {S.T3}, {S.T3}, {WS_CSQ}")
        tk={}; g.run_list(g.colsum_reduce(ACC,T+12,tk))
        g.pump(8); p.wait(vm=tk[0]); p("s_barrier"); g.arrive(S.CF,0,tk[0])
        g.poll_issue(S.RF,0); g.pump(8); p(f"s_mov_b32 {S.ST}, 16")
        assert g.nextD==32
        p("s_load_dwordx2 s[24:25], s[0:1], 64\ns_mov_b32 s26, 0x400000"); p.waitall(vm=False)
        g.stamp("p0end"); g.flush_stamps()
        p.raw("L_iter:"); head=(p.nvm-p.pvm[("v",V_FLG)],{s:p.nvm-g.dma_t[s][0] for s in range(8)}); p.hist=[]
        g.m0dirty=True
        headdone=[s for s in range(8) if g.dma_t[s][0]<=p.vmdone]; headcur=dict(g.cur)
        def chk(): g.poll_check(S.RF,0,S.ST,16); g.t=0; g.free_at=0; g.stamp("p1start")
        aK=lambda b:(ACC+8*b,ACC+8*b+4); aV=lambda b:(ACC+32+8*b,ACC+32+8*b+4)
        aN=lambda base:(lambda b:(base+16*(b>>1)+4*(b&1),base+16*(b>>1)+8+4*(b&1)))
        z0=lambda ks,b:"0" if ks==0 else None; no=lambda ks,b:None
        U=[]
        for t,s in enumerate(s1q): U+=g.quad(s,2*t,aK,True,z0)
        for b in range(8): U.append(g.ext(256*b,aK(b),True,False,"tab1"))
        for t,s in enumerate(s1k): U+=g.pair(s,32-L1+4*t,aK,True,no)
        nK=len(U)-1
        for t,s in enumerate(s1v): U+=g.pair(s,32-L1+4*t,aV,True,no)
        nV=len(U)-1; aQ=aN(ACC+64)
        for b in range(4): U.append(g.ext(2048+256*b,aQ(b),False,True,"tab1"))
        U[nV+1]["pre"]="cs1done"; U[nV+1]["stamp"]="p1q"
        for t,s in enumerate(s1Q): U+=g.pair(s,4*t,aQ,False,no)
        g.setkey(U,"x1")
        side=g.side_stats(False,[("fn",lambda:g.poll_issue(S.CF,0)),("delay",800)])
        side+=[("fn",lambda:(g.poll_check(S.CF,0,S.CT,S.CT),g.barrier()))]
        mid=[("i",x) for x in g.segcol(S.T3)+[f"s_mul_i32 {S.T0}, {S.I}, {64*R1}",f"s_add_u32 {S.T3}, {S.T3}, {S.T0}",f"s_add_u32 {S.T3}, {S.T3}, {S.ONCE}"]]
        mid+=g.colsum_loads(ACC+64,W1,R1,T+20)
        if o["touch"]:
            mid+=[("i",x) for x in [f"v_lshlrev_b32 v{T+20}, 7, v{V_LANE}",f"s_lshl_b32 {S.T0}, s2, 2",f"s_add_u32 {S.T0}, {S.T0}, {S.W}",f"s_mul_i32 {S.T1}, {S.T0}, 7168",f"s_add_u32 {S.T1}, {S.T1}, {S.ONCE}",
                                     f"s_lshl_b32 {S.T0}, {S.T0}, 11",f"s_add_u32 {S.T0}, {S.T0}, {S.ONCE}",f"v_and_b32 v{T+21}, 0x780, v{T+20}"]]
            mid+=[("vm",f"buffer_load_dword v{T+22}, v{T+21}, {WO}, {S.T0} offen",66),("vm",f"buffer_load_dword v{T+23}, v{T+20}, {W2}, {S.T1} offen",66)]
        side+=g.side_table(False,"tab1",mid)
        side+=[("i",x) for x in [f"s_lshl_b32 {S.T3}, {S.I}, 14",f"s_lshl_b32 {S.T0}, {S.J}, 2",f"s_add_u32 {S.T0}, {S.T0}, {S.W}",f"s_lshl_b32 {S.T0}, {S.T0}, 8",
                                 f"s_add_u32 {S.T3}, {S.T3}, {S.T0}",f"s_add_u32 {S.T3}, {S.T3}, {WS_CS1}",f"s_add_u32 {S.T3}, {S.T3}, {S.ONCE}"]]
        side+=g.colsum_reduce(ACC+64,T,{})+[("ev","cs1done")]
        def phi(x,r,t,n):
            s=[f"v_mul_f32 v{x[i]}, v{x[i]}, v{r[i]}" for i in range(n)]
            s+=[f"v_exp_f32 v{t+i}, v{x[i]} clamp" for i in range(n)]
            s+=[f"v_max_f32 v{x[i]}, {S.C_EPS}, v{x[i]}" for i in range(n)]
            s+=[f"v_fma_f32 v{x[i]}, v{x[i]}, {S.C_LN2}, v{t+i}" for i in range(n)]
            return s
        AW,AR,ARV,FR=T+41,T+42,T+43,T+8
        side+=[("i",x) for x in [f"s_add_u32 {S.T0}, {S.LDSW}, {L_SCR}",f"v_add_u32 v{AW}, {S.T0}, v{V_L16}",f"s_lshl_b32 {S.T0}, {S.W}, 10",f"s_add_u32 {S.T0}, {S.T0}, {L_SCR}",
                                 f"v_add_u32 v{ARV}, {S.T0}, v{V_L16}",f"v_and_b32 v{AR}, 0xfffffbff, v{ARV}"]]
        side+=[("at",nK+1)]; tk={}
        for b in range(4):
            f=FR+4*(b&1)
            for mh in range(2):
                x=[aK(b)[mh]+i for i in range(4)]
                side+=[("i",y) for y in phi(x,[V_LC+4*mh+i for i in range(4)],T,4)+[f"v_cvt_pk_bf16_f32 v{f+2*mh+i}, v{x[2*i]}, v{x[2*i+1]}" for i in range(2)]]
            side.append(("fn",lambda b=b,f=f:tk.__setitem__(0,p(f"ds_write_b128 v{AW}, {v(f,4)} offset:{b*1024}"))))
        side+=[("delay",100),("fn",lambda:(p.wait(lg=tk[0]),g.barrier()))]
        KF,ZF,VF=ACC,ACC+96,T+16
        for sw in range(4):
            for dh in range(2): side.append(("i",f"ds_read_b128 {v(KF+8*sw+4*dh,4)}, v{AR} offset:{sw*4096+dh*1024}"))
            side.append(("fn",lambda sw=sw:tk.__setitem__(1,p(f"ds_read_b128 {v(ZF+4*sw,4)}, v{ARV} offset:{sw*4096}"))))
        ON,ZD,KD=T,T+4,T+8
        side+=[("i",f"v_mov_b32 v{ON+i}, 0x3f803f80") for i in range(4)]
        side+=[("i",x) for x in [f"v_and_b32 v{T+44}, 48, v{V_LANE}",f"v_lshl_add_u32 v{T+45}, v{T+44}, 26, v{V_FALL}",f"v_lshl_add_u32 v{T+44}, v{T+44}, 4, v{V_FALL}"]]
        side+=[("fn",lambda:(p.wait(lg=tk[1]),g.barrier()))]
        side+=[("i",f"{MF} {v(ZD,4)}, {v(ON,4)}, {v(ZF+4*sw,4)}, {'0' if sw==0 else v(ZD,4)}") for sw in range(4)]
        side+=[("at",nV+1)]
        for b in range(4):
            f=FR+4*(b&1); x=[aV(b)[0]+i for i in range(8)]
            side+=[("i",f"v_mul_f32 v{x[i]}, v{x[i]}, v{V_LC+i}") for i in range(8)]
            side+=[("i",f"v_cvt_pk_bf16_f32 v{f+i}, v{x[2*i]}, v{x[2*i+1]}") for i in range(4)]
            side.append(("fn",lambda b=b,f=f:tk.__setitem__(0,p(f"ds_write_b128 v{AW}, {v(f,4)} offset:{b*1024}"))))
        side+=[("i",f"s_lshl_b32 {S.T0}, {S.W}, 6"),("i",f"s_add_u32 {S.T0}, {S.T0}, {S.KV}"),("i",f"s_add_u32 {S.T0}, {S.T0}, 8192"),
               ("vm",f"buffer_atomic_add_f32 v{ZD}, v{T+45}, {WS}, {S.T0} offen sc1",16),
               ("i",f"s_lshl_b32 {S.T0}, {S.W}, 11"),("i",f"s_add_u32 {S.T0}, {S.T0}, {S.KV}")]
        side+=[("delay",64),("fn",lambda:(p.wait(lg=tk[0]),g.barrier()))]
        side+=[("i",f"ds_read_b128 {v(VF+4*sw,4)}, v{ARV} offset:{sw*4096}") for sw in range(4)]+[("delay",96)]
        for sw in range(4):
            for dh in range(2): side.append(("i",f"{MF} {v(KD+4*dh,4)}, {v(VF+4*sw,4)}, {v(KF+8*sw+4*dh,4)}, {'0' if sw==0 else v(KD+4*dh,4)}"))
        side+=[("delay",40)]
        for dh in range(2):
            for r in range(4): side.append(("fn",lambda dh=dh,r=r:tk.__setitem__(2,g.vm(f"buffer_atomic_add_f32 v{KD+4*dh+r}, v{T+44}, {WS}, {S.T0} offen offset:{dh*1024+r*64} sc1",24))))
        side+=[("delay",o.get("kvd1",1500)),("fn",lambda:(p.wait(vm=tk[2]),g.stamp("kvat"),g.barrier(),g.arrive(S.CF,4,tk[2]))),("delay",o.get("kvd2",400)),("fn",lambda:g.poll_issue(S.CF,4))]
        side+=[("i",x) for x in [f"v_and_b32 v{T+45}, 48, v{V_LANE}",f"v_lshl_add_u32 v{T+44}, v{V_FALL}, 4, v{T+45}",f"s_add_u32 {S.T0}, {S.KV}, 4096",f"s_add_u32 {S.T1}, {S.KV}, 8192"]]
        side+=[("delay",o.get("kvd3",600)),("fn",lambda:(g.poll_check(S.CF,4,S.CT,S.CT),g.barrier(),g.stamp("kvok")))]
        KR=ACC
        for h in range(2):
            for e in range(2):
                for dh in range(2): side.append(("vm",f"buffer_load_dwordx4 {v(KR+24*h+8*e+4*dh,4)}, v{T+44}, {WS}, {S.T0 if h else S.KV} offen offset:{e*2048+dh*1024} {SC}"))
            for dh in range(2): side.append(("vm",f"buffer_load_dwordx4 {v(KR+24*h+16+4*dh,4)}, v{T+45}, {WS}, {S.T1} offen offset:{h*128+dh*64} {SC}",16))
        side+=[("at",len(U)-1),("fn",lambda:g.stamp("p1mf"))]
        PQ=T+8
        for h in range(2):
            for mh in range(2):
                x=[ACC+64+16*h+8*mh+i for i in range(8)]
                side+=[("i",y) for y in phi(x,[T+46+mh]*8,T,8)+[f"v_cvt_pk_bf16_f32 v{PQ+8*h+4*mh+i}, v{x[2*i]}, v{x[2*i+1]}" for i in range(4)]]
        g.stream(U,g.aloads("x1",32,S.XP),side,lambda n:(o["vp1"] if n>nK else o["vp0"])+(3 if nV<n<nV+24 else 0),chk)
        g.stamp("p1qe")
        for h in range(2):
            for e in range(3):
                for i in range(4): p(f"v_cvt_pk_bf16_f32 v{KR+24*h+8*e+i}, v{KR+24*h+8*e+2*i}, v{KR+24*h+8*e+2*i+1}")
        OD=ACC+64
        for h in range(2):
            for mh in range(2):
                for e in(2,0,1): p(f"{MF} {v(OD+24*h+12*mh+4*e,4)}, {v(KR+24*h+8*e,4)}, {v(PQ+8*h+4*mh,4)}, 0")
        p(f"s_lshl_b32 {S.T0}, {S.J}, 12\ns_add_u32 {S.T0}, {S.T0}, {S.OP}\nv_mov_b32 v{T+4}, {F(LOG2E)}")
        for k in range(4): p(f"v_fma_f32 v{T+k}, v{OD+12*k+8}, v{T+4}, {S.C_EPS}")
        for k in range(4): p(f"v_rcp_f32 v{T+k}, v{T+k}")
        for k in range(4):
            d=OD+12*k
            for i in range(8): p(f"v_mul_f32 v{d+i}, v{d+i}, v{T+k}")
            for i in range(4): p(f"v_cvt_pk_bf16_f32 v{d+8+i}, v{d+2*i}, v{d+2*i+1}")
            tk=g.vm(f"buffer_store_dwordx4 {v(d+8,4)}, v{V_L16}, {WS}, {S.T0} offen offset:{k*1024} {SC}")
        g.stamp("p1end")
        def res2acc():
            for k in range(16): p(f"v_lshlrev_b32 v{ACC+2*k}, 16, v{V_RES+k}\nv_and_b32 v{ACC+2*k+1}, 0xffff0000, v{V_RES+k}")
            p(f"s_add_u32 {S.XP}, {S.XP}, {XB}\ns_add_u32 {S.XW}, {S.XW}, {XB}\ns_add_u32 {S.STP}, {S.STP}, 0x40000\ns_mov_b32 {S.ONCE}, {OOB}")
        chk=g.sync_row(tk,1,"p2start",res2acc)
        U=[]
        for t,s in enumerate(s2): U+=g.pair(s,4*t,aN(ACC),False,no)
        g.setkey(U,"o")
        g.stream(U,g.aloads("o",32,S.OP),[],lambda n:0,chk)
        g.stamp("p2mf")
        for k in range(16): p(f"v_cvt_pk_bf16_f32 v{V_RES+k}, v{ACC+2*k}, v{ACC+2*k+1}")
        if not o.get('short'):
            tk=g.publish_x(3); g.stamp("p2end")
            chk=g.sync_row(tk,2,"p3start")
            U=[]
            for t,s in enumerate(s3a):
                if t==14:
                    for b in range(8): U.append(g.ext(4096+256*b,aN(ACC)(b),False,False,"tab3"))
                U+=g.quad(s,2*t,aN(ACC),False,z0)
            nA=len(U)-1
            for b in range(4): U.append(g.ext(4096+2048+256*b,aN(ACC+64)(b),False,True,"tab3"))
            for t,s in enumerate(s3b): U+=g.pair(s,4*t,aN(ACC+64),False,no)
            nB=len(U)-1
            for b in range(2): U.append(g.ext(4096+3072+256*b,aN(ACC+96)(b),False,True,"tab3"))
            nC0=len(U)
            for t,s in enumerate(s3c): U+=g.single(s,8*t,aN(ACC+96),False,no)
            nC=len(U)-1; g.setkey(U,"x3")
            B2R=T+16
            f4=lambda ks,b:(None if ks else (v(B2R+4*b,4) if b<4 else "0"))
            for t,s in enumerate(s4q): U+=g.quad(s,2*t,aN(ACC),False,f4)
            for t,s in enumerate(s4s): U+=g.pair(s,56-L4+4*t,aN(ACC+32),False,no)
            nS=len(U)-1
            for t,s in enumerate(s4k): U+=g.pair(s,56-L4+4*t,aN(ACC),False,no)
            g.setkey(U,"h")
            U[nA+1]["stamp"]="p3b"; U[nC+1]["pre"]="e3"; U[nC+1]["stamp"]="p4start"; U[min(nS+1,len(U)-1)]["stamp"]="p4k"
            lastuse={}
            for n,u in enumerate(U):
                if u["needA"] is not None: lastuse[u["akey"]]=n
            FB=o.get("FB",(2,4,6,7))
            evh=lambda ks:"hf%d"%min(i for i,x in enumerate(FB) if ks//8<x)
            Aq=g.aloads("x3",32,S.XP)+g.aloads("h",56,S.HR,ok=lambda ks:(lambda n:n>=lastuse[("x3",ks) if ks<32 else ("h",ks-32)]),ev=evh)
            side=g.side_stats(True,[("delay",800)])+g.side_table(True,"tab3",[("delay",800)])
            side+=[("i",x) for x in [f"v_and_b32 v{T}, 48, v{V_LANE}",f"v_add_u32 v{T}, {L_B2}, v{T}"]]
            side+=[("i",f"ds_read_b128 {v(B2R+4*b,4)}, v{T} offset:{64*b}") for b in range(4)]
            tk={}; pend=[]
            def tick(lst):
                if pend: lst+=pend.pop(0)
            for b in range(7):
                side.append(("at",(nA if b<4 else nB if b<6 else nC)+1))
                side.append(("i",f"s_add_u32 {S.SOFF}, {S.HW}, {b*16384}"))
                for mh in range(2):
                    Oo=T+8+4*mh; L=V_LC+3*mh
                    for c in range(2):
                        x=[ACC+16*b+8*mh+4*c+i for i in range(4)]; t=[T+i for i in range(4)]; l=[]
                        l+=[f"v_mul_f32 v{t[i]}, v{x[i]}, v{x[i]}" for i in range(4)]
                        l+=[f"v_fma_f32 v{t[i]}, v{t[i]}, v{L+1}, v{L}" for i in range(4)]
                        l+=[f"v_mul_f32 v{t[i]}, v{t[i]}, v{x[i]}" for i in range(4)]
                        l+=[f"v_exp_f32 v{t[i]}, v{t[i]}" for i in range(4)]
                        l+=[f"v_fma_f32 v{t[i]}, v{t[i]}, v{L+2}, v{L+2}" for i in range(4)]
                        l+=[f"v_rcp_f32 v{t[i]}, v{t[i]}" for i in range(4)]
                        l+=[f"v_mul_f32 v{t[i]}, v{t[i]}, v{x[i]}" for i in range(4)]
                        l+=[f"v_cvt_pk_bf16_f32 v{Oo+2*c+i}, v{t[2*i]}, v{t[2*i+1]}" for i in range(2)]
                        side+=[("i",y) for y in l]
                        tick(side)
                    side.append(("fn",lambda b=b,mh=mh,Oo=Oo:tk.__setitem__(b,g.vm(f"buffer_store_dwordx4 {v(Oo,4)}, v{V_L16}, {WS}, {S.SOFF} offen offset:{mh*1024} {SC}"))))
                if b==3: side.append(("ev","e3"))
                if b+1 in FB:
                    i=FB.index(b+1)
                    while pend: side.append(("delay",300)); tick(side)
                    pend=[[],[("fn",lambda b=b,i=i:g.arrive(S.RFH,16+8*i,tk[b]))],[],[("fn",lambda i=i:g.poll_issue(S.RFH,16+8*i))],[],
                          [("fn",lambda i=i:g.poll_check(S.RFH,16+8*i,8,8)),("ev",f"hf{i}")]]
            while pend: side.append(("delay",350)); tick(side)
            side+=[("i",f"s_add_u32 {S.T0}, {S.EXW}, 4096"),("at",nS+1 if L4 else nS)]
            for k in range(8): side.append(("fn",lambda k=k:tk.__setitem__(8,g.vm(f"buffer_store_dwordx4 {v(ACC+32+4*k,4)}, v{V_L16}, {WS}, {S.T0 if k>3 else S.EXW} offen offset:{(k%4)*1024} {SC}"))))
            RS_=ACC+64
            for k in range(16): side+=[("i",f"v_lshlrev_b32 v{RS_+2*k}, 16, v{V_RES+k}"),("i",f"v_and_b32 v{RS_+2*k+1}, 0xffff0000, v{V_RES+k}")]
            side+=[("delay",o.get("exd1",300)),("fn",lambda:g.arrive(S.RFE,64,tk[8])),("delay",o.get("exd2",200)),("fn",lambda:g.poll_issue(S.RFE,64)),
                   ("i",f"s_add_u32 {S.T0}, {S.EXR}, 4096"),("delay",o.get("exd3",450)),("fn",lambda:g.poll_check(S.RFE,64,2,2))]
            for k in range(8): side.append(("vm",f"buffer_load_dwordx4 {v(ACC+32+4*k,4)}, v{V_L16}, {WS}, {S.T0 if k>3 else S.EXR} offen offset:{(k%4)*1024} {SC}"))
            side+=[("at",len(U)-1),("fn",lambda:g.stamp("p4mf"))]
            side+=[("i",f"v_add_f32 v{ACC+k}, v{ACC+k}, v{RS_+k}") for k in range(32)]
            g.bqmark=len(g.slots)
            g.stream(U,Aq,side,lambda n:o['vp0'] if n<=nA else o["vp3"] if n<=nC else o["vp4"] if n<=nS else 4.0,chk)
            for k in range(16):
                p(f"v_add_f32 v{ACC+2*k}, v{ACC+2*k}, v{ACC+32+2*k}\nv_add_f32 v{ACC+2*k+1}, v{ACC+2*k+1}, v{ACC+33+2*k}\nv_cvt_pk_bf16_f32 v{V_RES+k}, v{ACC+2*k}, v{ACC+2*k+1}")
        p(f"s_cmp_eq_u32 {S.IT}, 1\ns_cbranch_scc1 L_final"); saved=(list(g.tsq),g.nts)
        p(f"s_add_u32 {S.XP}, {S.XP}, {XB}\ns_add_u32 {S.XW}, {S.XW}, {XB}\ns_add_u32 {S.STP}, {S.STP}, 0x40000")
        tk=g.publish_x(17); g.stamp("p4end")
        left=(NS+8)*4-g.nextD
        g.pump(max(left-head[0],0)); g.arrive(S.RF,128,tk,True); n0=p.nvm; g.pump(8)
        assert g.nextD==(NS+8)*4
        g.flush_stamps()
        p(f"""s_add_u32 {S.OP}, {S.OP}, {XB}
s_add_u32 {S.HR}, {S.HR}, {16*MB}
s_add_u32 {S.HW}, {S.HW}, {16*MB}
s_add_u32 {S.EXR}, {S.EXR}, {8*MB}
s_add_u32 {S.EXW}, {S.EXW}, {8*MB}
s_add_u32 {S.KV}, {S.KV}, {16*KVS}
s_add_u32 {S.RF}, {S.RF}, 128
s_add_u32 {S.RFH}, {S.RFH}, 128
s_add_u32 {S.RFE}, {S.RFE}, 128
s_add_u32 {S.CF}, {S.CF}, 4
s_mov_b32 {S.IT}, 1
s_mov_b32 {S.ST}, 15""")
        if p.nvm-n0<head[0] or o.get('short'): p.waitall(lg=False)
        else:
            for s in range(8): assert p.nvm-g.dma_t[NS+s][0]>=min(head[1][s],head[0])
        p.wait(vm=max(g.dma_t[NS+s][0] for s in headdone))
        for pat,b in headcur.items():
            if g.cur[pat]!=b:
                p(f"s_sub_u32 {S.TD}, {b}, {g.cur[pat]}")
                for k in range(4): p(f"v_add_u32 v{pat+k}, {S.TD}, v{pat+k}")
        p("s_nop 7\ns_branch L_iter")
        p.raw("L_final:")
        p(f"""v_and_b32 v{T}, 15, v{V_LANE}
v_lshlrev_b32 v{T+1}, 11, v{T}
v_and_b32 v{T+2}, 16, v{V_LANE}
v_lshl_add_u32 v{T+1}, v{T+2}, 1, v{T+1}
v_lshrrev_b32 v{T+2}, 5, v{V_LANE}
v_lshl_add_u32 v{T+1}, v{T+2}, 4, v{T+1}
s_lshl_b32 {S.T0}, {S.MBk}, 16
s_lshl_b32 {S.T1}, {S.J}, 7
s_add_u32 {S.T0}, {S.T0}, {S.T1}
s_add_u32 {S.T1}, {S.T0}, 32768""")
        for k in range(4):
            p(f"v_permlane16_swap_b32 v{V_RES+4*k}, v{V_RES+4*k+2}\nv_permlane16_swap_b32 v{V_RES+4*k+1}, v{V_RES+4*k+3}")
            p(f"buffer_store_dwordx4 {v(V_RES+4*k,4)}, v{T+1}, {TS}, {S.T1 if k&1 else S.T0} offen offset:{64*(k>>1)}")
        g.tsq,g.nts=saved; nn=list(g.names); g.flush_stamps(); g.names=nn
        return g.finish()
    def finish(g):
        p=g.p; p.raw("L_fin:")
        if g.o["prof"]:
            g.tsq=[]; p.waitall(); g.nts=31; g.stamp("end"); g.flush_stamps(); g.names.pop()
            p(f"s_lshl_b32 {S.T0}, s2, 2\ns_add_u32 {S.T0}, {S.T0}, {S.W}\ns_lshl_b32 {S.T0}, {S.T0}, 8\ns_add_u32 {S.T0}, {S.T0}, {WS_TS}\nv_lshlrev_b32 v{V_T}, 2, v{V_LANE}")
            p(f"buffer_store_dword v{V_TS}, v{V_T}, {WS}, {S.T0} offen")
        p.raw("L_abort:\nL_end:\ns_endpgm")
        for s in g.slow: p.raw(s)
        hdr=open("cdna_kernels/"+NAME[:-7]+".s.ref").read().split("; Override")[0]
        hdr+=f"; @launch grid=(256,1,1) block=(256,1,1) lds={LDS_BYTES}\n"
        hdr+=f'.amdgcn_target "amdgcn-amd-amdhsa--gfx950"\n.text\n.globl {NAME}\n.p2align 8\n.type {NAME},@function\n'
        kd=f""".section .rodata,"a"
.p2align 6
.amdhsa_kernel {NAME}
  .amdhsa_next_free_vgpr 512
  .amdhsa_next_free_sgpr 102
  .amdhsa_accum_offset 256
  .amdhsa_group_segment_fixed_size 0
  .amdhsa_kernarg_size 88
  .amdhsa_user_sgpr_count 2
  .amdhsa_user_sgpr_kernarg_segment_ptr 1
  .amdhsa_system_sgpr_workgroup_id_x 1
  .amdhsa_float_denorm_mode_32 3
.end_amdhsa_kernel
"""
        return hdr+p.text()+kd
def make(**o):
    g=Gen(**o); s=g.build(); return s,g
if __name__=="__main__":
    o={}
    for x in sys.argv[2:]:
        k,val=x.split("="); o[k]=eval(val)
    s,g=make(**o); open(sys.argv[1],"w").write(s)
    print("bytes",len(s),"lines",s.count("\n"),"nops",g.p.nops,"autowaits",g.p.autow,"est cyc",g.t,"forced",g.forced, "sgpr",S_NEXT)
```

```python
import re
TRANS=("v_exp_f32","v_log_f32","v_rcp_f32","v_rsq_f32","v_sqrt_f32","v_sin_f32","v_cos_f32")
_rx=re.compile(r"^(-|abs\()?([vas])(?:(\d+)|\[(\d+):(\d+)\])\)?$")
def regs(op):
    op=op.strip()
    if op in("vcc","exec","m0","scc"): return [op]
    if op in("vcc_lo","vcc_hi"): return ["vcc"]
    if op in("exec_lo","exec_hi"): return ["exec"]
    m=_rx.match(op)
    if not m: return []
    k=m.group(2)
    if m.group(3) is not None: return [(k,int(m.group(3)))]
    return [(k,i) for i in range(int(m.group(4)),int(m.group(5))+1)]
class I:
    __slots__=("text","op","kind","rd","wr","srcs","states","wide","lds")
    def __init__(s,text):
        s.text=text; p=text.split(None,1); s.op=p[0]; rest=p[1] if len(p)>1 else ""
        ops=[]
        for x in rest.split(","):
            x=x.strip()
            if x: ops.append(x.split()[0])
        op=s.op; s.states=1; s.wide=False; s.lds=False; s.srcs=[]
        R=lambda l:[r for o in l for r in regs(o)]
        if op.endswith(":") or op.startswith("."): s.kind="label"; s.rd=[]; s.wr=[]; s.states=0
        elif op=="s_nop": s.kind="nop"; s.rd=[]; s.wr=[]; s.states=int(ops[0])+1
        elif op.startswith("v_mfma"):
            s.kind="mfma"; s.wr=R(ops[:1]); s.srcs=[regs(o) for o in ops[1:4]]; s.rd=R(ops[1:4])
        elif op.startswith("buffer_load"):
            s.kind="vmem"; s.lds=(" lds" in text)
            if s.lds: s.wr=[]; s.rd=R(ops)+["m0"]
            else: s.wr=R(ops[:1]); s.rd=R(ops[1:])
        elif op.startswith("global_load"):
            s.kind="vmem"; s.lds=("_lds_" in op)
            if s.lds: s.wr=[]; s.rd=R(ops)+["m0"]
            else: s.wr=R(ops[:1]); s.rd=R(ops[1:])
        elif op.startswith("buffer_store") or op.startswith("buffer_atomic"):
            s.kind="vmem"; s.wr=[]; s.rd=R(ops); s.wide=op.endswith("x4") or op.endswith("x3"); s.srcs=[regs(ops[0])]
            if op.startswith("buffer_atomic") and " sc0" in text: s.wr=R(ops[:1])
        elif op.startswith("ds_read") or op.startswith("ds_bpermute"):
            s.kind="ds"; s.wr=R(ops[:1]); s.rd=R(ops[1:])
        elif op.startswith("ds_write"): s.kind="ds"; s.wr=[]; s.rd=R(ops)
        elif op.startswith("v_"):
            s.kind="valu"
            if op.startswith("v_permlane"): s.wr=R(ops[:2]); s.rd=R(ops[:2])
            elif op.startswith("v_writelane") or op.startswith("v_fmac") or op.startswith("v_dot2c"): s.wr=R(ops[:1]); s.rd=R(ops)
            elif op.endswith("_dpp"): s.wr=R(ops[:1]); s.rd=R(ops)
            else: s.wr=R(ops[:1]); s.rd=R(ops[1:])
            s.srcs=[regs(o) for o in ops[1:]]
        elif op.startswith("s_"):
            s.kind="salu"
            if op in("s_waitcnt","s_barrier","s_sleep","s_endpgm","s_setprio","s_branch") : s.rd=[]; s.wr=[]
            elif op.startswith("s_cbranch"): s.rd=["vcc"] if "vcc" in op else []; s.wr=[]
            elif op.startswith(("s_cmp","s_bitcmp")): s.rd=R(ops); s.wr=[]
            elif op.startswith("s_load") or op.startswith("s_mem"): s.kind="smem"; s.wr=R(ops[:1]); s.rd=R(ops[1:])
            else: s.wr=R(ops[:1]); s.rd=R(ops[1:])
        else: raise ValueError(text)
def isv(r): return isinstance(r,tuple) and r[0] in "va"
def iss(r): return r=="vcc" or (isinstance(r,tuple) and r[0]=="s")
def need(p,c):
    n=0; pw=set(p.wr); crd=set(c.rd); cwr=set(c.wr)
    if p.kind=="mfma":
        pas=4 if "16x16x32" in p.op else 8
        if c.kind=="mfma":
            if pw&(set(c.srcs[0])|set(c.srcs[1])): n=max(n,pas+4)
            if pw&set(c.srcs[2]) and p.wr!=c.srcs[2]: n=max(n,pas+2)
            if pw&cwr and p.wr!=c.srcs[2]: n=max(n,pas+2)
        elif c.kind in("valu","vmem","ds"):
            if pw&(crd|cwr): n=max(n,pas+4)
            if set(p.srcs[2])&cwr: n=max(n,pas-1)
    elif p.kind=="valu":
        wv={r for r in pw if isv(r)}; ws={r for r in pw if iss(r)}
        if c.kind=="mfma" and wv&crd: n=max(n,3 if p.op.startswith("v_dot2") else 2)
        if c.kind=="valu":
            if wv&crd:
                if c.op.startswith("v_permlane") or c.op.endswith("_dpp"): n=max(n,2)
                if c.op.startswith("v_readlane") or c.op.startswith("v_readfirstlane"): n=max(n,1)
                if p.op in TRANS or "op_sel" in p.text or "sdwa" in p.op: n=max(n,1)
            if p.op.startswith("v_dot2") and wv&(crd|cwr):
                if c.op!=p.op or wv&(set(c.srcs[0])|set(c.srcs[1])): n=max(n,3)
            if ws&crd: n=max(n,4 if c.op.startswith(("v_readlane","v_writelane")) else 2)
        if c.kind in("vmem","ds") and p.op.startswith("v_dot2") and wv&crd: n=max(n,3)
        if c.kind in("vmem","ds") and p.op in TRANS and wv&crd: n=max(n,1)
        if c.kind=="vmem" and ws&crd: n=max(n,5)
        if c.kind in("salu","smem") and ws&crd: n=max(n,1)
    elif p.kind=="salu":
        if "m0" in pw and "m0" in crd and c.kind in("vmem","valu"): n=max(n,1)
    elif p.kind=="vmem":
        if p.wide and set(p.srcs[0])&cwr: n=max(n,2)
    return n
class Prog:
    def __init__(s):
        s.out=[]; s.hist=[]; s.nvm=0; s.nlg=0; s.vmdone=0; s.lgdone=0; s.pvm={}; s.plg={}; s.nops=0; s.cyc=0; s.autow=0
    def raw(s,text): s.out.append(text)
    def _put(s,i):
        s.out.append(i.text)
        if i.states: s.hist.append(i); s.hist=s.hist[-24:]
        s.cyc+= 8 if (i.kind=="mfma" or i.op in TRANS or i.op.startswith("global_")) else 12 if i.kind=="vmem" else 4*i.states
    def wait(s,vm=None,lg=None):
        parts=[]
        if vm is not None and vm>s.vmdone:
            n=min(s.nvm-vm,63); parts.append(f"vmcnt({n})"); s.vmdone=s.nvm-n
        if lg is not None and lg>s.lgdone:
            n=min(s.nlg-lg,15); parts.append(f"lgkmcnt({n})"); s.lgdone=s.nlg-n
        if parts: s._put(I("s_waitcnt "+" ".join(parts)))
        return bool(parts)
    def waitall(s,vm=True,lg=True):
        p=[]
        if vm: p.append("vmcnt(0)"); s.vmdone=s.nvm
        if lg: p.append("lgkmcnt(0)"); s.lgdone=s.nlg
        s._put(I("s_waitcnt "+" ".join(p)))
    def __call__(s,text):
        t=None
        for l in text.split("\n"):
            l=l.split(";")[0].strip()
            if l: t=s.one(l)
        return t
    def prep(s,text):
        s.one(text,True)
    def one(s,text,dry=False):
        i=I(text)
        touched=list(i.rd)+list(i.wr)
        vm=max([s.pvm.get(r,0) for r in touched]+[0]); lg=max([s.plg.get(r,0) for r in touched]+[0])
        if s.wait(vm or None,lg or None): s.autow+=1
        d=0; k=0
        for p in reversed(s.hist):
            k=max(k,need(p,i)-d); d+=p.states
            if d>=14: break
        if k>0: s.nops+=k; s._put(I(f"s_nop {k-1}"))
        if dry: return
        s._put(i)
        if i.kind=="vmem":
            s.nvm+=1
            for r in i.wr: s.pvm[r]=s.nvm
            return s.nvm
        if i.kind=="ds":
            s.nlg+=1
            for r in i.wr: s.plg[r]=s.nlg
            return s.nlg
    def text(s): return "\n".join(s.out)+"\n"
```

```python
import sys, math, struct
from ir import *
NAME="interleave_layers__linear_attn_block__dense_activation_gelu__prompt_kernel"
def f2u(x): return struct.unpack("<I",struct.pack("<f",x))[0]
def F(x): return hex(f2u(x))
LOG2E=1.4426950408889634; LN2=0.6931471805599453
MB=1<<20
WS_ROWF=0; WS_COLF=16384; WS_CSQ=0x40000; WS_CS1=0x80000; WS_KV=0xc0000; WS_ST=0x140000; WS_TS=0x240000
WS_X=3*MB; XB=4*MB+0x40000; WS_O=WS_X+4*XB; WS_EX=30*MB; WS_H=38*MB; HB=15*MB; WS_WT=68*MB
KVS=8704; WTS=88*16384+2048
OOB=0x40000000
L_SCR=131072; L_EXT1=147456; L_EXT3=L_EXT1+4096; L_B2=L_EXT3+4096; LDS_BYTES=L_B2+256
RQ,R2,R1=6144,2048,7168
class S: pass
_s=["I","J","W","MBk","PAR","IT","T0","T1","T2","T3","LDSW","SOFF","STG","TO",
    "XP","OP","HR","HW","XW","STP","KV","EXW","EXR","RF","RFW","ST","CF","CT","RC","RCE","C_EPS","C_LN2"]
for n,x in enumerate(_s): setattr(S,x,f"s{32+n}")
assert len(_s)<=32
SM='s[100:101]'
S_TAB=64
WQ,WO,W1,W2,WS,TS,B1="s[4:7]","s[8:11]","s[12:15]","s[16:19]","s[20:23]","s[24:27]","s[28:31]"
WSP="s[20:21]"
V_L16,V_ONE,V_FALL,V_STAT,V_WP,V_A,V_RD,_,V_EXT,V_FLG,V_TS,V_LANE,V_FPAR,V_FPN=range(14)
V_WF=16; V_RES=48; V_XE=64; V_LC=72; V_ACC=80; V_T=208
def icost(t):
    c=0
    for l in t.split("\n"):
        op=l.split()[0]
        c+=8 if (op in TRANS or op.startswith(("v_mfma","global_"))) else 12 if op.startswith("buffer_") else 4
    return c
def v(a,n=1): return f"v{a}" if n==1 else f"v[{a}:{a+n-1}]"
def a_(a,n=4): return f"a[{a}:{a+n-1}]"
MF="v_mfma_f32_16x16x32_bf16"
SC="sc1"
NSL=88
def ins(l): return [("i",x) for x in l]

class Gen:
    def __init__(g,**o):
        g.o=dict(D=7,WE=4,L1=12,LQ=8,L2=4,L4=20,LK=0,G3=(4,2,1),FB=(2,4,6,7),tlb=False,hsc='sc1',HBT=2,xm=4,STC=120,STG=200,DEPTH=400,LOW=150,LEAD=24,FULL=520,URG=48,COST=70,prof=False,
                 vp0=1.0,vp1=4.0,vp3=3.3,vp4=3,SK=512,pu1=6,pu2=6,kvd1=1500,kvd2=400,kvd3=600,exd1=600,exd2=150,exd3=600,exd4=500,pre0=20)
        g.o.update(o); g.p=Prog(); g.slow=[]; g.nlab=0; g.tsq=[]; g.names=[]
        g.dma_t={}; g.lastrd={}; g.ready=set(); g.released=set(); g.nextD=0; g.maxD=(NSL+32)*4; g.t=0; g.free_at=0; g.ev=set()
        g.nu=0; g.pos={}; g.nunit=0; g.forced=0; g.m0dirty=False
    def stamp(g,name,now=False):
        if not g.o["prof"]: return
        fine=g.o.get("fine")
        if fine and not(name[0]=="u" or name.endswith("start") and name!="p4start" or name in("end","p2mf")): return
        r=S_TAB+6 if now else S_TAB+2*len(g.tsq); assert r+1<100
        g.p(f"{'s_memtime' if g.o['prof']=='cy' else 's_memrealtime'} s[{r}:{r+1}]"); g.tsq.append((name,r))
        if now: g.flush_stamps()
    def flush_stamps(g):
        if not g.o["prof"] or not g.tsq: return
        p=g.p; p.waitall(vm=False)
        for name,r in g.tsq:
            if name not in g.names: g.names.append(name)
            k=31 if name=="end" else g.names.index(name); assert k<31 or name=="end"
            p(f"s_lshl_b32 m0, {S.IT}, 5\ns_add_u32 m0, m0, {k}\nv_writelane_b32 v{V_TS}, s{r}, m0")
        g.tsq=[]; g.m0dirty=True
    def vm(g,text,cost=None):
        t=g.p(text); c=g.o["COST"] if cost is None else cost
        g.t=max(g.t,g.free_at-g.o["FULL"])
        g.free_at=max(g.free_at,g.t)+c; return t
    def barrier(g):
        p=g.p; p("s_barrier")
        for s,t in g.lastrd.items():
            if t<=p.lgdone: g.released.add(s)
        for s,(t,n) in g.dma_t.items():
            if n==4 and t<=p.vmdone: g.ready.add(s)
    def dma_ok(g):
        s=g.nextD//4
        return g.nextD<g.maxD and (s<8 or (s-8) in g.released)
    def dma_ops(g):
        s,q=divmod(g.nextD,4); g.nextD+=1; p=g.p; ops=[]
        I_=lambda t:ops.append((4,lambda:p(t)))
        if q==0 or g.m0dirty: I_(f"s_add_u32 m0, {S.LDSW}, {(s%8)*16384}")
        if q==0 and s: I_(f"v_add_u32 v{V_WP}, {16384 if s!=NSL else hex((16384*(1-NSL))&0xffffffff)}, v{V_WP}")
        g.m0dirty=False
        def go(): g.dma_t[s]=(g.vm(f"global_load_lds_dwordx4 v{V_WP}, {WSP} offset:{q*1024} {SC}"),q+1)
        ops.append((8,go)); return ops
    def dma(g):
        for c,f in g.dma_ops(): f()
    def pump(g,n):
        while n>0 and g.dma_ok(): g.dma(); n-=1
    def arrive(g,soff,off,ticket,ret=False,val="1"):
        p=g.p; p(f"v_mov_b32 v{V_FLG}, {val}"); p.wait(vm=ticket)
        g.vm(f"buffer_atomic_add v{V_FLG}, v{V_ONE}, {WS}, {soff} offen offset:{off} {'sc0 ' if ret else ''}sc1",8)
    def poll_issue(g,soff,off):
        g.p(f"v_mov_b32 v{V_FLG}, 0"); g.vm(f"buffer_atomic_add v{V_FLG}, v{V_ONE}, {WS}, {soff} offen offset:{off} sc0 sc1",8)
    def poll_check(g,soff,off,first,target,bit=False):
        p=g.p; n=g.nlab; g.nlab+=1
        p(f"v_readfirstlane_b32 {S.STG}, v{V_FLG}"); p(f"{'s_bitcmp0_b32' if bit else 's_cmp_lt_u32'} {S.STG}, {first}\ns_cbranch_scc1 L_slow{n}"); p.raw(f"L_back{n}:")
        g.slow.append(f"""L_slow{n}:
v_mov_b32 v{V_FLG}, 0
buffer_atomic_add v{V_FLG}, v{V_ONE}, {WS}, {soff} offen offset:{off} sc0 sc1
s_sub_u32 {S.TO}, {S.TO}, 1
s_cbranch_scc1 L_abort
s_waitcnt vmcnt(0)
v_readfirstlane_b32 {S.STG}, v{V_FLG}
s_nop 0
{'s_bitcmp0_b32' if bit else 's_cmp_lt_u32'} {S.STG}, {target}
s_cbranch_scc1 L_slow{n}
s_branch L_back{n}""")
    def gstore(g,l,cost=None):
        if g.o["xm"]==2: return g.hstore(l,cost)
        for x in l: t=g.vm(x+" sc1",g.o["STG"] if cost is None else cost)
        return t
    def hstore(g,l,cost=None):
        p=g.p; n=g.nlab; g.nlab+=1; n0=len(p.out)
        for x in l: p.prep(x)
        p(f"s_cbranch_vccnz L_alt{n}"); n0=len(p.out)
        for x in l: t=g.vm(x,g.o["STC"] if cost is None else cost)
        assert len(p.out)-n0==len(l)
        p.raw(f"L_bk{n}:"); g.slow.append(f"L_alt{n}:\n"+"".join(f"{x} sc1\n" for x in l)+f"s_branch L_bk{n}")
        return t
    def flag(g,k,ticket):
        p=g.p; p(f"s_add_u32 {S.STG}, {S.ST}, {k}\nv_mov_b32 v{V_FLG}, {S.STG}"); p.wait(vm=ticket)
        g.hstore([f"buffer_store_dword v{V_FLG}, v{V_ONE}, {WS}, {S.RFW} offen"],8)
    def fpoll(g,vo): g.vm(f"buffer_load_dword v{V_FLG}, v{vo}, {WS}, {S.RF} offen offset:128 {SC}",8)
    def fcheck(g,vo,k):
        p=g.p; n=g.nlab; g.nlab+=1
        p(f"s_add_u32 {S.STG}, {S.ST}, {k}\nv_cmp_gt_u32 {SM}, {S.STG}, v{V_FLG}"); p(f"s_cmp_lg_u64 {SM}, 0\ns_cbranch_scc1 L_slow{n}"); p.raw(f"L_back{n}:")
        if g.o["hsc"]!=SC:
            p(f"s_cbranch_vccnz L_inv{n}"); p.raw(f"L_binv{n}:"); g.slow.append(f"L_inv{n}:\nbuffer_inv sc1\ns_waitcnt vmcnt(0)\ns_branch L_binv{n}")
        g.slow.append(f"""L_slow{n}:
buffer_load_dword v{V_FLG}, v{vo}, {WS}, {S.RF} offen offset:128 {SC}
s_sub_u32 {S.TO}, {S.TO}, 1
s_cbranch_scc1 L_abort
s_waitcnt vmcnt(0)
v_cmp_gt_u32 {SM}, {S.STG}, v{V_FLG}
s_nop 0
s_cmp_lg_u64 {SM}, 0
s_cbranch_scc1 L_slow{n}
s_branch L_back{n}""")
    def units(g,mat,key,kss,nbs,accf,tr=False,first=lambda ks,nb:None):
        U=[]
        for ks in kss:
            for nb in nbs:
                u=g.nu; g.nu+=1
                assert g.pos.setdefault((mat,ks,nb),u%(NSL*16))==u%(NSL*16)
                U.append(dict(slot=u//16,rd=(V_RD+(u%128)//64,(u%64)*1024),x=[a_(8*(ks%32)),a_(8*(ks%32)+4)],acc=accf(nb),tr=tr,first=first(ks,nb),akey=(key,ks)))
        return U
    def ext(g,off,accs,tr,first,ev):
        return dict(slot=None,rd=(V_EXT,off),x=[v(V_XE,4),v(V_XE+4,4)],acc=accs,tr=tr,first="0" if first else None,akey=None,ev=ev)
    def stream(g,U,Aq,side,vpu,sync,burst=8,lat=550):
        p=g.p; D=g.o["D"]; WE=g.o["WE"]; NF=D+1; N=len(U); base=g.nunit
        firstuse={}; lastu={}; firstu={}
        for n,u in enumerate(U):
            if u["akey"]: firstuse.setdefault(u["akey"],n)
            if u["slot"] is not None: lastu[u["slot"]]=n; firstu.setdefault(u["slot"],n)
        At={}; rd_t={}; st=dict(n=-1,dl=1e9); mq=[]
        def side_peek(force=False):
            while side:
                it=side[0]
                if it[0]=="at":
                    if st["n"]<it[1]:
                        assert not force,("forced past at",it,st["n"]); return None
                elif it[0]=="delay":
                    if len(it)==2: side[0]=it=("delay",it[1],g.t+it[1])
                    if g.t<it[2] and not force: return None
                elif it[0]=="ev": g.ev.add(it[1])
                else:
                    if it[0]=="vm" and not force and g.free_at-g.t>g.o["DEPTH"]+100: return None
                    return 8 if it[0]=="fn" else icost(it[1])
                side.pop(0)
            return None
        def side_emit():
            it=side.pop(0)
            if it[0]=="fn": it[1]()
            elif it[0]=="vm": g.vm(it[1],it[2] if len(it)>2 else None)
            else: p(it[1])
        def until(ev):
            while True:
                while side and side[0][0]=="ev": g.ev.add(side.pop(0)[1])
                if ev in g.ev: return
                g.forced+=1
                if side[0][0] in("at","delay"):
                    assert side[0][0]=="delay" or st["n"]>=side[0][1],("forced past at",side[0],st["n"]); side.pop(0)
                else: side_emit()
        def flush():
            while mq: mq.pop(0)[1]()
        def nextA():
            x=Aq.pop(0); return x["ops"](At)
        def A_ok(): return Aq and Aq[0]["ok"](st["n"]) and (Aq[0].get("ev") is None or Aq[0]["ev"] in g.ev)
        def refill(force=False):
            if mq: return
            da=firstuse.get(Aq[0]["id"][:2],1e8) if A_ok() else None
            dd=(firstu.get(g.nextD//4,1e9)-D-WE) if g.dma_ok() else None
            if da is None and dd is None: return
            dl=min(x for x in(da,dd) if x is not None)
            if not force and g.free_at-g.t>g.o["DEPTH"] and dl-st["n"]>g.o["LEAD"]: return
            st["dl"]=dl
            mq.extend(nextA() if dd is None or (da is not None and da<=dd) else g.dma_ops())
        def rd(n):
            u=U[n]; r=V_WF+4*(n%NF); s=u["slot"]
            if s is None: until(u["ev"])
            elif firstu[s]==n:
                if g.dma_t.get(s,(0,0))[1]<4:
                    flush(); g.forced+=1
                    while g.nextD<4*(s+1):
                        if not g.dma_ok(): p.waitall(vm=False); g.barrier()
                        g.dma()
                if s not in g.ready: p.wait(vm=g.dma_t[s][0])
                g.barrier(); assert s in g.ready
            rd_t[n]=p(f"ds_read_b128 {v(r,4)}, v{u['rd'][0]} offset:{u['rd'][1]}")
            if s is not None and lastu[s]==n: g.lastrd[s]=rd_t[n]
        cr=dict(c=0.0)
        def peek():
            refill()
            if mq: return mq[0][0]
            return side_peek()
        def emit():
            if mq: mq.pop(0)[1]()
            else: cr["c"]-=side_peek(); side_emit()
        early=U[0]["slot"] in g.ready or g.dma_t.get(U[0]["slot"],(1e9,0))[0]<=p.vmdone
        if early:
            for n in range(D): rd(n)
        sync()
        for _ in range(burst): refill(True); flush()
        for _ in range(40):
            if side_peek() is None: break
            side_emit()
        if not early:
            for n in range(D): rd(n)
        g.t+=lat
        for n,u in enumerate(U):
            c0=p.cyc; r=V_WF+4*(n%NF)
            if u.get("pre"): until(u["pre"])
            if u.get("stamp"): g.stamp(u["stamp"])
            fine=g.o.get("fine")
            if fine and fine[0]<=base+n<fine[0]+fine[2]*fine[1] and (base+n-fine[0])%fine[1]==0: g.stamp(f"u{base+n}_{g.t}_{p.nvm}")
            tv=None
            for m in range(n,min(N,n+WE-n%WE)):
                w=U[m]
                if w["akey"] and firstuse[w["akey"]]==m:
                    k=w["akey"]+(1,)
                    if m==n and k not in At:
                        flush(); g.forced+=1
                        while k not in At:
                            if Aq[0].get("ev"): until(Aq[0]["ev"])
                            assert Aq[0]["ok"](st["n"]); mq.extend(nextA()); flush()
                    if k in At and (m==n or n%WE==0): tv=At[k]
            if n%WE==0:
                for m in range(n+D,min(N,n+D+WE)):
                    s=U[m]["slot"]
                    if s is not None and firstu[s]==m and g.dma_t.get(s,(0,0))[1]==4: tv=max(tv or 0,g.dma_t[s][0])
            p.wait(vm=tv,lg=rd_t.get(min(n+WE-1-(n%WE),N-1,n+D-1)))
            cr["c"]=max(min(cr["c"],16),-8)+4*vpu(n)
            def mf(mh):
                acc=v(u["acc"][mh],4); c=u["first"] or acc; w=v(r,4); x=u["x"][mh]
                p(f"{MF} {acc}, {x}, {w}, {c}" if u["tr"] else f"{MF} {acc}, {w}, {x}, {c}")
            wnext=4 if (n+1)%WE==0 else 0
            mf(0); c1=p.cyc; r1=n+D<N
            c=peek()
            if r1 and not(c==8 and wnext): rd(n+D); r1=False
            while True:
                c=peek()
                if c is not None and c<=8-(p.cyc-c1): emit()
                else: break
            mf(1); st["n"]=n; c1=p.cyc
            if r1: rd(n+D)
            while True:
                c=peek()
                if c is None: break
                if c<=8-wnext-(p.cyc-c1) or (mq and (g.free_at-g.t<g.o["LOW"] and st["dl"]-n<g.o["URG"] or st["dl"]-n<g.o["LEAD"]-4)): emit(); continue
                break
            while True:
                c=side_peek()
                if c is None or cr["c"]<c: break
                cr["c"]-=c; side_emit()
            g.t+=max(32,p.cyc-c0)
        g.nunit+=N; flush(); assert not Aq
        p.waitall(vm=False); g.barrier()
        st["n"]=1e9
        while side_peek(True) is not None:
            c0=p.cyc; side_emit(); g.t+=p.cyc-c0
    def aloads(g,key,nks,sbase,ok=lambda ks:(lambda n:True),ev=lambda ks:None,sc=SC):
        q=[]; p=g.p
        for ks in range(nks):
            for mh in range(2):
                f=2*ks+mh
                def ops(At,f=f,ks=ks,mh=mh):
                    l=[]
                    if f==0: l.append((4,lambda:p(f"v_add_u32 v{V_A}, {sbase}, v{V_L16}")))
                    elif f%8==0: l.append((4,lambda:p(f"v_add_u32 v{V_A}, 8192, v{V_A}")))
                    l.append((8,lambda:At.__setitem__((key,ks,mh),g.vm(f"global_load_dwordx4 {a_(8*(ks%32)+4*mh)}, v{V_A}, {WSP} offset:{(f%8)*1024-4096} {sc}"))))
                    return l
                q.append(dict(id=(key,ks,mh),ops=ops,ok=ok(ks),ev=ev(ks)))
        return q
    def red4(g,a,b,c,d):
        return [f"v_permlane32_swap_b32 v{a}, v{c}",f"v_permlane32_swap_b32 v{b}, v{d}",f"v_add_f32 v{a}, v{a}, v{c}",f"v_add_f32 v{b}, v{b}, v{d}",
                f"v_permlane16_swap_b32 v{a}, v{b}",f"v_add_f32 v{a}, v{a}, v{b}"]
    def pub_half(g,k2):
        T=V_T; s=[]
        s.append(("fn",lambda:g.gstore([f"buffer_store_dwordx4 {v(V_RES+8*k2+4*mh,4)}, v{V_L16}, {WS}, {S.XW} offen offset:{(2*k2+mh)*1024}" for mh in range(2)])))
        if k2==0: s.append(("i",f"v_mov_b32 v{T+4}, 0x3f803f80"))
        for i in range(4):
            for mh in range(2):
                r=V_RES+8*k2+4*mh+i; z=(i==0 and k2==0)
                s+=ins([f"v_dot2_f32_bf16 v{T+2*mh}, v{r}, v{T+4}, {'0' if z else v(T+2*mh)}",f"v_dot2_f32_bf16 v{T+2*mh+1}, v{r}, v{r}, {'0' if z else v(T+2*mh+1)}"])
        return s
    def pub_end(g):
        p=g.p; T=V_T
        p(f"s_lshl_b32 {S.T0}, {S.J}, 8\ns_add_u32 {S.T0}, {S.T0}, {S.STP}")
        for x in g.red4(T,T+1,T+2,T+3): p(x)
        return g.gstore([f"buffer_store_dword v{T}, v{V_STAT}, {WS}, {S.T0} offen"],16)
    def sync_row(g,ticket,off,name,pre=None,upto=None):
        n1,n2=g.o["pu1"],g.o["pu2"]
        if upto is not None: n1=max(upto-g.nextD-n2,0)
        loc=g.o["xm"]==2; co={1:8,2:12,16:64}[off]
        g.pump(n1)
        if loc: g.flag(off,ticket); g.fpoll(V_FALL)
        else: g.arrive(S.RC,co,ticket,True)
        g.pump(n2)
        if pre: pre()
        g.flush_stamps()
        def chk():
            if loc: g.fcheck(V_FALL,off&15)
            else: g.poll_check(S.RC,co&63,15,16)
            g.t+=1200; g.free_at=g.t; g.stamp(name)
        return chk
    def side_stats(g,p3,mid):
        T=V_T; s=[]
        for t in range(4): s.append(("vm",f"buffer_load_dwordx4 {v(T+4*t,4)}, v{V_L16}, {WS}, {S.STP} offen offset:{t*1024} {SC}"))
        s+=mid; o=[]
        for c in range(4): o+=[f"v_add_f32 v{T+c}, v{T+c}, v{T+4+c}",f"v_add_f32 v{T+8+c}, v{T+8+c}, v{T+12+c}"]
        for c in range(4): o+=[f"v_add_f32 v{T+c}, v{T+c}, v{T+8+c}"]
        for sw in("32","16"):
            for c in range(4): o+=[f"v_mov_b32 v{T+4+c}, v{T+c}"]
            for c in range(4): o+=[f"v_permlane{sw}_swap_b32 v{T+c}, v{T+4+c}"]
            for c in range(4): o+=[f"v_add_f32 v{T+c}, v{T+c}, v{T+4+c}"]
        for mh in range(2): o+=[f"v_mul_f32 v{T+2*mh}, {F(-1/1024)}, v{T+2*mh}",f"v_mul_f32 v{T+2*mh+1}, {F(1/1024)}, v{T+2*mh+1}"]
        for mh in range(2): o+=[f"v_fma_f32 v{T+2*mh+1}, -v{T+2*mh}, v{T+2*mh}, v{T+2*mh+1}"]
        for mh in range(2): o+=[f"v_max_f32 v{T+2*mh+1}, 0, v{T+2*mh+1}"]
        for mh in range(2): o+=[f"v_add_f32 v{T+2*mh+1}, {F(1e-5)}, v{T+2*mh+1}"]
        for mh in range(2): o+=[f"v_rsq_f32 v{T+4+mh}, v{T+2*mh+1}"]
        o+=[f"s_mov_b64 {SM}, 0xffff"]
        for mh in range(2): o+=[f"v_mul_f32 v{T+2*mh+1}, v{T+2*mh+1}, v{T+4+mh}"]
        for mh in range(2):
            m,sg,X=T+2*mh,T+2*mh+1,V_XE+4*mh
            o+=[f"v_cvt_pk_bf16_f32 v{T+6}, v{m}, v{m}",f"v_cvt_pk_bf16_f32 v{T+7}, v{sg}, v{sg}",
                f"v_lshlrev_b32 v{T+8}, 16, v{T+6}",f"v_lshlrev_b32 v{T+9}, 16, v{T+7}",
                f"v_sub_f32 v{T+8}, v{m}, v{T+8}",f"v_sub_f32 v{T+9}, v{sg}, v{T+9}",
                f"v_cvt_pk_bf16_f32 v{T+8}, v{T+8}, v{sg}",f"v_cvt_pk_bf16_f32 v{T+9}, v{T+9}, 0",
                f"v_cndmask_b32 v{X}, 0, v{T+6}, {SM}",f"v_cndmask_b32 v{X+1}, 0, v{T+8}, {SM}",f"v_cndmask_b32 v{X+2}, 0, v{T+9}, {SM}"]
        if p3:
            c0=-2*math.sqrt(2/math.pi)*LOG2E
            for mh in range(2):
                r=T+4+mh; L=V_LC+3*mh
                o+=[f"v_mul_f32 v{L}, {F(c0)}, v{r}",f"v_mul_f32 v{T+6}, v{r}, v{r}",f"v_mov_b32 v{L+2}, v{T+2*mh+1}",
                    f"v_mul_f32 v{T+6}, {F(0.044715)}, v{T+6}",f"v_mul_f32 v{L+1}, v{T+6}, v{L}"]
        else:
            for mh in range(2): o+=[f"v_mul_f32 v{T+46+mh}, {F(LOG2E)}, v{T+4+mh}"]
            o+=[f"v_and_b32 v{T+6}, 48, v{V_LANE}"]
            for mh in range(2):
                for r in range(4): o+=[f"ds_bpermute_b32 v{V_LC+4*mh+r}, v{T+6}, v{T+46+mh} offset:{4*r}"]
        return s+ins(o)
    def table_load(g,p3,T):
        s=ins([f"v_lshrrev_b32 v{T+16}, 4, v{V_LANE}",f"v_lshlrev_b32 v{T+18}, 14, v{T+16}",f"v_lshl_add_u32 v{T+18}, v{V_FALL}, 2, v{T+18}",f"v_add_u32 v{T+17}, v{V_FALL}, v{T+16}",
               f"s_lshl_b32 {S.T2}, {S.J}, 2",f"s_add_u32 {S.T2}, {S.T2}, {S.W}",f"s_lshl_b32 {S.T2}, {S.T2}, 8",f"s_add_u32 {S.T2}, {S.T2}, {WS_CS1 if p3 else WS_CSQ}"])
        for t in range(4):
            s.append(("vm",f"buffer_load_dwordx4 {v(T+4*t,4)}, v{T+18}, {WS}, {S.T2} offen {SC}"))
            if t<3: s.append(("i",f"s_add_u32 {S.T2}, {S.T2}, 65536"))
        if p3:
            s+=ins([f"v_lshlrev_b32 v{T+18}, 1, v{T+17}",f"s_lshl_b32 {S.T3}, {S.PAR}, 6",f"s_lshl_b32 {S.T2}, {S.W}, 7",f"s_add_u32 {S.T2}, {S.T2}, {S.T3}",
                    f"s_cmp_eq_u32 {S.T2}, 448\ns_cselect_b32 {S.T2}, -64, {S.T2}\ns_cselect_b32 {S.T3}, 32, 0",f"v_xor_b32 v{T+17}, {S.T3}, v{T+17}",
                    f"s_mul_i32 {S.T3}, {S.J}, 448",f"s_add_u32 {S.T2}, {S.T2}, {S.T3}"])
            s.append(("vm",f"buffer_load_ushort v{T+19}, v{T+18}, {B1}, {S.T2} offen",16))
        return s
    def table_make(g,p3,T,tk):
        o=[]
        for c in range(4): o+=[f"v_add_f32 v{T+c}, v{T+c}, v{T+4+c}",f"v_add_f32 v{T+8+c}, v{T+8+c}, v{T+12+c}"]
        for c in range(4): o+=[f"v_add_f32 v{T+c}, v{T+c}, v{T+8+c}"]
        o+=g.red4(T,T+1,T+2,T+3)
        o+=[f"v_cvt_pk_bf16_f32 v{T+5}, v{T}, 0",f"s_lshl_b32 {S.T2}, {S.W}, 10",f"v_lshlrev_b32 v{T+8}, 16, v{T+5}",f"v_sub_f32 v{T+8}, v{T}, v{T+8}",
            f"v_cvt_pk_bf16_f32 v{T+4}, v{T}, v{T+8}",f"s_add_u32 {S.T2}, {S.T2}, {L_EXT3 if p3 else L_EXT1}",f"v_mov_b32 v{T+7}, 0"]
        if p3: o+=[f"v_lshl_add_u32 v{T+5}, v{T+19}, 16, v{T+5}",f"v_mov_b32 v{T+6}, v{T+19}"]
        else: o+=[f"v_mov_b32 v{T+6}, 0"]
        o+=[f"v_lshl_add_u32 v{T+17}, v{T+17}, 4, {S.T2}"]
        return ins(o)+[("fn",lambda:tk.__setitem__("t",g.p(f"ds_write_b128 v{T+17}, {v(T+4,4)}")))]
    def run_list(g,l):
        for it in l:
            if it[0]=="i": g.p(it[1])
            elif it[0]=="vm": g.vm(it[1],it[2] if len(it)>2 else None)
            elif it[0]=="fn": it[1]()
    def rowaddr(g):
        T=V_T
        g.p(f"""v_lshlrev_b32 v{T+1}, 9, v{V_FALL}
v_and_b32 v{T+2}, 16, v{V_LANE}
v_lshl_add_u32 v{T+1}, v{T+2}, 1, v{T+1}
v_lshrrev_b32 v{T+2}, 5, v{V_LANE}
v_lshl_add_u32 v{T+1}, v{T+2}, 4, v{T+1}
s_lshl_b32 {S.T0}, {S.MBk}, 16
s_lshl_b32 {S.T1}, {S.J}, 7
s_add_u32 {S.T0}, {S.T0}, {S.T1}
s_add_u32 {S.T1}, {S.T0}, 32768""")
    def p0(g):
        p=g.p; o=g.o; T=V_T; ACC=V_ACC
        p.raw(f"{NAME}:")
        p(f"s_cmp_ge_u32 s2, 256\ns_cbranch_scc1 L_end")
        p("s_load_dwordx2 s[24:25], s[0:1], 0\ns_load_dwordx2 s[4:5], s[0:1], 8\ns_load_dwordx2 s[8:9], s[0:1], 16\ns_load_dwordx2 s[12:13], s[0:1], 32\ns_load_dwordx2 s[28:29], s[0:1], 40")
        p("s_load_dwordx2 s[16:17], s[0:1], 48\ns_load_dwordx2 s[100:101], s[0:1], 56\ns_load_dwordx2 s[96:97], s[0:1], 72\ns_load_dwordx2 s[20:21], s[0:1], 80")
        p(f"v_lshrrev_b32 v{T}, 6, v0\nv_and_b32 v{V_LANE}, 63, v0\nv_readfirstlane_b32 {S.W}, v{T}\nv_lshlrev_b32 v{V_L16}, 4, v{V_LANE}\nv_mov_b32 v{V_TS}, 0")
        if o["xm"]==4: p(f"""s_and_b32 {S.PAR}, s2, 1
s_bfe_u32 {S.T0}, s2, 0x20001
s_bfe_u32 {S.T1}, s2, 0x20003
s_lshl_b32 {S.T0}, {S.T0}, 2
s_add_u32 {S.I}, {S.T0}, {S.T1}
s_lshr_b32 {S.T0}, s2, 5
s_lshl_b32 {S.T0}, {S.T0}, 1
s_add_u32 {S.J}, {S.T0}, {S.PAR}""")
        elif o["xm"]==2: p(f"""s_and_b32 {S.I}, s2, 15
s_lshr_b32 {S.J}, s2, 4
s_and_b32 {S.PAR}, {S.J}, 1""")
        elif o["xm"]==8: p(f"""s_and_b32 {S.PAR}, s2, 1
s_bfe_u32 {S.I}, s2, 0x40002
s_lshr_b32 {S.T0}, s2, 6
s_lshl_b32 {S.T0}, {S.T0}, 2
s_and_b32 {S.T1}, s2, 3
s_add_u32 {S.J}, {S.T0}, {S.T1}""")
        p(f"""s_lshl_b32 {S.MBk}, {S.I}, 2
s_add_u32 {S.MBk}, {S.MBk}, {S.W}
s_mov_b32 {S.IT}, 0""")
        g.stamp("start",True)
        p(f"s_lshl_b32 {S.T0}, {S.PAR}, 6\ns_add_u32 {S.T0}, {S.T0}, {S.MBk}\ns_lshl_b32 {S.T0}, {S.T0}, 7\ns_getpc_b64 s[6:7]"); p.raw("L_pc:")
        p(f"s_add_u32 {S.T0}, {S.T0}, L_tab-L_pc\ns_add_u32 s6, s6, {S.T0}\ns_addc_u32 s7, s7, 0")
        p.waitall(vm=False)
        p(f"s_load_dwordx16 s[{S_TAB}:{S_TAB+15}], s[6:7], 0\ns_load_dwordx16 s[{S_TAB+16}:{S_TAB+31}], s[6:7], 64")
        p(f"v_and_b32 v{T}, 15, v{V_LANE}\nv_lshlrev_b32 v{V_FALL}, 2, v{T}"); g.rowaddr()
        p(f"""s_mov_b32 s26, 0x400000
s_mov_b32 s27, 0x20000
s_mov_b32 s22, 0x10000000
s_mov_b32 s23, 0x20000
s_mov_b32 s98, 256
s_mov_b32 s99, 0x20000""")
        p(f"v_mov_b32 v{T+4}, 0\nv_mov_b32 v{T+5}, 0\nv_mov_b32 v{T+6}, 0\nv_mov_b32 v{T+7}, 0\nv_min_u32 v{V_ONE}, 1, v{V_LANE}\nv_lshlrev_b32 v{V_ONE}, 30, v{V_ONE}")
        g.vm(f"buffer_load_dword v{T+10}, v{V_ONE}, s[96:99], 0 offen offset:128")
        if o["tlb"]:
            p(f"v_lshlrev_b32 v{T+11}, 21, v{V_LANE}\nv_add_u32 v{T+11}, {0x1ff000}, v{T+11}")
            g.vm(f"global_load_dword v{T+11}, v{T+11}, {WSP}")
        p(f"s_add_u32 {S.T2}, s2, {S.W}\ns_cmp_lg_u32 {S.T2}, 0\ns_cbranch_scc1 L_noinit")
        for k in range(20):
            p.raw(f"buffer_store_dwordx4 {v(T+4,4)}, v{V_L16}, {WS}, {S.T2} offen offset:{(k%4)*1024} {SC}")
            if k%4==3: p.raw(f"s_add_u32 {S.T2}, {S.T2}, 4096")
        p.raw(f"v_mov_b32 v{V_FLG}, 1\ns_waitcnt vmcnt(0)\nbuffer_store_dword v{V_FLG}, v{V_ONE}, s[96:99], 0 offen {SC}\nL_noinit:")
        for k2 in range(2):
            for mh in range(2): g.vm(f"buffer_load_dwordx4 {v(V_RES+8*k2+4*mh,4)}, v{T+1}, {TS}, {S.T1 if mh else S.T0} offen offset:{64*k2}")
        PA,PB,PC,RT,WT=ACC+64,ACC+68,ACC+72,ACC+76,ACC+80
        p(f"""s_mov_b32 {S.T3}, {RQ}
s_cmp_eq_u32 {S.W}, 3
s_cselect_b32 s8, s8, s4
s_cselect_b32 s9, s9, s5
s_cselect_b32 {S.T3}, {R2}, {S.T3}
s_lshl_b32 s10, {S.T3}, 10
s_mov_b32 s11, 0x20000
s_mov_b32 s14, {1024*R1}
s_mov_b32 s15, 0x20000
s_mov_b32 s18, {3584*R2}
s_mov_b32 s19, 0x20000
s_mov_b32 s30, 7168
s_mov_b32 s31, 0x20000
v_lshrrev_b32 v{T+2}, 3, v{V_LANE}
v_and_b32 v{T+3}, 7, v{V_LANE}
v_and_b32 v{T+9}, 6, v{T+2}
v_xor_b32 v{T+3}, v{T+3}, v{T+9}
v_lshlrev_b32 v{T+3}, 4, v{T+3}
v_mul_u32_u24 v{PA}, {S.T3}, v{T+2}
v_add_u32 v{PA}, v{PA}, v{T+3}
s_lshl_b32 {S.T3}, {S.T3}, 3
s_sub_u32 {S.T3}, {S.T3}, 1024
v_add_u32 v{PA+1}, {S.T3}, v{PA}
v_add_u32 v{PA+2}, {S.T3}, v{PA+1}
v_add_u32 v{PA+3}, {S.T3}, v{PA+2}
s_mul_i32 {S.LDSW}, {S.W}, 24576
s_lshr_b32 {S.T2}, {S.J}, 1
s_mul_i32 {S.T3}, {S.T2}, 896
s_lshl_b32 {S.T2}, {S.T2}, 8""")
        p.waitall(vm=False)
        for r in range(6): p(f"s_add_u32 s{S_TAB+r}, s{S_TAB+r}, {S.T3 if r in(2,3) else S.T2}")
        dt={}
        def rdma(r):
            p(f"s_add_u32 m0, {S.LDSW}, {r*4096}")
            for q in range(4): dt[r]=g.vm(f"buffer_load_dwordx4 v{(PA,PB,PC)[r//2]+q}, {(WO,W1,W2)[r//2]}, s{S_TAB+r} offen offset:{q*1024} lds")
        rdma(0); rdma(1)
        for pat,rs in((PC,R2),(PB,R1)):
            p(f"v_mul_u32_u24 v{pat}, {rs}, v{T+2}\nv_add_u32 v{pat}, v{pat}, v{T+3}")
            for q in range(1,4): p(f"v_add_u32 v{pat+q}, {q*(8*rs-1024)}, v{pat}")
        p(f"""s_mul_i32 {S.KV}, {S.J}, {KVS}
s_add_u32 {S.KV}, {S.KV}, {WS_KV}
s_and_b32 {S.T0}, {S.MBk}, 31
s_min_u32 {S.T0}, {S.T0}, 16
s_lshl_b32 {S.T0}, {S.T0}, 9
s_lshr_b32 {S.T1}, {S.MBk}, 5
s_mul_i32 {S.T1}, {S.T1}, {16*KVS}
s_add_u32 {S.T0}, {S.T0}, {S.T1}
s_add_u32 {S.T0}, {S.T0}, {S.KV}
v_lshlrev_b32 v{T+2}, 3, v{V_LANE}""")
        g.vm(f"buffer_store_dwordx2 {v(T+4,2)}, v{T+2}, {WS}, {S.T0} offen {SC}")
        p(f"s_mov_b32 s24, s100\ns_mov_b32 s25, s101\ns_mov_b32 s26, 2048\nv_lshlrev_b32 v{T+2}, 1, v{V_LANE}\ns_lshl_b32 {S.T0}, {S.J}, 7")
        g.vm(f"buffer_load_ushort v{T+8}, v{T+2}, {TS}, {S.T0} offen")
        p("s_load_dwordx2 s[24:25], s[0:1], 64\ns_mov_b32 s26, 0x400000")
        p(f"""v_lshrrev_b32 v{T+2}, 2, v{V_LANE}
v_and_b32 v{T+3}, 3, v{V_LANE}
v_lshlrev_b32 v{T+3}, 3, v{T+3}
v_lshl_add_u32 v{RT}, v{T+2}, 7, v{T+3}
v_and_b32 v{T+9}, 6, v{T+2}
v_lshl_add_u32 v{RT}, v{T+9}, 4, v{RT}
v_add_u32 v{RT}, {S.LDSW}, v{RT}""")
        for b in range(1,4): p(f"v_xor_b32 v{RT+b}, {32*b}, v{RT}")
        p(f"""v_lshrrev_b32 v{T+2}, 4, v{V_LANE}
v_lshlrev_b32 v{T+2}, 2, v{T+2}
v_lshl_add_u32 v{V_STAT}, v{T}, 4, v{T+2}
v_lshlrev_b32 v{V_EXT}, 4, v{T}
v_add_u32 v{V_EXT}, {L_EXT1}, v{V_EXT}
v_mov_b32 v{V_XE+3}, 0
v_mov_b32 v{V_XE+7}, 0
v_mov_b32 v{V_RD}, v{V_L16}
v_add_u32 v{V_RD+1}, 0x10000, v{V_L16}
s_mul_i32 {S.T2}, {S.J}, {WTS}
s_add_u32 {S.T2}, {S.T2}, {WS_WT}
v_add_u32 v{WT}, {S.T2}, v{V_L16}
s_lshl_b32 {S.T2}, {S.W}, 12
v_add_u32 v{V_WP}, {S.T2}, v{WT}
s_mov_b32 {S.TO}, 0x40000
s_mul_i32 {S.T2}, {S.MBk}, {65536+o["SK"]}
s_add_u32 {S.XP}, {S.T2}, {WS_X+4096}
s_add_u32 {S.OP}, {S.T2}, {WS_O+4096}
s_lshl_b32 {S.T3}, {S.J}, 12
s_add_u32 {S.XW}, {S.T2}, {S.T3}
s_add_u32 {S.XW}, {S.XW}, {WS_X}
s_mul_i32 {S.HR}, {S.MBk}, {229376+o["SK"]}
s_mul_i32 {S.T2}, {S.PAR}, 114688
s_add_u32 {S.HR}, {S.HR}, {S.T2}
s_lshr_b32 {S.T2}, {S.J}, 1
s_lshl_b32 {S.T2}, {S.T2}, 11
s_add_u32 {S.HW}, {S.HR}, {S.T2}
s_add_u32 {S.HW}, {S.HW}, {WS_H}
s_add_u32 {S.HR}, {S.HR}, {WS_H+4096}
s_lshl_b32 {S.STP}, {S.MBk}, 12
s_add_u32 {S.STP}, {S.STP}, {WS_ST}
s_lshl_b32 {S.T2}, {S.MBk}, 4
s_add_u32 {S.T2}, {S.T2}, {S.J}
s_lshl_b32 {S.EXR}, {S.T2}, 12
s_add_u32 {S.EXR}, {S.EXR}, {WS_EX}
s_xor_b32 {S.EXW}, {S.EXR}, 4096
s_lshl_b32 {S.RF}, {S.MBk}, 8
s_lshl_b32 {S.T2}, {S.J}, 2
s_add_u32 {S.RFW}, {S.RF}, {S.T2}
s_add_u32 {S.RFW}, {S.RFW}, 128
s_xor_b32 {S.T2}, {S.T2}, 4
v_mov_b32 v{V_FPN}, {S.T2}
s_lshl_b32 {S.T2}, {S.PAR}, 2
v_and_b32 v{V_FPAR}, 56, v{V_FALL}
v_add_u32 v{V_FPAR}, {S.T2}, v{V_FPAR}
s_getreg_b32 {S.T2}, hwreg(HW_REG_XCC_ID, 0, 4)
s_mul_i32 {S.T3}, {S.T2}, {S.T2}
s_lshl_b32 {S.T3}, {S.T3}, 8
s_add_u32 {S.T2}, {S.T2}, {S.T3}
s_lshl_b32 {S.ST}, {S.T2}, 8
s_mov_b32 {S.RC}, {S.RF}
s_lshr_b32 {S.T2}, {S.J}, 1
s_lshl_b32 {S.T2}, {S.T2}, 2
s_add_u32 {S.RCE}, {S.RF}, {S.T2}
s_mov_b64 vcc, -1
s_lshl_b32 {S.CF}, {S.J}, 8
s_add_u32 {S.CF}, {S.CF}, {WS_COLF}
s_min_u32 {S.T2}, {S.W}, 1
s_lshl_b32 {S.T3}, {S.T2}, 30
s_add_u32 {S.CF}, {S.CF}, {S.T3}
s_xor_b32 {S.T2}, {S.T2}, 1
s_lshl_b32 {S.CT}, {S.T2}, 4
s_mov_b32 {S.C_EPS}, {F(1e-6*LOG2E)}
s_mov_b32 {S.C_LN2}, {F(LN2)}""")
        p.waitall(vm=False)
        for k in range(4):
            p(f"v_permlane16_swap_b32 v{V_RES+4*k}, v{V_RES+4*k+2}\nv_permlane16_swap_b32 v{V_RES+4*k+1}, v{V_RES+4*k+3}")
        g.stamp("p0x",True)
        g.run_list(g.pub_half(0)+g.pub_half(1)); tkx=g.pub_end()
        g.vm(f"buffer_load_dword v{V_FLG}, v{V_ONE}, s[96:99], 0 offen {SC}",8)
        rdma(2); rdma(3)
        ON,CSD=T+12,ACC+32
        for i in range(4): p(f"v_mov_b32 v{ON+i}, 0x3f803f80")
        def proc(r):
            b=ACC+16*(r&1); p.wait(vm=dt[r])
            for nb in range(4):
                for h in range(2): p(f"ds_read_b64_tr_b16 {v(b+4*nb+2*h,2)}, v{RT+nb} offset:{r*4096+h*2048}")
            for nb in range(4): t=g.vm(f"buffer_store_dwordx4 {v(b+4*nb,4)}, v{WT}, {WS}, s{S_TAB+8+4*r+nb} offen {SC}")
            if r<4:
                for nb in range(4): p(f"{MF} {v(CSD+4*nb,4)}, {v(ON,4)}, {v(b+4*nb,4)}, {v(CSD+4*nb,4) if r&1 else '0'}")
            if r in(1,3):
                p(f"s_lshl_b32 {S.T0}, {S.I}, 6\ns_lshl_b32 {S.T1}, {S.J}, 2\ns_add_u32 {S.T0}, {S.T0}, {S.T1}\ns_add_u32 {S.T0}, {S.T0}, {S.W}\ns_lshl_b32 {S.T0}, {S.T0}, 8\ns_add_u32 {S.T0}, {S.T0}, {WS_CS1 if r==3 else WS_CSQ}\nv_lshlrev_b32 v{T+9}, 2, v{V_LANE}")
                for nb in range(1,4): p(f"v_mov_b32_dpp v{CSD}, v{CSD+4*nb} quad_perm:[0,1,2,3] row_mask:{hex(1<<nb)} bank_mask:0xf")
                t=g.vm(f"buffer_store_dword v{CSD}, v{T+9}, {WS}, {S.T0} offen {SC}",16)
            return t
        proc(0); tkc=proc(1)
        p(f"v_readfirstlane_b32 {S.STG}, v{V_FLG}"); p(f"s_cmp_eq_u32 {S.STG}, 0\ns_cbranch_scc1 L_slowi"); p.raw("L_backi:")
        g.slow.append(f"""L_slowi:
buffer_load_dword v{V_FLG}, v{V_ONE}, s[96:99], 0 offen {SC}
s_sub_u32 {S.TO}, {S.TO}, 1
s_cbranch_scc1 L_abort
s_waitcnt vmcnt(0)
v_readfirstlane_b32 {S.STG}, v{V_FLG}
s_nop 0
s_cmp_eq_u32 {S.STG}, 0
s_cbranch_scc1 L_slowi
s_branch L_backi""")
        X2=T+2; hi=S.PAR if o["xm"]!=2 else "0"
        p(f"s_mul_i32 {S.T0}, {S.ST}, {hi}\ns_sub_u32 {S.T1}, {S.ST}, {S.T0}\ns_add_u32 {S.T1}, {S.T1}, 1\nv_mov_b32 v{X2}, {S.T1}\nv_mov_b32 v{X2+1}, {S.T0}"); p.wait(vm=tkx)
        g.vm(f"buffer_atomic_add_x2 {v(X2,2)}, v{V_ONE}, {WS}, {S.RC} offen sc1",8); g.stamp("p0arr",True)
        rdma(4); rdma(5)
        p(f"v_lshlrev_b32 v{T+8}, 16, v{T+8}\nv_add_u32 v{T+10}, {L_B2}, v{T+9}\nds_write_b32 v{T+10}, v{T+8}")
        p.wait(vm=tkc); p("s_barrier"); g.arrive(S.CF,0,tkc); g.stamp("p0col",True)
        proc(2); proc(3); g.poll_issue(S.CF,0); proc(4); proc(5); g.stamp("p0til",True)
        g.poll_check(S.CF,0,S.CT,S.CT); p(f"s_lshl_b32 {S.LDSW}, {S.W}, 12\ns_barrier")
        pl=f"v_mov_b32 v{X2}, 0\nv_mov_b32 v{X2+1}, 0\nbuffer_atomic_add_x2 {v(X2,2)}, v{V_ONE}, {WS}, {S.RC} offen sc0 sc1"
        p(pl); g.pump(o["pre0"])
        def chk():
            rf=f"v_readfirstlane_b32 {S.STG}, v{X2}\nv_readfirstlane_b32 {S.T0}, v{X2+1}\ns_bitcmp0_b32 {S.STG}, 4\ns_cbranch_scc1 L_slowx"
            p(rf); p.raw("L_backx:")
            g.slow.append(f"L_slowx:\n{pl}\ns_sub_u32 {S.TO}, {S.TO}, 1\ns_cbranch_scc1 L_abort\ns_waitcnt vmcnt(0)\n{rf}\ns_branch L_backx")
            g.t=0; g.free_at=0; g.stamp("p1start")
            p(f"s_sub_u32 {S.STG}, {S.STG}, 16\ns_cmp_eq_u32 {hi}, 0\ns_cselect_b32 {S.STG}, {S.STG}, {S.T0}\ns_lshl_b32 {S.ST}, {S.ST}, {4 if o['xm']==2 else 3}")
            p(f"s_cmp_eq_u32 {S.ST}, {S.STG}\ns_cselect_b64 vcc, {-1 if o.get('forceg') else 0}, -1\ns_mov_b32 {S.ST}, 0")
        return chk
    def p1(g,chk,first):
        p=g.p; o=g.o; T=V_T; ACC=V_ACC; L1,LQ=o["L1"],o["LQ"]; sfx="a" if first else "b"
        aK=lambda b:(ACC+8*b,ACC+8*b+4)
        aQ=lambda b:(ACC+16*(b>>1)+4*(b&1),ACC+16*(b>>1)+8+4*(b&1))
        z0=lambda ks,b:"0" if ks==0 else None; key="x1"+sfx; ev="st1"+sfx
        U=g.units("q",key,range(32-L1),range(8),aK,True,z0)
        for b in range(8): U.append(g.ext(256*b,aK(b),True,False,ev))
        U+=g.units("q",key,range(32-L1,32),range(4),aK,True); nK=len(U)-1
        U+=g.units("q",key,range(32-L1,32),range(4,8),aK,True); nV=len(U)-1
        for b in range(8,12): U.append(g.ext(256*b,aQ(b),False,True,ev))
        U[nV+1]["stamp"]="p1q"
        U+=g.units("q",key,range(32-LQ),range(8,12),aQ)
        U+=g.units("q",key,range(32-LQ,32),range(8,10),aQ); nQ0=len(U)-1
        U+=g.units("q",key,range(32-LQ,32),range(10,12),aQ)
        tk={}
        if first:
            side=g.side_stats(False,g.table_load(False,T+16)+[("delay",700)])+g.table_make(False,T+16,tk)
            side+=[("delay",150),("fn",lambda:(p.wait(lg=tk["t"]),g.barrier()))]
        else: side=g.side_stats(False,[("delay",800)])
        side+=[("ev",ev)]
        def phi(x,r,t,n):
            s=[f"v_mul_f32 v{x[i]}, v{x[i]}, v{r[i]}" for i in range(n)]
            s+=[f"v_exp_f32 v{t+i}, v{x[i]} clamp" for i in range(n)]
            s+=[f"v_max_f32 v{x[i]}, {S.C_EPS}, v{x[i]}" for i in range(n)]
            s+=[f"v_fma_f32 v{x[i]}, v{x[i]}, {S.C_LN2}, v{t+i}" for i in range(n)]
            return s
        AW,AR,ARV,FR=T+41,T+42,T+43,T+8
        KF,ZF,VF=ACC,ACC+96,T+16
        ON,ZD,KD=T+32,T+4,T+8
        side+=ins([f"s_add_u32 {S.T0}, {S.LDSW}, {L_SCR}",f"v_add_u32 v{AW}, {S.T0}, v{V_L16}",f"s_lshl_b32 {S.T0}, {S.W}, 10",f"s_add_u32 {S.T0}, {S.T0}, {L_SCR}",
                   f"v_add_u32 v{ARV}, {S.T0}, v{V_L16}",f"v_and_b32 v{AR}, 0xfffffbff, v{ARV}",
                   f"v_and_b32 v{T+44}, 48, v{V_LANE}",f"v_lshl_add_u32 v{T+45}, v{T+44}, 26, v{V_FALL}",f"v_lshl_add_u32 v{T+44}, v{T+44}, 4, v{V_FALL}",
                   f"s_lshl_b32 {S.T1}, {S.W}, 6",f"s_add_u32 {S.T1}, {S.T1}, {S.KV}",f"s_add_u32 {S.T1}, {S.T1}, 8192",f"s_lshl_b32 {S.T0}, {S.W}, 11",f"s_add_u32 {S.T0}, {S.T0}, {S.KV}"])
        side+=ins([f"v_mov_b32 v{ON+i}, 0x3f803f80" for i in range(4)])
        side+=[("at",nK+1)]
        for b in range(4):
            f=FR+4*(b&1)
            for mh in range(2):
                x=[aK(b)[mh]+i for i in range(4)]
                side+=ins(phi(x,[V_LC+4*mh+i for i in range(4)],T,4)+[f"v_cvt_pk_bf16_f32 v{f+2*mh+i}, v{x[2*i]}, v{x[2*i+1]}" for i in range(2)])
            side.append(("fn",lambda b=b,f=f:tk.__setitem__(0,p(f"ds_write_b128 v{AW}, {v(f,4)} offset:{b*1024}"))))
        side+=[("delay",64),("fn",lambda:(p.wait(lg=tk[0]),g.barrier()))]
        for sw in range(4):
            for dh in range(2): side.append(("i",f"ds_read_b128 {v(KF+8*sw+4*dh,4)}, v{AR} offset:{sw*4096+dh*1024}"))
            side.append(("fn",lambda sw=sw:tk.__setitem__(1,p(f"ds_read_b128 {v(ZF+4*sw,4)}, v{ARV} offset:{sw*4096}"))))
        side+=[("delay",64),("fn",lambda:(p.wait(lg=tk[1]),g.barrier()))]
        side+=ins([f"{MF} {v(ZD,4)}, {v(ON,4)}, {v(ZF+4*sw,4)}, {'0' if sw==0 else v(ZD,4)}" for sw in range(4)])
        side+=[("at",nV+1)]
        for b in range(4):
            f=FR+4*(b&1); x=[aK(b+4)[0]+i for i in range(8)]
            side+=ins([f"v_mul_f32 v{x[i]}, v{x[i]}, v{V_LC+i}" for i in range(8)]+[f"v_cvt_pk_bf16_f32 v{f+i}, v{x[2*i]}, v{x[2*i+1]}" for i in range(4)])
            side.append(("fn",lambda b=b,f=f:tk.__setitem__(0,p(f"ds_write_b128 v{AW}, {v(f,4)} offset:{b*1024}"))))
        side+=[("vm",f"buffer_atomic_add_f32 v{ZD}, v{T+45}, {WS}, {S.T1} offen sc1",16)]
        side+=[("delay",40),("fn",lambda:(p.wait(lg=tk[0]),g.barrier()))]
        side+=ins([f"ds_read_b128 {v(VF+4*sw,4)}, v{ARV} offset:{sw*4096}" for sw in range(4)])+[("delay",64)]
        for sw in range(4):
            for dh in range(2): side.append(("i",f"{MF} {v(KD+4*dh,4)}, {v(VF+4*sw,4)}, {v(KF+8*sw+4*dh,4)}, {'0' if sw==0 else v(KD+4*dh,4)}"))
        side+=[("delay",40)]
        for dh in range(2):
            for r in range(4): side.append(("fn",lambda dh=dh,r=r:tk.__setitem__(2,g.vm(f"buffer_atomic_add_f32 v{KD+4*dh+r}, v{T+44}, {WS}, {S.T0} offen offset:{dh*1024+r*64} sc1",24))))
        co=4 if first else 8
        side+=[("delay",o["kvd1"]),("fn",lambda:(p.wait(vm=tk[2]),g.stamp("kvat"),g.barrier(),g.arrive(S.CF,co,tk[2]))),("delay",o["kvd2"]),("fn",lambda:g.poll_issue(S.CF,co))]
        side+=ins([f"v_and_b32 v{T+45}, 48, v{V_LANE}",f"v_lshl_add_u32 v{T+44}, v{V_FALL}, 4, v{T+45}",f"s_add_u32 {S.T0}, {S.KV}, 4096",f"s_add_u32 {S.T1}, {S.KV}, 8192"])
        side+=[("delay",o["kvd3"]),("fn",lambda:(g.poll_check(S.CF,co,S.CT,S.CT),g.barrier(),g.stamp("kvok")))]
        KR=ACC
        for h in range(2):
            for e in range(2):
                for dh in range(2): side.append(("vm",f"buffer_load_dwordx4 {v(KR+24*h+8*e+4*dh,4)}, v{T+44}, {WS}, {S.T0 if h else S.KV} offen offset:{e*2048+dh*1024} {SC}"))
            for dh in range(2): side.append(("vm",f"buffer_load_dwordx4 {v(KR+24*h+16+4*dh,4)}, v{T+45}, {WS}, {S.T1} offen offset:{h*128+dh*64} {SC}",16))
        if first: side+=g.table_load(True,T+20)
        side+=ins([f"s_lshl_b32 {S.T0}, {S.J}, 12",f"s_add_u32 {S.T0}, {S.T0}, {S.OP}",f"s_sub_u32 {S.T0}, {S.T0}, 4096",f"v_mov_b32 v{T+18}, {F(LOG2E)}"])
        PQ=T+8; OD=ACC+96
        for h in range(2):
            side+=[("at",nQ0+1 if (h==0 and LQ) else len(U)-1)]
            if h: side+=[("fn",lambda:g.stamp("p1mf"))]
            for mh in range(2):
                x=[ACC+64+16*h+8*mh+i for i in range(8)]
                side+=ins(phi(x,[T+46+mh]*8,T,8)+[f"v_cvt_pk_bf16_f32 v{PQ+4*mh+i}, v{x[2*i]}, v{x[2*i+1]}" for i in range(4)])
            if h==0:
                for e in range(6): side+=ins([f"v_cvt_pk_bf16_f32 v{KR+8*e+i}, v{KR+8*e+2*i}, v{KR+8*e+2*i+1}" for i in range(4)])
            for e in(2,0,1):
                for mh in range(2): side.append(("i",f"{MF} {v(OD+12*mh+4*e,4)}, {v(KR+24*h+8*e,4)}, {v(PQ+4*mh,4)}, 0"))
            side+=ins([f"v_fma_f32 v{T+16+mh}, v{OD+12*mh+8}, v{T+18}, {S.C_EPS}" for mh in range(2)]+[f"v_rcp_f32 v{T+16+mh}, v{T+16+mh}" for mh in range(2)])
            for mh in range(2):
                d=OD+12*mh
                side+=ins([f"v_mul_f32 v{d+i}, v{d+i}, v{T+16+mh}" for i in range(8)]+[f"v_cvt_pk_bf16_f32 v{d+8+i}, v{d+2*i}, v{d+2*i+1}" for i in range(4)])
                side.append(("fn",lambda d=d,k=2*h+mh:tk.__setitem__(3,g.gstore([f"buffer_store_dwordx4 {v(d+8,4)}, v{V_L16}, {WS}, {S.T0} offen offset:{k*1024}"]))))
        g.stream(U,g.aloads(key,32,S.XP),side,lambda n:(o["vp1"] if n>nK else o["vp0"])+(3 if nV<n<nV+24 or n>nQ0 else 0),chk)
        g.stamp("p1end")
        def pre():
            if first: g.run_list(g.table_make(True,T+20,tk))
            for k in range(16): p(f"v_lshlrev_b32 v{ACC+2*k}, 16, v{V_RES+k}\nv_and_b32 v{ACC+2*k+1}, 0xffff0000, v{V_RES+k}")
            p(f"s_add_u32 {S.XP}, {S.XP}, {XB}\ns_add_u32 {S.XW}, {S.XW}, {XB}\ns_add_u32 {S.STP}, {S.STP}, 0x40000")
            p.waitall(vm=False)
        return g.sync_row(tk[3],1,"p2start",pre,upto=(g.nu//16+8)*4)
    def build(g):
        p=g.p; o=g.o; T=V_T; ACC=V_ACC; L2,L4,LK=o["L2"],o["L4"],o["LK"]
        chk=g.p1(g.p0(),True)
        assert g.nextD==32*4
        p.raw("L_iter:"); p.hist=[]; g.m0dirty=True
        head=dict(n=p.nvm-p.pvm[("v",V_FLG)],dist={s:p.nvm-g.dma_t[s][0] for s in range(24,32)},done=[s for s in range(24,32) if g.dma_t[s][0]<=p.vmdone],ready=[s for s in range(24,32) if s in g.ready])
        aB=lambda bases:(lambda b:(bases[b>>1]+4*(b&1),bases[b>>1]+8+4*(b&1)))
        z0=lambda ks,b:"0" if ks==0 else None
        a2=aB([ACC,ACC+16])
        U=g.units("o","o",range(32-L2),range(4),a2)+g.units("o","o",range(32-L2,32),range(2),a2); n0=len(U)-1
        U+=g.units("o","o",range(32-L2,32),range(2,4),a2)
        side=[]
        for k2 in range(2):
            side+=[("at",n0+1 if(k2==0 and L2) else len(U)-1)]+([("fn",lambda:g.stamp("p2mf"))] if k2 else [])
            side+=ins([f"v_cvt_pk_bf16_f32 v{V_RES+k}, v{ACC+2*k}, v{ACC+2*k+1}" for k in range(8*k2,8*k2+8)])+g.pub_half(k2)
        g.stream(U,g.aloads("o",32,S.OP),side,lambda n:3,chk)
        tk=g.pub_end(); g.stamp("p2end")
        chk=g.sync_row(tk,2,"p3start")
        a3=aB([ACC+16*b for b in range(7)]); U=[]; done={}; b0=0
        for gi,nb in enumerate(o["G3"]):
            nbs=range(2*b0,2*(b0+nb)); ex=[g.ext(4096+256*b,a3(b),False,gi>0,"st3") for b in nbs]
            if gi==0: U+=g.units("1","x3",range(28),nbs,a3,first=z0)+ex+g.units("1","x3",range(28,32),nbs,a3); nA=len(U)-1
            else: U+=ex+g.units("1","x3",range(32),nbs,a3)
            for b in range(b0,b0+nb): done[b]=len(U)-1
            b0+=nb
        nC=len(U)-1; B2R=T+16
        KB=[ACC+112,ACC]; SB=[ACC+16,ACC+32]; a4=aB(KB+SB)
        U+=g.units("2","h",range(56-L4),range(8),a4,first=lambda ks,b:(None if ks or b<4 else "0"))
        U+=g.units("2","h",range(56-L4,56),range(4,8),a4); nS=len(U)-1
        U+=g.units("2","h",range(56-L4,56-LK),range(4),a4)+g.units("2","h",range(56-LK,56),range(2),a4); nK0=len(U)-1
        U+=g.units("2","h",range(56-LK,56),range(2,4),a4)
        assert g.nu==NSL*16
        U[nA+1]["stamp"]="p3b"; U[nC+1]["pre"]="e3"; U[nC+1]["stamp"]="p4start"; U[min(nS+1,len(U)-1)]["stamp"]="p4k"
        lastuse={}
        for n,u in enumerate(U):
            if u["akey"]: lastuse[u["akey"]]=n
        FB=o["FB"]
        evh=lambda ks:"hf%d"%min(i for i,x in enumerate(FB) if ks//8<x)
        Aq=g.aloads("x3",32,S.XP)+g.aloads("h",56,S.HR,ok=lambda ks:(lambda n:n>=lastuse[("x3",ks) if ks<32 else ("h",ks-32)]),ev=evh,sc=o['hsc'])
        side=g.side_stats(True,[("delay",800)])+[("ev","st3")]
        side+=ins([f"v_and_b32 v{T}, 48, v{V_LANE}",f"v_add_u32 v{T}, {L_B2}, v{T}"]+[f"ds_read_b128 {v(B2R+4*b,4)}, v{T} offset:{64*b}" for b in range(4)])
        def cinit(k2):
            l=[]
            for k in range(8):
                d=KB[k2]+2*k; bb=B2R+8*k2+(2*k)%8
                l+=[f"v_lshlrev_b32 v{d}, 16, v{V_RES+8*k2+k}",f"v_and_b32 v{d+1}, 0xffff0000, v{V_RES+8*k2+k}",f"v_add_f32 v{d}, v{d}, v{bb}",f"v_add_f32 v{d+1}, v{d+1}, v{bb+1}"]
            return ins(l)
        side+=[("delay",100)]+cinit(0)
        tk={}; pend=[]; batch=[]
        def tick(lst):
            if pend: lst+=pend.pop(0)
        for b in range(7):
            side.append(("at",done[b]+1))
            for mh in range(2):
                Oo=T+32+8*(b&1)+4*mh; L=V_LC+3*mh
                for c in range(2):
                    x=[ACC+16*b+8*mh+4*c+i for i in range(4)]; t=[T+i for i in range(4)]; l=[]
                    l+=[f"v_mul_f32 v{t[i]}, v{x[i]}, v{x[i]}" for i in range(4)]
                    l+=[f"v_fma_f32 v{t[i]}, v{t[i]}, v{L+1}, v{L}" for i in range(4)]
                    l+=[f"v_mul_f32 v{t[i]}, v{t[i]}, v{x[i]}" for i in range(4)]
                    l+=[f"v_exp_f32 v{t[i]}, v{t[i]}" for i in range(4)]
                    l+=[f"v_fma_f32 v{t[i]}, v{t[i]}, v{L+2}, v{L+2}" for i in range(4)]
                    l+=[f"v_rcp_f32 v{t[i]}, v{t[i]}" for i in range(4)]
                    l+=[f"v_mul_f32 v{t[i]}, v{t[i]}, v{x[i]}" for i in range(4)]
                    l+=[f"v_cvt_pk_bf16_f32 v{Oo+2*c+i}, v{t[2*i]}, v{t[2*i+1]}" for i in range(2)]
                    side+=ins(l); tick(side)
                batch.append((Oo,b,mh))
                if len(batch)>=o["HBT"] or (mh and b+1 in FB):
                    for bb in sorted({x[1] for x in batch}): side.append(("i",f"s_add_u32 {S.T0 if bb&1 else S.T1}, {S.HW}, {bb*16384}"))
                    side.append(("fn",lambda b=b,batch=batch:tk.__setitem__(b,(g.gstore if o["hsc"]==SC else g.hstore)([f"buffer_store_dwordx4 {v(r,4)}, v{V_L16}, {WS}, {S.T0 if bb&1 else S.T1} offen offset:{m*1024}" for r,bb,m in batch]))))
                    batch=[]
            if b==0: side+=cinit(1)
            if b==2: side.append(("ev","e3"))
            if b+1 in FB:
                i=FB.index(b+1)
                while pend: side.append(("delay",400)); tick(side)
                pend=[[],[("fn",lambda b=b,i=i:g.flag(3+i,tk[b]))],[("fn",lambda i=i:g.fpoll(V_FPAR))],
                      [("delay",o.get("hd",150)),("fn",lambda i=i:g.fcheck(V_FPAR,3+i)),("ev",f"hf{i}")]]
        while pend: side.append(("delay",400)); tick(side)
        RX=ACC+48
        side+=ins([f"s_mul_i32 {S.T2}, {S.IT}, {OOB}",f"s_add_u32 {S.T2}, {S.T2}, {XB}",f"s_add_u32 {S.XW}, {S.XW}, {S.T2}",f"s_add_u32 {S.XP}, {S.XP}, {XB}",f"s_add_u32 {S.STP}, {S.STP}, 0x40000"])
        side+=[("at",nS+1 if L4 else nS)]+ins([f"v_cvt_pk_bf16_f32 v{RX+k}, v{SB[0]+2*k}, v{SB[0]+2*k+1}" for k in range(16)])
        side.append(("fn",lambda:tk.__setitem__(8,g.gstore([f"buffer_store_dwordx4 {v(RX+4*k,4)}, v{V_L16}, {WS}, {S.EXW} offen offset:{k*1024}" for k in range(4)]))))
        side+=[("delay",o["exd1"]),("fn",lambda:(g.flag(10,tk[8]) if o["xm"]==2 else g.arrive(S.RCE,32,tk[8]))),("delay",o["exd2"]),("fn",lambda:(g.fpoll(V_FPN) if o["xm"]==2 else g.poll_issue(S.RCE,32))),
               ("delay",o["exd3"]),("fn",lambda:(g.fcheck(V_FPN,10) if o["xm"]==2 else g.poll_check(S.RCE,32,2,2),g.stamp("exok")))]
        for k in range(4): side.append(("fn",lambda k=k:g.vm(f"buffer_load_dwordx4 {v(RX+4*k,4)}, v{V_L16}, {WS}, {S.EXR} offen offset:{k*1024} {SC}")))
        side+=[("delay",o["exd4"])]
        for k in range(16): side+=ins([f"v_lshlrev_b32 v{SB[0]+2*k}, 16, v{RX+k}",f"v_and_b32 v{SB[0]+2*k+1}, 0xffff0000, v{RX+k}"])
        def fin(k2):
            l=[]
            for k in range(8): l+=[f"v_add_f32 v{KB[k2]+2*k}, v{KB[k2]+2*k}, v{SB[k2]+2*k}",f"v_add_f32 v{KB[k2]+2*k+1}, v{KB[k2]+2*k+1}, v{SB[k2]+2*k+1}",
                                   f"v_cvt_pk_bf16_f32 v{V_RES+8*k2+k}, v{KB[k2]+2*k}, v{KB[k2]+2*k+1}"]
            return ins(l)
        side+=[("at",nK0+1 if LK else len(U)-1)]+fin(0)+g.pub_half(0)+[("at",len(U)-1),("fn",lambda:g.stamp("p4mf"))]+fin(1)
        g.stream(U,Aq,side,lambda n:o['vp0'] if n<=nA else o["vp3"] if n<=nC else o["vp4"] if n<=nS else 4.0,chk)
        p(f"s_cmp_eq_u32 {S.IT}, 1\ns_cbranch_scc1 L_final"); saved=list(g.tsq)
        g.run_list(g.pub_half(1)); tk=g.pub_end(); g.stamp("p4end")
        def nxt():
            g.flush_stamps()
            p(f"""s_add_u32 {S.OP}, {S.OP}, {XB}
s_add_u32 {S.HR}, {S.HR}, {HB}
s_add_u32 {S.HW}, {S.HW}, {HB}
s_add_u32 {S.EXR}, {S.EXR}, {4*MB}
s_add_u32 {S.EXW}, {S.EXW}, {4*MB}
s_add_u32 {S.KV}, {S.KV}, {16*KVS}
s_mov_b32 {S.ST}, 16
s_add_u32 {S.RC}, {S.RC}, 64
s_add_u32 {S.RCE}, {S.RCE}, 64
s_mov_b32 {S.IT}, 1""")
        g.p1(g.sync_row(tk,16,"p1start",nxt),False)
        assert g.nextD==(NSL+32)*4
        n=p.nvm-p.pvm[("v",V_FLG)]
        if n<head["n"] or any(p.nvm-g.dma_t[NSL+s][0]<min(d,head["n"]) for s,d in head["dist"].items()): p.waitall(lg=False); print("join: full wait")
        if head["done"]: p.wait(vm=max(g.dma_t[NSL+s][0] for s in head["done"]))
        if any(NSL+s not in g.ready for s in head["ready"]): g.barrier(); print("join: barrier")
        assert all(NSL+s in g.ready for s in head["ready"])
        p("s_nop 3\ns_branch L_iter")
        p.raw("L_final:"); g.rowaddr()
        for k in range(4):
            p(f"v_permlane16_swap_b32 v{V_RES+4*k}, v{V_RES+4*k+2}\nv_permlane16_swap_b32 v{V_RES+4*k+1}, v{V_RES+4*k+3}")
            p(f"buffer_store_dwordx4 {v(V_RES+4*k,4)}, v{T+1}, {TS}, {S.T1 if k&1 else S.T0} offen offset:{64*(k>>1)}")
        g.tsq=saved; g.flush_stamps()
        return g.finish()
    def table(g):
        rows=[]; P=lambda m,ks,nb:g.pos[(m,ks,nb)]*1024
        for par in range(2):
            for mb in range(64):
                i,w=divmod(mb,4); src=[]; pos=[]
                for r in range(2):
                    ks=2*i+r
                    if w<3: src.append(ks*32*RQ+(2048,4096,0)[w]+128*par); pos+=[P("q",ks,4*w+nb) for nb in range(4)]
                    else: src.append(ks*32*R2+128*par); pos+=[P("o",ks,nb) for nb in range(4)]
                for r in range(2):
                    ks=2*i+r
                    if w<3: src.append(ks*32*R1+512*par+128*w); pos+=[P("1",ks,4*w+nb) for nb in range(4)]
                    else: src.append(ks*32*R1+384); pos+=[P("1",ks,12+(nb&1)) if nb>>1==par else OOB for nb in range(4)]
                for r in range(2):
                    q=7*i+min(w+4*r,6); ks,pr=divmod(q,2); b,jj=divmod(ks,8)
                    row=448*jj+224*par+((32+32*b if b<6 else 0) if par else 32*b)
                    src.append(row*R2+128*(pr^par)); pos+=[P("2",ks,4*pr+nb) if w+4*r<7 else OOB for nb in range(4)]
                rows.append(src+[0,0]+pos)
        return ".p2align 7\n.type L_tab,@object\nL_tab:\n"+"".join(".long "+",".join(map(str,r))+"\n" for r in rows)
    def finish(g):
        p=g.p
        if g.o["prof"]:
            p.waitall(); g.stamp("end"); g.flush_stamps(); g.names.remove("end")
            p(f"s_lshl_b32 {S.T0}, s2, 2\ns_add_u32 {S.T0}, {S.T0}, {S.W}\ns_lshl_b32 {S.T0}, {S.T0}, 8\ns_add_u32 {S.T0}, {S.T0}, {WS_TS}\nv_lshlrev_b32 v{V_T}, 2, v{V_LANE}")
            p(f"buffer_store_dword v{V_TS}, v{V_T}, {WS}, {S.T0} offen")
        p.raw("L_abort:\nL_end:\ns_endpgm")
        for s in g.slow: p.raw(s)
        p.raw(g.table())
        hdr=open("cdna_kernels/"+NAME[:-7]+".s.ref").read().split("; Override")[0]
        hdr+=f"; @launch grid=(256,1,1) block=(256,1,1) lds={LDS_BYTES}\n"
        hdr+=f'.amdgcn_target "amdgcn-amd-amdhsa--gfx950"\n.text\n.globl {NAME}\n.p2align 8\n.type {NAME},@function\n'
        kd=f""".section .rodata,"a"
.p2align 6
.amdhsa_kernel {NAME}
  .amdhsa_next_free_vgpr 512
  .amdhsa_next_free_sgpr 102
  .amdhsa_accum_offset 256
  .amdhsa_group_segment_fixed_size 0
  .amdhsa_kernarg_size 88
  .amdhsa_user_sgpr_count 2
  .amdhsa_user_sgpr_kernarg_segment_ptr 1
  .amdhsa_system_sgpr_workgroup_id_x 1
  .amdhsa_float_denorm_mode_32 3
.end_amdhsa_kernel
"""
        return hdr+p.text()+kd
def make(**o):
    g=Gen(**o); s=g.build(); return s,g
if __name__=="__main__":
    o={}
    for x in sys.argv[2:]:
        k,val=x.split("="); o[k]=eval(val)
    s,g=make(**o); open(sys.argv[1],"w").write(s)
    print("bytes",len(s),"lines",s.count("\n"),"nops",g.p.nops,"autowaits",g.p.autow,"est cyc",g.t,"forced",g.forced)
```

```python
import sys, math, struct
from ir import *
NAME="interleave_layers__linear_attn_block__dense_activation_gelu__prompt_kernel"
def f2u(x): return struct.unpack("<I",struct.pack("<f",x))[0]
def F(x): return hex(f2u(x))
LOG2E=1.4426950408889634; LN2=0.6931471805599453
MB=1<<20
WS_ROWF=0; WS_COLF=16384; WS_CSQ=0x40000; WS_CS1=0x80000; WS_KV=0xc0000; WS_ST=0x140000; WS_TS=0x240000
WS_X=3*MB; XB=4*MB+0x40000; WS_O=WS_X+4*XB; WS_EX=30*MB; WS_H=38*MB; HB=15*MB; WS_WT=68*MB
KVS=8704; WTS=88*16384+2048
OOB=0x40000000
L_SCR=131072; L_EXT1=147456; L_EXT3=L_EXT1+4096; L_B2=L_EXT3+4096; LDS_BYTES=L_B2+256
RQ,R2,R1=6144,2048,7168
class S: pass
_s=["I","J","W","MBk","PAR","IT","T0","T1","T2","T3","LDSW","SOFF","STG","TO",
    "XP","OP","HR","HW","XW","STP","KV","EXW","EXR","RF","RFW","ST","CF","CT","RC","RCE","C_EPS","C_LN2"]
for n,x in enumerate(_s): setattr(S,x,f"s{32+n}")
assert len(_s)<=32
SM='s[100:101]'
S_TAB=64
WQ,WO,W1,W2,WS,TS,B1="s[4:7]","s[8:11]","s[12:15]","s[16:19]","s[20:23]","s[24:27]","s[28:31]"
WSP="s[20:21]"
V_L16,V_ONE,V_FALL,V_STAT,V_WP,V_A,V_RD,_,V_EXT,V_FLG,V_TS,V_LANE,V_FPAR,V_FPN=range(14)
V_WF=16; V_RES=48; V_XE=64; V_LC=72; V_ACC=80; V_T=208
def icost(t):
    c=0
    for l in t.split("\n"):
        op=l.split()[0]
        c+=8 if (op in TRANS or op.startswith(("v_mfma","global_"))) else 12 if op.startswith("buffer_") else 4
    return c
def v(a,n=1): return f"v{a}" if n==1 else f"v[{a}:{a+n-1}]"
def a_(a,n=4): return f"a[{a}:{a+n-1}]"
MF="v_mfma_f32_16x16x32_bf16"
SC="sc1"
NSL=88
def ins(l): return [("i",x) for x in l]

class Gen:
    def __init__(g,**o):
        g.o=dict(D=7,WE=4,L1=12,LQ=8,L2=4,L4=20,LK=0,G3=(4,2,1),FB=(1,2,3,4,5,6,7),tlb=False,cpf=False,hsc='sc1',HBT=2,xm=4,STC=120,STG=200,DEPTH=400,LOW=150,LEAD=24,FULL=520,URG=48,COST=72,prof=False,
                 vp0=1.0,vp1=4.0,vp3=3,vp4=2.8,SK=512,pu1=6,pu2=6,kvd1=1500,kvd2=400,kvd3=600,exd1=600,exd2=150,exd3=600,exd4=500,pre0=20)
        g.o.update(o); g.p=Prog(); g.slow=[]; g.nlab=0; g.tsq=[]; g.names=[]
        g.dma_t={}; g.lastrd={}; g.ready=set(); g.released=set(); g.nextD=0; g.maxD=(NSL+32)*4; g.t=0; g.free_at=0; g.ev=set()
        g.nu=0; g.pos={}; g.nunit=0; g.forced=0; g.m0dirty=False
    def stamp(g,name,now=False):
        if not g.o["prof"]: return
        fine=g.o.get("fine")
        if fine and not(name[0]=="u" or name.endswith("start") and name!="p4start" or name in("end","p2mf")): return
        r=S_TAB+6 if now else S_TAB+2*len(g.tsq); assert r+1<100
        g.p(f"{'s_memtime' if g.o['prof']=='cy' else 's_memrealtime'} s[{r}:{r+1}]"); g.tsq.append((name,r))
        if now: g.flush_stamps()
    def flush_stamps(g):
        if not g.o["prof"] or not g.tsq: return
        p=g.p; p.waitall(vm=False)
        for name,r in g.tsq:
            if name not in g.names: g.names.append(name)
            k=31 if name=="end" else g.names.index(name); assert k<31 or name=="end"
            p(f"s_lshl_b32 m0, {S.IT}, 5\ns_add_u32 m0, m0, {k}\nv_writelane_b32 v{V_TS}, s{r}, m0")
        g.tsq=[]; g.m0dirty=True
    def vm(g,text,cost=None):
        t=g.p(text); c=g.o["COST"] if cost is None else cost
        g.t=max(g.t,g.free_at-g.o["FULL"])
        g.free_at=max(g.free_at,g.t)+c; return t
    def barrier(g):
        p=g.p; p("s_barrier")
        for s,t in g.lastrd.items():
            if t<=p.lgdone: g.released.add(s)
        for s,(t,n) in g.dma_t.items():
            if n==4 and t<=p.vmdone: g.ready.add(s)
    def dma_ok(g):
        s=g.nextD//4
        return g.nextD<g.maxD and (s<8 or (s-8) in g.released)
    def dma_ops(g):
        s,q=divmod(g.nextD,4); g.nextD+=1; p=g.p; ops=[]
        I_=lambda t:ops.append((4,lambda:p(t)))
        if q==0 or g.m0dirty: I_(f"s_add_u32 m0, {S.LDSW}, {(s%8)*16384}")
        if q==0 and s: I_(f"v_add_u32 v{V_WP}, {16384 if s!=NSL else hex((16384*(1-NSL))&0xffffffff)}, v{V_WP}")
        g.m0dirty=False
        def go(): g.dma_t[s]=(g.vm(f"global_load_lds_dwordx4 v{V_WP}, {WSP} offset:{q*1024} {SC}"),q+1)
        ops.append((8,go)); return ops
    def dma(g):
        for c,f in g.dma_ops(): f()
    def pump(g,n):
        while n>0 and g.dma_ok(): g.dma(); n-=1
    def arrive(g,soff,off,ticket,ret=False,val="1"):
        p=g.p; p(f"v_mov_b32 v{V_FLG}, {val}"); p.wait(vm=ticket)
        g.vm(f"buffer_atomic_add v{V_FLG}, v{V_ONE}, {WS}, {soff} offen offset:{off} {'sc0 ' if ret else ''}sc1",8)
    def poll_issue(g,soff,off):
        g.p(f"v_mov_b32 v{V_FLG}, 0"); g.vm(f"buffer_atomic_add v{V_FLG}, v{V_ONE}, {WS}, {soff} offen offset:{off} sc0 sc1",8)
    def poll_check(g,soff,off,first,target,bit=False):
        p=g.p; n=g.nlab; g.nlab+=1
        p(f"v_readfirstlane_b32 {S.STG}, v{V_FLG}"); p(f"{'s_bitcmp0_b32' if bit else 's_cmp_lt_u32'} {S.STG}, {first}\ns_cbranch_scc1 L_slow{n}"); p.raw(f"L_back{n}:")
        g.slow.append(f"""L_slow{n}:
v_mov_b32 v{V_FLG}, 0
buffer_atomic_add v{V_FLG}, v{V_ONE}, {WS}, {soff} offen offset:{off} sc0 sc1
s_sub_u32 {S.TO}, {S.TO}, 1
s_cbranch_scc1 L_abort
s_waitcnt vmcnt(0)
v_readfirstlane_b32 {S.STG}, v{V_FLG}
s_nop 0
{'s_bitcmp0_b32' if bit else 's_cmp_lt_u32'} {S.STG}, {target}
s_cbranch_scc1 L_slow{n}
s_branch L_back{n}""")
    def gstore(g,l,cost=None):
        if g.o["xm"]==2: return g.hstore(l,cost)
        for x in l: t=g.vm(x+" sc1",g.o["STG"] if cost is None else cost)
        return t
    def hstore(g,l,cost=None):
        p=g.p; n=g.nlab; g.nlab+=1; n0=len(p.out)
        for x in l: p.prep(x)
        p(f"s_cbranch_vccnz L_alt{n}"); n0=len(p.out)
        for x in l: t=g.vm(x,g.o["STC"] if cost is None else cost)
        assert len(p.out)-n0==len(l)
        p.raw(f"L_bk{n}:"); g.slow.append(f"L_alt{n}:\n"+"".join(f"{x} sc1\n" for x in l)+f"s_branch L_bk{n}")
        return t
    def flag(g,k,ticket):
        p=g.p; p(f"s_add_u32 {S.STG}, {S.ST}, {k}\nv_mov_b32 v{V_FLG}, {S.STG}"); p.wait(vm=ticket)
        g.hstore([f"buffer_store_dword v{V_FLG}, v{V_ONE}, {WS}, {S.RFW} offen"],8)
    def fpoll(g,vo): g.vm(f"buffer_load_dword v{V_FLG}, v{vo}, {WS}, {S.RF} offen offset:128 {SC}",8)
    def fcheck(g,vo,k):
        p=g.p; n=g.nlab; g.nlab+=1
        p(f"s_add_u32 {S.STG}, {S.ST}, {k}\nv_cmp_gt_u32 {SM}, {S.STG}, v{V_FLG}"); p(f"s_cmp_lg_u64 {SM}, 0\ns_cbranch_scc1 L_slow{n}"); p.raw(f"L_back{n}:")
        if g.o["hsc"]!=SC:
            p(f"s_cbranch_vccnz L_inv{n}"); p.raw(f"L_binv{n}:"); g.slow.append(f"L_inv{n}:\nbuffer_inv sc1\ns_waitcnt vmcnt(0)\ns_branch L_binv{n}")
        g.slow.append(f"""L_slow{n}:
buffer_load_dword v{V_FLG}, v{vo}, {WS}, {S.RF} offen offset:128 {SC}
s_sub_u32 {S.TO}, {S.TO}, 1
s_cbranch_scc1 L_abort
s_waitcnt vmcnt(0)
v_cmp_gt_u32 {SM}, {S.STG}, v{V_FLG}
s_nop 0
s_cmp_lg_u64 {SM}, 0
s_cbranch_scc1 L_slow{n}
s_branch L_back{n}""")
    def units(g,mat,key,kss,nbs,accf,tr=False,first=lambda ks,nb:None):
        U=[]
        for ks in kss:
            for nb in nbs:
                u=g.nu; g.nu+=1
                assert g.pos.setdefault((mat,ks,nb),u%(NSL*16))==u%(NSL*16)
                U.append(dict(slot=u//16,rd=(V_RD+(u%128)//64,(u%64)*1024),x=[a_(8*(ks%32)),a_(8*(ks%32)+4)],acc=accf(nb),tr=tr,first=first(ks,nb),akey=(key,ks)))
        return U
    def ext(g,off,accs,tr,first,ev):
        return dict(slot=None,rd=(V_EXT,off),x=[v(V_XE,4),v(V_XE+4,4)],acc=accs,tr=tr,first="0" if first else None,akey=None,ev=ev)
    def stream(g,U,Aq,side,vpu,sync,burst=8,lat=550):
        p=g.p; D=g.o["D"]; WE=g.o["WE"]; NF=D+1; N=len(U); base=g.nunit
        firstuse={}; lastu={}; firstu={}
        for n,u in enumerate(U):
            if u["akey"]: firstuse.setdefault(u["akey"],n)
            if u["slot"] is not None: lastu[u["slot"]]=n; firstu.setdefault(u["slot"],n)
        At={}; rd_t={}; st=dict(n=-1,dl=1e9); mq=[]
        def side_peek(force=False):
            while side:
                it=side[0]
                if it[0]=="at":
                    if st["n"]<it[1]:
                        assert not force,("forced past at",it,st["n"]); return None
                elif it[0]=="delay":
                    if len(it)==2: side[0]=it=("delay",it[1],g.t+it[1])
                    if g.t<it[2] and not force: return None
                elif it[0]=="ev": g.ev.add(it[1])
                else:
                    if it[0]=="vm" and not force and g.free_at-g.t>g.o["DEPTH"]+100: return None
                    return 8 if it[0]=="fn" else icost(it[1])
                side.pop(0)
            return None
        def side_emit():
            it=side.pop(0)
            if it[0]=="fn": it[1]()
            elif it[0]=="vm": g.vm(it[1],it[2] if len(it)>2 else None)
            else: p(it[1])
        def until(ev):
            while True:
                while side and side[0][0]=="ev": g.ev.add(side.pop(0)[1])
                if ev in g.ev: return
                g.forced+=1
                if side[0][0] in("at","delay"):
                    assert side[0][0]=="delay" or st["n"]>=side[0][1],("forced past at",side[0],st["n"]); side.pop(0)
                else: side_emit()
        def flush():
            while mq: mq.pop(0)[1]()
        def nextA():
            x=Aq.pop(0); return x["ops"](At)
        def A_ok(): return Aq and Aq[0]["ok"](st["n"]) and (Aq[0].get("ev") is None or Aq[0]["ev"] in g.ev)
        def refill(force=False):
            if mq: return
            da=firstuse.get(Aq[0]["id"][:2],1e8) if A_ok() else None
            dd=(firstu.get(g.nextD//4,1e9)-D-WE) if g.dma_ok() else None
            if da is None and dd is None: return
            dl=min(x for x in(da,dd) if x is not None)
            if not force and g.free_at-g.t>g.o["DEPTH"] and dl-st["n"]>g.o["LEAD"]: return
            st["dl"]=dl
            mq.extend(nextA() if dd is None or (da is not None and da<=dd) else g.dma_ops())
        def rd(n):
            u=U[n]; r=V_WF+4*(n%NF); s=u["slot"]
            if s is None: until(u["ev"])
            elif firstu[s]==n:
                if g.dma_t.get(s,(0,0))[1]<4:
                    flush(); g.forced+=1
                    while g.nextD<4*(s+1):
                        if not g.dma_ok(): p.waitall(vm=False); g.barrier()
                        g.dma()
                if s not in g.ready: p.wait(vm=g.dma_t[s][0])
                g.barrier(); assert s in g.ready
            rd_t[n]=p(f"ds_read_b128 {v(r,4)}, v{u['rd'][0]} offset:{u['rd'][1]}")
            if s is not None and lastu[s]==n: g.lastrd[s]=rd_t[n]
        cr=dict(c=0.0)
        def peek():
            refill()
            if mq: return mq[0][0]
            return side_peek()
        def emit():
            if mq: mq.pop(0)[1]()
            else: cr["c"]-=side_peek(); side_emit()
        early=U[0]["slot"] in g.ready or g.dma_t.get(U[0]["slot"],(1e9,0))[0]<=p.vmdone
        if early:
            for n in range(D): rd(n)
        sync()
        for _ in range(burst): refill(True); flush()
        for _ in range(40):
            if side_peek() is None: break
            side_emit()
        if not early:
            for n in range(D): rd(n)
        g.t+=lat
        for n,u in enumerate(U):
            c0=p.cyc; r=V_WF+4*(n%NF)
            if u.get("pre"): until(u["pre"])
            if u.get("stamp"): g.stamp(u["stamp"])
            fine=g.o.get("fine")
            if fine and fine[0]<=base+n<fine[0]+fine[2]*fine[1] and (base+n-fine[0])%fine[1]==0: g.stamp(f"u{base+n}_{g.t}_{p.nvm}")
            tv=None
            for m in range(n,min(N,n+WE-n%WE)):
                w=U[m]
                if w["akey"] and firstuse[w["akey"]]==m:
                    k=w["akey"]+(1,)
                    if m==n and k not in At:
                        flush(); g.forced+=1
                        while k not in At:
                            if Aq[0].get("ev"): until(Aq[0]["ev"])
                            assert Aq[0]["ok"](st["n"]); mq.extend(nextA()); flush()
                    if k in At and (m==n or n%WE==0): tv=At[k]
            if n%WE==0:
                for m in range(n+D,min(N,n+D+WE)):
                    s=U[m]["slot"]
                    if s is not None and firstu[s]==m and g.dma_t.get(s,(0,0))[1]==4: tv=max(tv or 0,g.dma_t[s][0])
            p.wait(vm=tv,lg=rd_t.get(min(n+WE-1-(n%WE),N-1,n+D-1)))
            cr["c"]=max(min(cr["c"],16),-8)+4*vpu(n)
            def mf(mh):
                acc=v(u["acc"][mh],4); c=u["first"] or acc; w=v(r,4); x=u["x"][mh]
                p(f"{MF} {acc}, {x}, {w}, {c}" if u["tr"] else f"{MF} {acc}, {w}, {x}, {c}")
            wnext=4 if (n+1)%WE==0 else 0
            mf(0); c1=p.cyc; r1=n+D<N
            c=peek()
            if r1 and not(c==8 and wnext): rd(n+D); r1=False
            while True:
                c=peek()
                if c is not None and c<=8-(p.cyc-c1): emit()
                else: break
            mf(1); st["n"]=n; c1=p.cyc
            if r1: rd(n+D)
            while True:
                c=peek()
                if c is None: break
                if c<=8-wnext-(p.cyc-c1) or (mq and (g.free_at-g.t<g.o["LOW"] and st["dl"]-n<g.o["URG"] or st["dl"]-n<g.o["LEAD"]-4)): emit(); continue
                break
            while True:
                c=side_peek()
                if c is None or cr["c"]<c: break
                cr["c"]-=c; side_emit()
            g.t+=max(32,p.cyc-c0)
        g.nunit+=N; flush(); assert not Aq
        p.waitall(vm=False); g.barrier()
        st["n"]=1e9
        while side_peek(True) is not None:
            c0=p.cyc; side_emit(); g.t+=p.cyc-c0
    def aloads(g,key,nks,sbase,ok=lambda ks:(lambda n:True),ev=lambda ks:None,sc=SC):
        q=[]; p=g.p
        for ks in range(nks):
            for mh in range(2):
                f=2*ks+mh
                def ops(At,f=f,ks=ks,mh=mh):
                    l=[]
                    if f==0: l.append((4,lambda:p(f"v_add_u32 v{V_A}, {sbase}, v{V_L16}")))
                    elif f%8==0: l.append((4,lambda:p(f"v_add_u32 v{V_A}, 8192, v{V_A}")))
                    l.append((8,lambda:At.__setitem__((key,ks,mh),g.vm(f"global_load_dwordx4 {a_(8*(ks%32)+4*mh)}, v{V_A}, {WSP} offset:{(f%8)*1024-4096} {sc}"))))
                    return l
                q.append(dict(id=(key,ks,mh),ops=ops,ok=ok(ks),ev=ev(ks)))
        return q
    def red4(g,a,b,c,d):
        return [f"v_permlane32_swap_b32 v{a}, v{c}",f"v_permlane32_swap_b32 v{b}, v{d}",f"v_add_f32 v{a}, v{a}, v{c}",f"v_add_f32 v{b}, v{b}, v{d}",
                f"v_permlane16_swap_b32 v{a}, v{b}",f"v_add_f32 v{a}, v{a}, v{b}"]
    def pub_half(g,k2):
        T=V_T; s=[]
        s.append(("fn",lambda:g.gstore([f"buffer_store_dwordx4 {v(V_RES+8*k2+4*mh,4)}, v{V_L16}, {WS}, {S.XW} offen offset:{(2*k2+mh)*1024}" for mh in range(2)])))
        if k2==0: s.append(("i",f"v_mov_b32 v{T+4}, 0x3f803f80"))
        for i in range(4):
            for mh in range(2):
                r=V_RES+8*k2+4*mh+i; z=(i==0 and k2==0)
                s+=ins([f"v_dot2_f32_bf16 v{T+2*mh}, v{r}, v{T+4}, {'0' if z else v(T+2*mh)}",f"v_dot2_f32_bf16 v{T+2*mh+1}, v{r}, v{r}, {'0' if z else v(T+2*mh+1)}"])
        return s
    def pub_end(g):
        p=g.p; T=V_T
        p(f"s_lshl_b32 {S.T0}, {S.J}, 8\ns_add_u32 {S.T0}, {S.T0}, {S.STP}")
        for x in g.red4(T,T+1,T+2,T+3): p(x)
        return g.gstore([f"buffer_store_dword v{T}, v{V_STAT}, {WS}, {S.T0} offen"],16)
    def sync_row(g,ticket,off,name,pre=None,upto=None):
        n1,n2=g.o["pu1"],g.o["pu2"]
        if upto is not None: n1=max(upto-g.nextD-n2,0)
        loc=g.o["xm"]==2; co={1:8,2:12,16:64}[off]
        g.pump(n1)
        if loc: g.flag(off,ticket); g.fpoll(V_FALL)
        else: g.arrive(S.RC,co,ticket,True)
        g.pump(n2)
        if pre: pre()
        g.flush_stamps()
        def chk():
            if loc: g.fcheck(V_FALL,off&15)
            else: g.poll_check(S.RC,co&63,15,16)
            g.t+=1200; g.free_at=g.t; g.stamp(name)
        return chk
    def side_stats(g,p3,mid):
        T=V_T; s=[]
        for t in range(4): s.append(("vm",f"buffer_load_dwordx4 {v(T+4*t,4)}, v{V_L16}, {WS}, {S.STP} offen offset:{t*1024} {SC}"))
        s+=mid; o=[]
        for c in range(4): o+=[f"v_add_f32 v{T+c}, v{T+c}, v{T+4+c}",f"v_add_f32 v{T+8+c}, v{T+8+c}, v{T+12+c}"]
        for c in range(4): o+=[f"v_add_f32 v{T+c}, v{T+c}, v{T+8+c}"]
        for sw in("32","16"):
            for c in range(4): o+=[f"v_mov_b32 v{T+4+c}, v{T+c}"]
            for c in range(4): o+=[f"v_permlane{sw}_swap_b32 v{T+c}, v{T+4+c}"]
            for c in range(4): o+=[f"v_add_f32 v{T+c}, v{T+c}, v{T+4+c}"]
        for mh in range(2): o+=[f"v_mul_f32 v{T+2*mh}, {F(-1/1024)}, v{T+2*mh}",f"v_mul_f32 v{T+2*mh+1}, {F(1/1024)}, v{T+2*mh+1}"]
        for mh in range(2): o+=[f"v_fma_f32 v{T+2*mh+1}, -v{T+2*mh}, v{T+2*mh}, v{T+2*mh+1}"]
        for mh in range(2): o+=[f"v_max_f32 v{T+2*mh+1}, 0, v{T+2*mh+1}"]
        for mh in range(2): o+=[f"v_add_f32 v{T+2*mh+1}, {F(1e-5)}, v{T+2*mh+1}"]
        for mh in range(2): o+=[f"v_rsq_f32 v{T+4+mh}, v{T+2*mh+1}"]
        o+=[f"s_mov_b64 {SM}, 0xffff"]
        for mh in range(2): o+=[f"v_mul_f32 v{T+2*mh+1}, v{T+2*mh+1}, v{T+4+mh}"]
        for mh in range(2):
            m,sg,X=T+2*mh,T+2*mh+1,V_XE+4*mh
            o+=[f"v_cvt_pk_bf16_f32 v{T+6}, v{m}, v{m}",f"v_cvt_pk_bf16_f32 v{T+7}, v{sg}, v{sg}",
                f"v_lshlrev_b32 v{T+8}, 16, v{T+6}",f"v_lshlrev_b32 v{T+9}, 16, v{T+7}",
                f"v_sub_f32 v{T+8}, v{m}, v{T+8}",f"v_sub_f32 v{T+9}, v{sg}, v{T+9}",
                f"v_cvt_pk_bf16_f32 v{T+8}, v{T+8}, v{sg}",f"v_cvt_pk_bf16_f32 v{T+9}, v{T+9}, 0",
                f"v_cndmask_b32 v{X}, 0, v{T+6}, {SM}",f"v_cndmask_b32 v{X+1}, 0, v{T+8}, {SM}",f"v_cndmask_b32 v{X+2}, 0, v{T+9}, {SM}"]
        if p3:
            c0=-2*math.sqrt(2/math.pi)*LOG2E
            for mh in range(2):
                r=T+4+mh; L=V_LC+3*mh
                o+=[f"v_mul_f32 v{L}, {F(c0)}, v{r}",f"v_mul_f32 v{T+6}, v{r}, v{r}",f"v_mov_b32 v{L+2}, v{T+2*mh+1}",
                    f"v_mul_f32 v{T+6}, {F(0.044715)}, v{T+6}",f"v_mul_f32 v{L+1}, v{T+6}, v{L}"]
        else:
            for mh in range(2): o+=[f"v_mul_f32 v{T+46+mh}, {F(LOG2E)}, v{T+4+mh}"]
            o+=[f"v_and_b32 v{T+6}, 48, v{V_LANE}"]
            for mh in range(2):
                for r in range(4): o+=[f"ds_bpermute_b32 v{V_LC+4*mh+r}, v{T+6}, v{T+46+mh} offset:{4*r}"]
        return s+ins(o)
    def table_load(g,p3,T):
        s=ins([f"v_lshrrev_b32 v{T+16}, 4, v{V_LANE}",f"v_lshlrev_b32 v{T+18}, 14, v{T+16}",f"v_lshl_add_u32 v{T+18}, v{V_FALL}, 2, v{T+18}",f"v_add_u32 v{T+17}, v{V_FALL}, v{T+16}",
               f"s_lshl_b32 {S.T2}, {S.J}, 2",f"s_add_u32 {S.T2}, {S.T2}, {S.W}",f"s_lshl_b32 {S.T2}, {S.T2}, 8",f"s_add_u32 {S.T2}, {S.T2}, {WS_CS1 if p3 else WS_CSQ}"])
        for t in range(4):
            s.append(("vm",f"buffer_load_dwordx4 {v(T+4*t,4)}, v{T+18}, {WS}, {S.T2} offen {SC}"))
            if t<3: s.append(("i",f"s_add_u32 {S.T2}, {S.T2}, 65536"))
        if p3:
            s+=ins([f"v_lshlrev_b32 v{T+18}, 1, v{T+17}",f"s_lshl_b32 {S.T3}, {S.PAR}, 6",f"s_lshl_b32 {S.T2}, {S.W}, 7",f"s_add_u32 {S.T2}, {S.T2}, {S.T3}",
                    f"s_cmp_eq_u32 {S.T2}, 448\ns_cselect_b32 {S.T2}, -64, {S.T2}\ns_cselect_b32 {S.T3}, 32, 0",f"v_xor_b32 v{T+17}, {S.T3}, v{T+17}",
                    f"s_mul_i32 {S.T3}, {S.J}, 448",f"s_add_u32 {S.T2}, {S.T2}, {S.T3}"])
            s.append(("vm",f"buffer_load_ushort v{T+19}, v{T+18}, {B1}, {S.T2} offen",16))
        return s
    def table_make(g,p3,T,tk):
        o=[]
        for c in range(4): o+=[f"v_add_f32 v{T+c}, v{T+c}, v{T+4+c}",f"v_add_f32 v{T+8+c}, v{T+8+c}, v{T+12+c}"]
        for c in range(4): o+=[f"v_add_f32 v{T+c}, v{T+c}, v{T+8+c}"]
        o+=g.red4(T,T+1,T+2,T+3)
        o+=[f"v_cvt_pk_bf16_f32 v{T+5}, v{T}, 0",f"s_lshl_b32 {S.T2}, {S.W}, 10",f"v_lshlrev_b32 v{T+8}, 16, v{T+5}",f"v_sub_f32 v{T+8}, v{T}, v{T+8}",
            f"v_cvt_pk_bf16_f32 v{T+4}, v{T}, v{T+8}",f"s_add_u32 {S.T2}, {S.T2}, {L_EXT3 if p3 else L_EXT1}",f"v_mov_b32 v{T+7}, 0"]
        if p3: o+=[f"v_lshl_add_u32 v{T+5}, v{T+19}, 16, v{T+5}",f"v_mov_b32 v{T+6}, v{T+19}"]
        else: o+=[f"v_mov_b32 v{T+6}, 0"]
        o+=[f"v_lshl_add_u32 v{T+17}, v{T+17}, 4, {S.T2}"]
        return ins(o)+[("fn",lambda:tk.__setitem__("t",g.p(f"ds_write_b128 v{T+17}, {v(T+4,4)}")))]
    def run_list(g,l):
        for it in l:
            if it[0]=="i": g.p(it[1])
            elif it[0]=="vm": g.vm(it[1],it[2] if len(it)>2 else None)
            elif it[0]=="fn": it[1]()
    def rowaddr(g):
        T=V_T
        g.p(f"""v_lshlrev_b32 v{T+1}, 9, v{V_FALL}
v_and_b32 v{T+2}, 16, v{V_LANE}
v_lshl_add_u32 v{T+1}, v{T+2}, 1, v{T+1}
v_lshrrev_b32 v{T+2}, 5, v{V_LANE}
v_lshl_add_u32 v{T+1}, v{T+2}, 4, v{T+1}
s_lshl_b32 {S.T0}, {S.MBk}, 16
s_lshl_b32 {S.T1}, {S.J}, 7
s_add_u32 {S.T0}, {S.T0}, {S.T1}
s_add_u32 {S.T1}, {S.T0}, 32768""")
    def p0(g):
        p=g.p; o=g.o; T=V_T; ACC=V_ACC
        p.raw(f"{NAME}:")
        p(f"s_cmp_ge_u32 s2, 256\ns_cbranch_scc1 L_end")
        p("s_load_dwordx2 s[24:25], s[0:1], 0\ns_load_dwordx2 s[4:5], s[0:1], 8\ns_load_dwordx2 s[8:9], s[0:1], 16\ns_load_dwordx2 s[12:13], s[0:1], 32\ns_load_dwordx2 s[28:29], s[0:1], 40")
        p("s_load_dwordx2 s[16:17], s[0:1], 48\ns_load_dwordx2 s[100:101], s[0:1], 56\ns_load_dwordx2 s[96:97], s[0:1], 72\ns_load_dwordx2 s[20:21], s[0:1], 80")
        p(f"v_lshrrev_b32 v{T}, 6, v0\nv_and_b32 v{V_LANE}, 63, v0\nv_readfirstlane_b32 {S.W}, v{T}\nv_lshlrev_b32 v{V_L16}, 4, v{V_LANE}\nv_mov_b32 v{V_TS}, 0")
        if o["xm"]==4: p(f"""s_and_b32 {S.PAR}, s2, 1
s_bfe_u32 {S.T0}, s2, 0x20001
s_bfe_u32 {S.T1}, s2, 0x20003
s_lshl_b32 {S.T0}, {S.T0}, 2
s_add_u32 {S.I}, {S.T0}, {S.T1}
s_lshr_b32 {S.T0}, s2, 5
s_lshl_b32 {S.T0}, {S.T0}, 1
s_add_u32 {S.J}, {S.T0}, {S.PAR}""")
        elif o["xm"]==2: p(f"""s_and_b32 {S.I}, s2, 15
s_lshr_b32 {S.J}, s2, 4
s_and_b32 {S.PAR}, {S.J}, 1""")
        elif o["xm"]==8: p(f"""s_and_b32 {S.PAR}, s2, 1
s_bfe_u32 {S.I}, s2, 0x40002
s_lshr_b32 {S.T0}, s2, 6
s_lshl_b32 {S.T0}, {S.T0}, 2
s_and_b32 {S.T1}, s2, 3
s_add_u32 {S.J}, {S.T0}, {S.T1}""")
        p(f"""s_lshl_b32 {S.MBk}, {S.I}, 2
s_add_u32 {S.MBk}, {S.MBk}, {S.W}
s_mov_b32 {S.IT}, 0""")
        g.stamp("start",True)
        p(f"s_lshl_b32 {S.T0}, {S.PAR}, 6\ns_add_u32 {S.T0}, {S.T0}, {S.MBk}\ns_lshl_b32 {S.T0}, {S.T0}, 7\ns_getpc_b64 s[6:7]"); p.raw("L_pc:")
        p(f"s_add_u32 {S.T0}, {S.T0}, L_tab-L_pc\ns_add_u32 s6, s6, {S.T0}\ns_addc_u32 s7, s7, 0")
        p.waitall(vm=False)
        p(f"s_load_dwordx16 s[{S_TAB}:{S_TAB+15}], s[6:7], 0\ns_load_dwordx16 s[{S_TAB+16}:{S_TAB+31}], s[6:7], 64")
        p(f"v_and_b32 v{T}, 15, v{V_LANE}\nv_lshlrev_b32 v{V_FALL}, 2, v{T}"); g.rowaddr()
        p(f"""s_mov_b32 s26, 0x400000
s_mov_b32 s27, 0x20000
s_mov_b32 s22, 0x10000000
s_mov_b32 s23, 0x20000
s_mov_b32 s98, 256
s_mov_b32 s99, 0x20000""")
        p(f"v_mov_b32 v{T+4}, 0\nv_mov_b32 v{T+5}, 0\nv_mov_b32 v{T+6}, 0\nv_mov_b32 v{T+7}, 0\nv_min_u32 v{V_ONE}, 1, v{V_LANE}\nv_lshlrev_b32 v{V_ONE}, 30, v{V_ONE}")
        g.vm(f"buffer_load_dword v{T+10}, v{V_ONE}, s[96:99], 0 offen offset:128")
        if o["cpf"]:
            p(f"s_getpc_b64 s[10:11]\ns_lshr_b32 {S.T2}, s2, 3\ns_lshl_b32 {S.T2}, {S.T2}, 2\ns_add_u32 {S.T2}, {S.T2}, {S.W}\ns_mul_i32 {S.T2}, {S.T2}, 768\nv_min_u32 v{T+11}, 5, v{V_LANE}\nv_lshl_add_u32 v{T+11}, v{T+11}, 7, {S.T2}\nv_min_u32 v{T+11}, L_tab-L_pc, v{T+11}")
            g.vm(f"global_load_dword v{T+11}, v{T+11}, s[10:11]")
        if o["tlb"]:
            p(f"v_lshlrev_b32 v{T+11}, 21, v{V_LANE}\nv_add_u32 v{T+11}, {0x1ff000}, v{T+11}")
            g.vm(f"global_load_dword v{T+11}, v{T+11}, {WSP}")
        p(f"s_add_u32 {S.T2}, s2, {S.W}\ns_cmp_lg_u32 {S.T2}, 0\ns_cbranch_scc1 L_noinit")
        for k in range(20):
            p.raw(f"buffer_store_dwordx4 {v(T+4,4)}, v{V_L16}, {WS}, {S.T2} offen offset:{(k%4)*1024} {SC}")
            if k%4==3: p.raw(f"s_add_u32 {S.T2}, {S.T2}, 4096")
        p.raw(f"v_mov_b32 v{V_FLG}, 1\ns_waitcnt vmcnt(0)\nbuffer_store_dword v{V_FLG}, v{V_ONE}, s[96:99], 0 offen {SC}\nL_noinit:")
        for k2 in range(2):
            for mh in range(2): g.vm(f"buffer_load_dwordx4 {v(V_RES+8*k2+4*mh,4)}, v{T+1}, {TS}, {S.T1 if mh else S.T0} offen offset:{64*k2}")
        PA,PB,PC,RT,WT=ACC+64,ACC+68,ACC+72,ACC+76,ACC+80
        p(f"""s_mov_b32 {S.T3}, {RQ}
s_cmp_eq_u32 {S.W}, 3
s_cselect_b32 s8, s8, s4
s_cselect_b32 s9, s9, s5
s_cselect_b32 {S.T3}, {R2}, {S.T3}
s_lshl_b32 s10, {S.T3}, 10
s_mov_b32 s11, 0x20000
s_mov_b32 s14, {1024*R1}
s_mov_b32 s15, 0x20000
s_mov_b32 s18, {3584*R2}
s_mov_b32 s19, 0x20000
s_mov_b32 s30, 7168
s_mov_b32 s31, 0x20000
v_lshrrev_b32 v{T+2}, 3, v{V_LANE}
v_and_b32 v{T+3}, 7, v{V_LANE}
v_and_b32 v{T+9}, 6, v{T+2}
v_xor_b32 v{T+3}, v{T+3}, v{T+9}
v_lshlrev_b32 v{T+3}, 4, v{T+3}
v_mul_u32_u24 v{PA}, {S.T3}, v{T+2}
v_add_u32 v{PA}, v{PA}, v{T+3}
s_lshl_b32 {S.T3}, {S.T3}, 3
s_sub_u32 {S.T3}, {S.T3}, 1024
v_add_u32 v{PA+1}, {S.T3}, v{PA}
v_add_u32 v{PA+2}, {S.T3}, v{PA+1}
v_add_u32 v{PA+3}, {S.T3}, v{PA+2}
s_mul_i32 {S.LDSW}, {S.W}, 24576
s_lshr_b32 {S.T2}, {S.J}, 1
s_mul_i32 {S.T3}, {S.T2}, 896
s_lshl_b32 {S.T2}, {S.T2}, 8""")
        p.waitall(vm=False)
        for r in range(6): p(f"s_add_u32 s{S_TAB+r}, s{S_TAB+r}, {S.T3 if r in(2,3) else S.T2}")
        dt={}
        def rdma(r):
            p(f"s_add_u32 m0, {S.LDSW}, {r*4096}")
            for q in range(4): dt[r]=g.vm(f"buffer_load_dwordx4 v{(PA,PB,PC)[r//2]+q}, {(WO,W1,W2)[r//2]}, s{S_TAB+r} offen offset:{q*1024} lds")
        rdma(0); rdma(1)
        for pat,rs in((PC,R2),(PB,R1)):
            p(f"v_mul_u32_u24 v{pat}, {rs}, v{T+2}\nv_add_u32 v{pat}, v{pat}, v{T+3}")
            for q in range(1,4): p(f"v_add_u32 v{pat+q}, {q*(8*rs-1024)}, v{pat}")
        p(f"""s_mul_i32 {S.KV}, {S.J}, {KVS}
s_add_u32 {S.KV}, {S.KV}, {WS_KV}
s_and_b32 {S.T0}, {S.MBk}, 31
s_min_u32 {S.T0}, {S.T0}, 16
s_lshl_b32 {S.T0}, {S.T0}, 9
s_lshr_b32 {S.T1}, {S.MBk}, 5
s_mul_i32 {S.T1}, {S.T1}, {16*KVS}
s_add_u32 {S.T0}, {S.T0}, {S.T1}
s_add_u32 {S.T0}, {S.T0}, {S.KV}
v_lshlrev_b32 v{T+2}, 3, v{V_LANE}""")
        g.vm(f"buffer_store_dwordx2 {v(T+4,2)}, v{T+2}, {WS}, {S.T0} offen {SC}")
        p(f"s_mov_b32 s24, s100\ns_mov_b32 s25, s101\ns_mov_b32 s26, 2048\nv_lshlrev_b32 v{T+2}, 1, v{V_LANE}\ns_lshl_b32 {S.T0}, {S.J}, 7")
        g.vm(f"buffer_load_ushort v{T+8}, v{T+2}, {TS}, {S.T0} offen")
        p("s_load_dwordx2 s[24:25], s[0:1], 64\ns_mov_b32 s26, 0x400000")
        p(f"""v_lshrrev_b32 v{T+2}, 2, v{V_LANE}
v_and_b32 v{T+3}, 3, v{V_LANE}
v_lshlrev_b32 v{T+3}, 3, v{T+3}
v_lshl_add_u32 v{RT}, v{T+2}, 7, v{T+3}
v_and_b32 v{T+9}, 6, v{T+2}
v_lshl_add_u32 v{RT}, v{T+9}, 4, v{RT}
v_add_u32 v{RT}, {S.LDSW}, v{RT}""")
        for b in range(1,4): p(f"v_xor_b32 v{RT+b}, {32*b}, v{RT}")
        p(f"""v_lshrrev_b32 v{T+2}, 4, v{V_LANE}
v_lshlrev_b32 v{T+2}, 2, v{T+2}
v_lshl_add_u32 v{V_STAT}, v{T}, 4, v{T+2}
v_lshlrev_b32 v{V_EXT}, 4, v{T}
v_add_u32 v{V_EXT}, {L_EXT1}, v{V_EXT}
v_mov_b32 v{V_XE+3}, 0
v_mov_b32 v{V_XE+7}, 0
v_mov_b32 v{V_RD}, v{V_L16}
v_add_u32 v{V_RD+1}, 0x10000, v{V_L16}
s_mul_i32 {S.T2}, {S.J}, {WTS}
s_add_u32 {S.T2}, {S.T2}, {WS_WT}
v_add_u32 v{WT}, {S.T2}, v{V_L16}
s_lshl_b32 {S.T2}, {S.W}, 12
v_add_u32 v{V_WP}, {S.T2}, v{WT}
s_mov_b32 {S.TO}, 0x40000
s_mul_i32 {S.T2}, {S.MBk}, {65536+o["SK"]}
s_add_u32 {S.XP}, {S.T2}, {WS_X+4096}
s_add_u32 {S.OP}, {S.T2}, {WS_O+4096}
s_lshl_b32 {S.T3}, {S.J}, 12
s_add_u32 {S.XW}, {S.T2}, {S.T3}
s_add_u32 {S.XW}, {S.XW}, {WS_X}
s_mul_i32 {S.HR}, {S.MBk}, {229376+o["SK"]}
s_mul_i32 {S.T2}, {S.PAR}, 114688
s_add_u32 {S.HR}, {S.HR}, {S.T2}
s_lshr_b32 {S.T2}, {S.J}, 1
s_lshl_b32 {S.T2}, {S.T2}, 11
s_add_u32 {S.HW}, {S.HR}, {S.T2}
s_add_u32 {S.HW}, {S.HW}, {WS_H}
s_add_u32 {S.HR}, {S.HR}, {WS_H+4096}
s_lshl_b32 {S.STP}, {S.MBk}, 12
s_add_u32 {S.STP}, {S.STP}, {WS_ST}
s_lshl_b32 {S.T2}, {S.MBk}, 4
s_add_u32 {S.T2}, {S.T2}, {S.J}
s_lshl_b32 {S.EXR}, {S.T2}, 12
s_add_u32 {S.EXR}, {S.EXR}, {WS_EX}
s_xor_b32 {S.EXW}, {S.EXR}, 4096
s_lshl_b32 {S.RF}, {S.MBk}, 8
s_lshl_b32 {S.T2}, {S.J}, 2
s_add_u32 {S.RFW}, {S.RF}, {S.T2}
s_add_u32 {S.RFW}, {S.RFW}, 128
s_xor_b32 {S.T2}, {S.T2}, 4
v_mov_b32 v{V_FPN}, {S.T2}
s_lshl_b32 {S.T2}, {S.PAR}, 2
v_and_b32 v{V_FPAR}, 56, v{V_FALL}
v_add_u32 v{V_FPAR}, {S.T2}, v{V_FPAR}
s_getreg_b32 {S.T2}, hwreg(HW_REG_XCC_ID, 0, 4)
s_mul_i32 {S.T3}, {S.T2}, {S.T2}
s_lshl_b32 {S.T3}, {S.T3}, 8
s_add_u32 {S.T2}, {S.T2}, {S.T3}
s_lshl_b32 {S.ST}, {S.T2}, 8
s_mov_b32 {S.RC}, {S.RF}
s_lshr_b32 {S.T2}, {S.J}, 1
s_lshl_b32 {S.T2}, {S.T2}, 2
s_add_u32 {S.RCE}, {S.RF}, {S.T2}
s_mov_b64 vcc, -1
s_lshl_b32 {S.CF}, {S.J}, 8
s_add_u32 {S.CF}, {S.CF}, {WS_COLF}
s_min_u32 {S.T2}, {S.W}, 1
s_lshl_b32 {S.T3}, {S.T2}, 30
s_add_u32 {S.CF}, {S.CF}, {S.T3}
s_xor_b32 {S.T2}, {S.T2}, 1
s_lshl_b32 {S.CT}, {S.T2}, 4
s_mov_b32 {S.C_EPS}, {F(1e-6*LOG2E)}
s_mov_b32 {S.C_LN2}, {F(LN2)}""")
        p.waitall(vm=False)
        for k in range(4):
            p(f"v_permlane16_swap_b32 v{V_RES+4*k}, v{V_RES+4*k+2}\nv_permlane16_swap_b32 v{V_RES+4*k+1}, v{V_RES+4*k+3}")
        g.stamp("p0x",True)
        g.run_list(g.pub_half(0)+g.pub_half(1)); tkx=g.pub_end()
        g.vm(f"buffer_load_dword v{V_FLG}, v{V_ONE}, s[96:99], 0 offen {SC}",8)
        rdma(2); rdma(3)
        ON,CSD=T+12,ACC+32
        for i in range(4): p(f"v_mov_b32 v{ON+i}, 0x3f803f80")
        def proc(r):
            b=ACC+16*(r&1); p.wait(vm=dt[r])
            for nb in range(4):
                for h in range(2): p(f"ds_read_b64_tr_b16 {v(b+4*nb+2*h,2)}, v{RT+nb} offset:{r*4096+h*2048}")
            for nb in range(4): t=g.vm(f"buffer_store_dwordx4 {v(b+4*nb,4)}, v{WT}, {WS}, s{S_TAB+8+4*r+nb} offen {SC}")
            if r<4:
                for nb in range(4): p(f"{MF} {v(CSD+4*nb,4)}, {v(ON,4)}, {v(b+4*nb,4)}, {v(CSD+4*nb,4) if r&1 else '0'}")
            if r in(1,3):
                p(f"s_lshl_b32 {S.T0}, {S.I}, 6\ns_lshl_b32 {S.T1}, {S.J}, 2\ns_add_u32 {S.T0}, {S.T0}, {S.T1}\ns_add_u32 {S.T0}, {S.T0}, {S.W}\ns_lshl_b32 {S.T0}, {S.T0}, 8\ns_add_u32 {S.T0}, {S.T0}, {WS_CS1 if r==3 else WS_CSQ}\nv_lshlrev_b32 v{T+9}, 2, v{V_LANE}")
                for nb in range(1,4): p(f"v_mov_b32_dpp v{CSD}, v{CSD+4*nb} quad_perm:[0,1,2,3] row_mask:{hex(1<<nb)} bank_mask:0xf")
                t=g.vm(f"buffer_store_dword v{CSD}, v{T+9}, {WS}, {S.T0} offen {SC}",16)
            return t
        proc(0); tkc=proc(1)
        p(f"v_readfirstlane_b32 {S.STG}, v{V_FLG}"); p(f"s_cmp_eq_u32 {S.STG}, 0\ns_cbranch_scc1 L_slowi"); p.raw("L_backi:")
        g.slow.append(f"""L_slowi:
buffer_load_dword v{V_FLG}, v{V_ONE}, s[96:99], 0 offen {SC}
s_sub_u32 {S.TO}, {S.TO}, 1
s_cbranch_scc1 L_abort
s_waitcnt vmcnt(0)
v_readfirstlane_b32 {S.STG}, v{V_FLG}
s_nop 0
s_cmp_eq_u32 {S.STG}, 0
s_cbranch_scc1 L_slowi
s_branch L_backi""")
        X2=T+2; hi=S.PAR if o["xm"]!=2 else "0"
        p(f"s_mul_i32 {S.T0}, {S.ST}, {hi}\ns_sub_u32 {S.T1}, {S.ST}, {S.T0}\ns_add_u32 {S.T1}, {S.T1}, 1\nv_mov_b32 v{X2}, {S.T1}\nv_mov_b32 v{X2+1}, {S.T0}"); p.wait(vm=tkx)
        g.vm(f"buffer_atomic_add_x2 {v(X2,2)}, v{V_ONE}, {WS}, {S.RC} offen sc1",8); g.stamp("p0arr",True)
        rdma(4); rdma(5)
        p(f"v_lshlrev_b32 v{T+8}, 16, v{T+8}\nv_add_u32 v{T+10}, {L_B2}, v{T+9}\nds_write_b32 v{T+10}, v{T+8}")
        p.wait(vm=tkc); p("s_barrier"); g.arrive(S.CF,0,tkc); g.stamp("p0col",True)
        proc(2); proc(3); g.poll_issue(S.CF,0); proc(4); proc(5); g.stamp("p0til",True)
        g.poll_check(S.CF,0,S.CT,S.CT); p(f"s_lshl_b32 {S.LDSW}, {S.W}, 12\ns_barrier")
        pl=f"v_mov_b32 v{X2}, 0\nv_mov_b32 v{X2+1}, 0\nbuffer_atomic_add_x2 {v(X2,2)}, v{V_ONE}, {WS}, {S.RC} offen sc0 sc1"
        p(pl); g.pump(o["pre0"])
        def chk():
            rf=f"v_readfirstlane_b32 {S.STG}, v{X2}\nv_readfirstlane_b32 {S.T0}, v{X2+1}\ns_bitcmp0_b32 {S.STG}, 4\ns_cbranch_scc1 L_slowx"
            p(rf); p.raw("L_backx:")
            g.slow.append(f"L_slowx:\n{pl}\ns_sub_u32 {S.TO}, {S.TO}, 1\ns_cbranch_scc1 L_abort\ns_waitcnt vmcnt(0)\n{rf}\ns_branch L_backx")
            g.t=0; g.free_at=0; g.stamp("p1start")
            p(f"s_sub_u32 {S.STG}, {S.STG}, 16\ns_cmp_eq_u32 {hi}, 0\ns_cselect_b32 {S.STG}, {S.STG}, {S.T0}\ns_lshl_b32 {S.ST}, {S.ST}, {4 if o['xm']==2 else 3}")
            p(f"s_cmp_eq_u32 {S.ST}, {S.STG}\ns_cselect_b64 vcc, {-1 if o.get('forceg') else 0}, -1\ns_mov_b32 {S.ST}, 0")
        return chk
    def p1(g,chk,first):
        p=g.p; o=g.o; T=V_T; ACC=V_ACC; L1,LQ=o["L1"],o["LQ"]; sfx="a" if first else "b"
        aK=lambda b:(ACC+8*b,ACC+8*b+4)
        aQ=lambda b:(ACC+16*(b>>1)+4*(b&1),ACC+16*(b>>1)+8+4*(b&1))
        z0=lambda ks,b:"0" if ks==0 else None; key="x1"+sfx; ev="st1"+sfx
        U=g.units("q",key,range(32-L1),range(8),aK,True,z0)
        for b in range(8): U.append(g.ext(256*b,aK(b),True,False,ev))
        U+=g.units("q",key,range(32-L1,32),range(4),aK,True); nK=len(U)-1
        U+=g.units("q",key,range(32-L1,32),range(4,8),aK,True); nV=len(U)-1
        for b in range(8,12): U.append(g.ext(256*b,aQ(b),False,True,ev))
        U[nV+1]["stamp"]="p1q"
        U+=g.units("q",key,range(32-LQ),range(8,12),aQ)
        U+=g.units("q",key,range(32-LQ,32),range(8,10),aQ); nQ0=len(U)-1
        U+=g.units("q",key,range(32-LQ,32),range(10,12),aQ)
        tk={}
        if first:
            side=g.side_stats(False,g.table_load(False,T+16)+[("delay",700)])+g.table_make(False,T+16,tk)
            side+=[("delay",150),("fn",lambda:(p.wait(lg=tk["t"]),g.barrier()))]
        else: side=g.side_stats(False,[("delay",800)])
        side+=[("ev",ev)]
        def phi(x,r,t,n):
            s=[f"v_mul_f32 v{x[i]}, v{x[i]}, v{r[i]}" for i in range(n)]
            s+=[f"v_exp_f32 v{t+i}, v{x[i]} clamp" for i in range(n)]
            s+=[f"v_max_f32 v{x[i]}, {S.C_EPS}, v{x[i]}" for i in range(n)]
            s+=[f"v_fma_f32 v{x[i]}, v{x[i]}, {S.C_LN2}, v{t+i}" for i in range(n)]
            return s
        AW,AR,ARV,FR=T+41,T+42,T+43,T+8
        KF,ZF,VF=ACC,ACC+96,T+16
        ON,ZD,KD=T+32,T+4,T+8
        side+=ins([f"s_add_u32 {S.T0}, {S.LDSW}, {L_SCR}",f"v_add_u32 v{AW}, {S.T0}, v{V_L16}",f"s_lshl_b32 {S.T0}, {S.W}, 10",f"s_add_u32 {S.T0}, {S.T0}, {L_SCR}",
                   f"v_add_u32 v{ARV}, {S.T0}, v{V_L16}",f"v_and_b32 v{AR}, 0xfffffbff, v{ARV}",
                   f"v_and_b32 v{T+44}, 48, v{V_LANE}",f"v_lshl_add_u32 v{T+45}, v{T+44}, 26, v{V_FALL}",f"v_lshl_add_u32 v{T+44}, v{T+44}, 4, v{V_FALL}",
                   f"s_lshl_b32 {S.T1}, {S.W}, 6",f"s_add_u32 {S.T1}, {S.T1}, {S.KV}",f"s_add_u32 {S.T1}, {S.T1}, 8192",f"s_lshl_b32 {S.T0}, {S.W}, 11",f"s_add_u32 {S.T0}, {S.T0}, {S.KV}"])
        side+=ins([f"v_mov_b32 v{ON+i}, 0x3f803f80" for i in range(4)])
        side+=[("at",nK+1)]
        for b in range(4):
            f=FR+4*(b&1)
            for mh in range(2):
                x=[aK(b)[mh]+i for i in range(4)]
                side+=ins(phi(x,[V_LC+4*mh+i for i in range(4)],T,4)+[f"v_cvt_pk_bf16_f32 v{f+2*mh+i}, v{x[2*i]}, v{x[2*i+1]}" for i in range(2)])
            side.append(("fn",lambda b=b,f=f:tk.__setitem__(0,p(f"ds_write_b128 v{AW}, {v(f,4)} offset:{b*1024}"))))
        side+=[("delay",64),("fn",lambda:(p.wait(lg=tk[0]),g.barrier()))]
        for sw in range(4):
            for dh in range(2): side.append(("i",f"ds_read_b128 {v(KF+8*sw+4*dh,4)}, v{AR} offset:{sw*4096+dh*1024}"))
            side.append(("fn",lambda sw=sw:tk.__setitem__(1,p(f"ds_read_b128 {v(ZF+4*sw,4)}, v{ARV} offset:{sw*4096}"))))
        side+=[("delay",64),("fn",lambda:(p.wait(lg=tk[1]),g.barrier()))]
        side+=ins([f"{MF} {v(ZD,4)}, {v(ON,4)}, {v(ZF+4*sw,4)}, {'0' if sw==0 else v(ZD,4)}" for sw in range(4)])
        side+=[("at",nV+1)]
        for b in range(4):
            f=FR+4*(b&1); x=[aK(b+4)[0]+i for i in range(8)]
            side+=ins([f"v_mul_f32 v{x[i]}, v{x[i]}, v{V_LC+i}" for i in range(8)]+[f"v_cvt_pk_bf16_f32 v{f+i}, v{x[2*i]}, v{x[2*i+1]}" for i in range(4)])
            side.append(("fn",lambda b=b,f=f:tk.__setitem__(0,p(f"ds_write_b128 v{AW}, {v(f,4)} offset:{b*1024}"))))
        side+=[("vm",f"buffer_atomic_add_f32 v{ZD}, v{T+45}, {WS}, {S.T1} offen sc1",16)]
        side+=[("delay",40),("fn",lambda:(p.wait(lg=tk[0]),g.barrier()))]
        side+=ins([f"ds_read_b128 {v(VF+4*sw,4)}, v{ARV} offset:{sw*4096}" for sw in range(4)])+[("delay",64)]
        for sw in range(4):
            for dh in range(2): side.append(("i",f"{MF} {v(KD+4*dh,4)}, {v(VF+4*sw,4)}, {v(KF+8*sw+4*dh,4)}, {'0' if sw==0 else v(KD+4*dh,4)}"))
        side+=[("delay",40)]
        for dh in range(2):
            for r in range(4): side.append(("fn",lambda dh=dh,r=r:tk.__setitem__(2,g.vm(f"buffer_atomic_add_f32 v{KD+4*dh+r}, v{T+44}, {WS}, {S.T0} offen offset:{dh*1024+r*64} sc1",24))))
        co=4 if first else 8
        side+=[("delay",o["kvd1"]),("fn",lambda:(p.wait(vm=tk[2]),g.stamp("kvat"),g.barrier(),g.arrive(S.CF,co,tk[2]))),("delay",o["kvd2"]),("fn",lambda:g.poll_issue(S.CF,co))]
        side+=ins([f"v_and_b32 v{T+45}, 48, v{V_LANE}",f"v_lshl_add_u32 v{T+44}, v{V_FALL}, 4, v{T+45}",f"s_add_u32 {S.T0}, {S.KV}, 4096",f"s_add_u32 {S.T1}, {S.KV}, 8192"])
        side+=[("delay",o["kvd3"]),("fn",lambda:(g.poll_check(S.CF,co,S.CT,S.CT),g.barrier(),g.stamp("kvok")))]
        KR=ACC
        for h in range(2):
            for e in range(2):
                for dh in range(2): side.append(("vm",f"buffer_load_dwordx4 {v(KR+24*h+8*e+4*dh,4)}, v{T+44}, {WS}, {S.T0 if h else S.KV} offen offset:{e*2048+dh*1024} {SC}"))
            for dh in range(2): side.append(("vm",f"buffer_load_dwordx4 {v(KR+24*h+16+4*dh,4)}, v{T+45}, {WS}, {S.T1} offen offset:{h*128+dh*64} {SC}",16))
        if first: side+=g.table_load(True,T+20)
        side+=ins([f"s_lshl_b32 {S.T0}, {S.J}, 12",f"s_add_u32 {S.T0}, {S.T0}, {S.OP}",f"s_sub_u32 {S.T0}, {S.T0}, 4096",f"v_mov_b32 v{T+18}, {F(LOG2E)}"])
        PQ=T+8; OD=ACC+96
        for h in range(2):
            side+=[("at",nQ0+1 if (h==0 and LQ) else len(U)-1)]
            if h: side+=[("fn",lambda:g.stamp("p1mf"))]
            for mh in range(2):
                x=[ACC+64+16*h+8*mh+i for i in range(8)]
                side+=ins(phi(x,[T+46+mh]*8,T,8)+[f"v_cvt_pk_bf16_f32 v{PQ+4*mh+i}, v{x[2*i]}, v{x[2*i+1]}" for i in range(4)])
            if h==0:
                for e in range(6): side+=ins([f"v_cvt_pk_bf16_f32 v{KR+8*e+i}, v{KR+8*e+2*i}, v{KR+8*e+2*i+1}" for i in range(4)])
            for e in(2,0,1):
                for mh in range(2): side.append(("i",f"{MF} {v(OD+12*mh+4*e,4)}, {v(KR+24*h+8*e,4)}, {v(PQ+4*mh,4)}, 0"))
            side+=ins([f"v_fma_f32 v{T+16+mh}, v{OD+12*mh+8}, v{T+18}, {S.C_EPS}" for mh in range(2)]+[f"v_rcp_f32 v{T+16+mh}, v{T+16+mh}" for mh in range(2)])
            for mh in range(2):
                d=OD+12*mh
                side+=ins([f"v_mul_f32 v{d+i}, v{d+i}, v{T+16+mh}" for i in range(8)]+[f"v_cvt_pk_bf16_f32 v{d+8+i}, v{d+2*i}, v{d+2*i+1}" for i in range(4)])
                side.append(("fn",lambda d=d,k=2*h+mh:tk.__setitem__(3,g.gstore([f"buffer_store_dwordx4 {v(d+8,4)}, v{V_L16}, {WS}, {S.T0} offen offset:{k*1024}"]))))
        g.stream(U,g.aloads(key,32,S.XP),side,lambda n:(o["vp1"] if n>nK else o["vp0"])+(3 if nV<n<nV+24 or n>nQ0 else 0),chk)
        g.stamp("p1end")
        def pre():
            if first: g.run_list(g.table_make(True,T+20,tk))
            for k in range(16): p(f"v_lshlrev_b32 v{ACC+2*k}, 16, v{V_RES+k}\nv_and_b32 v{ACC+2*k+1}, 0xffff0000, v{V_RES+k}")
            p(f"s_add_u32 {S.XP}, {S.XP}, {XB}\ns_add_u32 {S.XW}, {S.XW}, {XB}\ns_add_u32 {S.STP}, {S.STP}, 0x40000")
            p.waitall(vm=False)
        return g.sync_row(tk[3],1,"p2start",pre,upto=(g.nu//16+8)*4)
    def build(g):
        p=g.p; o=g.o; T=V_T; ACC=V_ACC; L2,L4,LK=o["L2"],o["L4"],o["LK"]
        chk=g.p1(g.p0(),True)
        assert g.nextD==32*4
        p.raw("L_iter:"); p.hist=[]; g.m0dirty=True
        head=dict(n=p.nvm-p.pvm[("v",V_FLG)],dist={s:p.nvm-g.dma_t[s][0] for s in range(24,32)},done=[s for s in range(24,32) if g.dma_t[s][0]<=p.vmdone],ready=[s for s in range(24,32) if s in g.ready])
        aB=lambda bases:(lambda b:(bases[b>>1]+4*(b&1),bases[b>>1]+8+4*(b&1)))
        z0=lambda ks,b:"0" if ks==0 else None
        a2=aB([ACC,ACC+16])
        U=g.units("o","o",range(32-L2),range(4),a2)+g.units("o","o",range(32-L2,32),range(2),a2); n0=len(U)-1
        U+=g.units("o","o",range(32-L2,32),range(2,4),a2)
        side=[]
        for k2 in range(2):
            side+=[("at",n0+1 if(k2==0 and L2) else len(U)-1)]+([("fn",lambda:g.stamp("p2mf"))] if k2 else [])
            side+=ins([f"v_cvt_pk_bf16_f32 v{V_RES+k}, v{ACC+2*k}, v{ACC+2*k+1}" for k in range(8*k2,8*k2+8)])+g.pub_half(k2)
        g.stream(U,g.aloads("o",32,S.OP),side,lambda n:3,chk)
        tk=g.pub_end(); g.stamp("p2end")
        chk=g.sync_row(tk,2,"p3start")
        a3=aB([ACC+16*b for b in range(7)]); U=[]; done={}; b0=0
        for gi,nb in enumerate(o["G3"]):
            nbs=range(2*b0,2*(b0+nb)); ex=[g.ext(4096+256*b,a3(b),False,gi>0,"st3") for b in nbs]
            if gi==0: U+=g.units("1","x3",range(28),nbs,a3,first=z0)+ex+g.units("1","x3",range(28,32),nbs,a3); nA=len(U)-1
            else: U+=ex+g.units("1","x3",range(32),nbs,a3)
            for b in range(b0,b0+nb): done[b]=len(U)-1
            b0+=nb
        nC=len(U)-1; B2R=T+16
        KB=[ACC+112,ACC]; SB=[ACC+16,ACC+32]; a4=aB(KB+SB)
        U+=g.units("2","h",range(56-L4),range(8),a4,first=lambda ks,b:(None if ks or b<4 else "0"))
        U+=g.units("2","h",range(56-L4,56),range(4,8),a4); nS=len(U)-1
        U+=g.units("2","h",range(56-L4,56-LK),range(4),a4)+g.units("2","h",range(56-LK,56),range(2),a4); nK0=len(U)-1
        U+=g.units("2","h",range(56-LK,56),range(2,4),a4)
        assert g.nu==NSL*16
        U[nA+1]["stamp"]="p3b"; U[nC+1]["pre"]="e3"; U[nC+1]["stamp"]="p4start"; U[min(nS+1,len(U)-1)]["stamp"]="p4k"
        lastuse={}
        for n,u in enumerate(U):
            if u["akey"]: lastuse[u["akey"]]=n
        FB=o["FB"]
        evh=lambda ks:"hf%d"%min(i for i,x in enumerate(FB) if ks//8<x)
        Aq=g.aloads("x3",32,S.XP)+g.aloads("h",56,S.HR,ok=lambda ks:(lambda n:n>=lastuse[("x3",ks) if ks<32 else ("h",ks-32)]),ev=evh,sc=o['hsc'])
        side=g.side_stats(True,[("delay",800)])+[("ev","st3")]
        side+=ins([f"v_and_b32 v{T}, 48, v{V_LANE}",f"v_add_u32 v{T}, {L_B2}, v{T}"]+[f"ds_read_b128 {v(B2R+4*b,4)}, v{T} offset:{64*b}" for b in range(4)])
        def cinit(k2):
            l=[]
            for k in range(8):
                d=KB[k2]+2*k; bb=B2R+8*k2+(2*k)%8
                l+=[f"v_lshlrev_b32 v{d}, 16, v{V_RES+8*k2+k}",f"v_and_b32 v{d+1}, 0xffff0000, v{V_RES+8*k2+k}",f"v_add_f32 v{d}, v{d}, v{bb}",f"v_add_f32 v{d+1}, v{d+1}, v{bb+1}"]
            return ins(l)
        side+=[("delay",100)]+cinit(0)
        tk={}; pend=[]; batch=[]
        def tick(lst):
            if pend: lst+=pend.pop(0)
        for b in range(7):
            side.append(("at",done[b]+1))
            for mh in range(2):
                Oo=T+32+8*(b&1)+4*mh; L=V_LC+3*mh
                for c in range(2):
                    x=[ACC+16*b+8*mh+4*c+i for i in range(4)]; t=[T+i for i in range(4)]; l=[]
                    l+=[f"v_mul_f32 v{t[i]}, v{x[i]}, v{x[i]}" for i in range(4)]
                    l+=[f"v_fma_f32 v{t[i]}, v{t[i]}, v{L+1}, v{L}" for i in range(4)]
                    l+=[f"v_mul_f32 v{t[i]}, v{t[i]}, v{x[i]}" for i in range(4)]
                    l+=[f"v_exp_f32 v{t[i]}, v{t[i]}" for i in range(4)]
                    l+=[f"v_fma_f32 v{t[i]}, v{t[i]}, v{L+2}, v{L+2}" for i in range(4)]
                    l+=[f"v_rcp_f32 v{t[i]}, v{t[i]}" for i in range(4)]
                    l+=[f"v_mul_f32 v{t[i]}, v{t[i]}, v{x[i]}" for i in range(4)]
                    l+=[f"v_cvt_pk_bf16_f32 v{Oo+2*c+i}, v{t[2*i]}, v{t[2*i+1]}" for i in range(2)]
                    side+=ins(l); tick(side)
                batch.append((Oo,b,mh))
                if len(batch)>=o["HBT"] or (mh and b+1 in FB):
                    for bb in sorted({x[1] for x in batch}): side.append(("i",f"s_add_u32 {S.T0 if bb&1 else S.T1}, {S.HW}, {bb*16384}"))
                    side.append(("fn",lambda b=b,batch=batch:tk.__setitem__(b,(g.gstore if o["hsc"]==SC else g.hstore)([f"buffer_store_dwordx4 {v(r,4)}, v{V_L16}, {WS}, {S.T0 if bb&1 else S.T1} offen offset:{m*1024}" for r,bb,m in batch]))))
                    batch=[]
            if b==0: side+=cinit(1)
            if b==2: side.append(("ev","e3"))
            if b+1 in FB:
                i=FB.index(b+1)
                while pend: side.append(("delay",400)); tick(side)
                pend=[[],[("fn",lambda b=b,i=i:g.flag(3+i,tk[b]))],[("fn",lambda i=i:g.fpoll(V_FPAR))],
                      [("delay",o.get("hd",150)),("fn",lambda i=i:g.fcheck(V_FPAR,3+i)),("ev",f"hf{i}")]]
        while pend: side.append(("delay",400)); tick(side)
        RX=ACC+48
        side+=ins([f"s_mul_i32 {S.T2}, {S.IT}, {OOB}",f"s_add_u32 {S.T2}, {S.T2}, {XB}",f"s_add_u32 {S.XW}, {S.XW}, {S.T2}",f"s_add_u32 {S.XP}, {S.XP}, {XB}",f"s_add_u32 {S.STP}, {S.STP}, 0x40000"])
        side+=[("at",nS+1 if L4 else nS)]+ins([f"v_cvt_pk_bf16_f32 v{RX+k}, v{SB[0]+2*k}, v{SB[0]+2*k+1}" for k in range(16)])
        side.append(("fn",lambda:tk.__setitem__(8,g.gstore([f"buffer_store_dwordx4 {v(RX+4*k,4)}, v{V_L16}, {WS}, {S.EXW} offen offset:{k*1024}" for k in range(4)]))))
        side+=[("delay",o["exd1"]),("fn",lambda:(g.flag(10,tk[8]) if o["xm"]==2 else g.arrive(S.RCE,32,tk[8]))),("delay",o["exd2"]),("fn",lambda:(g.fpoll(V_FPN) if o["xm"]==2 else g.poll_issue(S.RCE,32))),
               ("delay",o["exd3"]),("fn",lambda:(g.fcheck(V_FPN,10) if o["xm"]==2 else g.poll_check(S.RCE,32,2,2),g.stamp("exok")))]
        for k in range(4): side.append(("fn",lambda k=k:g.vm(f"buffer_load_dwordx4 {v(RX+4*k,4)}, v{V_L16}, {WS}, {S.EXR} offen offset:{k*1024} {SC}")))
        side+=[("delay",o["exd4"])]
        for k in range(16): side+=ins([f"v_lshlrev_b32 v{SB[0]+2*k}, 16, v{RX+k}",f"v_and_b32 v{SB[0]+2*k+1}, 0xffff0000, v{RX+k}"])
        def fin(k2):
            l=[]
            for k in range(8): l+=[f"v_add_f32 v{KB[k2]+2*k}, v{KB[k2]+2*k}, v{SB[k2]+2*k}",f"v_add_f32 v{KB[k2]+2*k+1}, v{KB[k2]+2*k+1}, v{SB[k2]+2*k+1}",
                                   f"v_cvt_pk_bf16_f32 v{V_RES+8*k2+k}, v{KB[k2]+2*k}, v{KB[k2]+2*k+1}"]
            return ins(l)
        side+=[("at",nK0+1 if LK else len(U)-1)]+fin(0)+g.pub_half(0)+[("at",len(U)-1),("fn",lambda:g.stamp("p4mf"))]+fin(1)
        g.stream(U,Aq,side,lambda n:o['vp0'] if n<=nA else o["vp3"] if n<=nC else o["vp4"] if n<=nS else 4.0,chk)
        p(f"s_cmp_eq_u32 {S.IT}, 1\ns_cbranch_scc1 L_final"); saved=list(g.tsq)
        g.run_list(g.pub_half(1)); tk=g.pub_end(); g.stamp("p4end")
        def nxt():
            g.flush_stamps()
            p(f"""s_add_u32 {S.OP}, {S.OP}, {XB}
s_add_u32 {S.HR}, {S.HR}, {HB}
s_add_u32 {S.HW}, {S.HW}, {HB}
s_add_u32 {S.EXR}, {S.EXR}, {4*MB}
s_add_u32 {S.EXW}, {S.EXW}, {4*MB}
s_add_u32 {S.KV}, {S.KV}, {16*KVS}
s_mov_b32 {S.ST}, 16
s_add_u32 {S.RC}, {S.RC}, 64
s_add_u32 {S.RCE}, {S.RCE}, 64
s_mov_b32 {S.IT}, 1""")
        g.p1(g.sync_row(tk,16,"p1start",nxt),False)
        assert g.nextD==(NSL+32)*4
        n=p.nvm-p.pvm[("v",V_FLG)]
        if n<head["n"] or any(p.nvm-g.dma_t[NSL+s][0]<min(d,head["n"]) for s,d in head["dist"].items()): p.waitall(lg=False); print("join: full wait")
        if head["done"]: p.wait(vm=max(g.dma_t[NSL+s][0] for s in head["done"]))
        if any(NSL+s not in g.ready for s in head["ready"]): g.barrier(); print("join: barrier")
        assert all(NSL+s in g.ready for s in head["ready"])
        p("s_nop 3\ns_branch L_iter")
        p.raw("L_final:"); g.rowaddr()
        for k in range(4):
            p(f"v_permlane16_swap_b32 v{V_RES+4*k}, v{V_RES+4*k+2}\nv_permlane16_swap_b32 v{V_RES+4*k+1}, v{V_RES+4*k+3}")
            p(f"buffer_store_dwordx4 {v(V_RES+4*k,4)}, v{T+1}, {TS}, {S.T1 if k&1 else S.T0} offen offset:{64*(k>>1)}")
        g.tsq=saved; g.flush_stamps()
        return g.finish()
    def table(g):
        rows=[]; P=lambda m,ks,nb:g.pos[(m,ks,nb)]*1024
        for par in range(2):
            for mb in range(64):
                i,w=divmod(mb,4); src=[]; pos=[]
                for r in range(2):
                    ks=2*i+r
                    if w<3: src.append(ks*32*RQ+(2048,4096,0)[w]+128*par); pos+=[P("q",ks,4*w+nb) for nb in range(4)]
                    else: src.append(ks*32*R2+128*par); pos+=[P("o",ks,nb) for nb in range(4)]
                for r in range(2):
                    ks=2*i+r
                    if w<3: src.append(ks*32*R1+512*par+128*w); pos+=[P("1",ks,4*w+nb) for nb in range(4)]
                    else: src.append(ks*32*R1+384); pos+=[P("1",ks,12+(nb&1)) if nb>>1==par else OOB for nb in range(4)]
                for r in range(2):
                    q=7*i+min(w+4*r,6); ks,pr=divmod(q,2); b,jj=divmod(ks,8)
                    row=448*jj+224*par+((32+32*b if b<6 else 0) if par else 32*b)
                    src.append(row*R2+128*(pr^par)); pos+=[P("2",ks,4*pr+nb) if w+4*r<7 else OOB for nb in range(4)]
                rows.append(src+[0,0]+pos)
        return ".p2align 7\n.type L_tab,@object\nL_tab:\n"+"".join(".long "+",".join(map(str,r))+"\n" for r in rows)
    def finish(g):
        p=g.p
        if g.o["prof"]:
            p.waitall(); g.stamp("end"); g.flush_stamps(); g.names.remove("end")
            p(f"s_lshl_b32 {S.T0}, s2, 2\ns_add_u32 {S.T0}, {S.T0}, {S.W}\ns_lshl_b32 {S.T0}, {S.T0}, 8\ns_add_u32 {S.T0}, {S.T0}, {WS_TS}\nv_lshlrev_b32 v{V_T}, 2, v{V_LANE}")
            p(f"buffer_store_dword v{V_TS}, v{V_T}, {WS}, {S.T0} offen")
            if g.o.get("dbg"):
                p("s_load_dwordx2 s[96:97], s[0:1], 72\ns_mov_b32 s98, 256\ns_mov_b32 s99, 0x20000"); p.waitall()
                sel=[0,0]+[32*it+(31 if n=="end" else g.names.index(n)) for it,n in g.o["dbg"]]
                for k,l in enumerate(sel[1:],1):
                    p(f"v_readlane_b32 {S.T1}, v{V_TS}, {l}")
                    if k==1: p(f"s_not_b32 {S.T1}, {S.T1}")
                    p(f"v_writelane_b32 v{V_T+1}, {S.T1}, {k}")
                p(f"s_cmp_lg_u32 {S.W}, 0\ns_cbranch_scc1 L_end\ns_mov_b64 exec, {hex((1<<len(sel))-2)}\nbuffer_atomic_umax v{V_T+1}, v{V_T}, s[96:99], 0 offen sc1")
        p.raw("L_abort:\nL_end:\ns_endpgm")
        for s in g.slow: p.raw(s)
        p.raw(g.table())
        hdr=open("cdna_kernels/"+NAME[:-7]+".s.ref").read().split("; Override")[0]
        hdr+=f"; @launch grid=(256,1,1) block=(256,1,1) lds={LDS_BYTES}\n"
        hdr+=f'.amdgcn_target "amdgcn-amd-amdhsa--gfx950"\n.text\n.globl {NAME}\n.p2align 8\n.type {NAME},@function\n'
        kd=f""".section .rodata,"a"
.p2align 6
.amdhsa_kernel {NAME}
  .amdhsa_next_free_vgpr 512
  .amdhsa_next_free_sgpr 102
  .amdhsa_accum_offset 256
  .amdhsa_group_segment_fixed_size 0
  .amdhsa_kernarg_size 88
  .amdhsa_user_sgpr_count 2
  .amdhsa_user_sgpr_kernarg_segment_ptr 1
  .amdhsa_system_sgpr_workgroup_id_x 1
  .amdhsa_float_denorm_mode_32 3
.end_amdhsa_kernel
"""
        return hdr+p.text()+kd
def make(**o):
    g=Gen(**o); s=g.build(); return s,g
if __name__=="__main__":
    o={}
    for x in sys.argv[2:]:
        k,val=x.split("="); o[k]=eval(val)
    s,g=make(**o); open(sys.argv[1],"w").write(s)
    print("bytes",len(s),"lines",s.count("\n"),"nops",g.p.nops,"autowaits",g.p.autow,"est cyc",g.t,"forced",g.forced)
```

```python
import sys, math, struct
from ir import *
NAME="interleave_layers__linear_attn_block__dense_activation_gelu__prompt_kernel"
def f2u(x): return struct.unpack("<I",struct.pack("<f",x))[0]
def F(x): return hex(f2u(x))
LOG2E=1.4426950408889634; LN2=0.6931471805599453
MB=1<<20
WS_ROWF=0; WS_COLF=16384; WS_F0=0x8000; WS_EP=0x6000; WS_CSQ=0x40000; WS_CS1=0x80000; WS_KV=0xc0000; WS_ST=0x140000; WS_TS=0x240000
WS_X=3*MB; XB=4*MB+0x40000; WS_O=WS_X+4*XB; WS_EX=30*MB; WS_H=38*MB; HB=15*MB; WS_WT=68*MB
KVS=8704; WTS=88*16384+2048
OOB=0x40000000
L_SCR=131072; L_EXT1=147456; L_EXT3=L_EXT1+4096; L_B2=L_EXT3+4096; LDS_BYTES=L_B2+256
RQ,R2,R1=6144,2048,7168
class S: pass
_s=["I","J","W","MBk","PAR","T0","T1","T2","T3","U0","U1","LDSW","EP","STG","TO",
    "HW","XW","STP","KV","EXW","EXR","RF","RFW","RFP","CF","CT","AW1","AW2","C_EPS","C_LN2"]
for n,x in enumerate(_s): setattr(S,x,f"s{32+n}")
assert len(_s)<=32
SM='s[100:101]'; SN='s[98:99]'
S_TAB=64
WQ,WO,W1,W2,WS,TS,B1="s[4:7]","s[8:11]","s[12:15]","s[16:19]","s[20:23]","s[24:27]","s[28:31]"
WSP="s[20:21]"
V_L16,V_ONE,V_FALL,V_STAT,V_WP,V_A,V_RD,_,V_EXT,V_FLG,V_TS,V_LANE,V_FPAR,V_FL2,V_XP,V_HP=range(16)
V_CP=44; V_WF=16; V_RES=48; V_XE=64; V_LC=72; V_ACC=80; V_T=208
def icost(t):
    c=0
    for l in t.split("\n"):
        op=l.split()[0]
        c+=8 if (op in TRANS or op.startswith(("v_mfma","global_"))) else 12 if op.startswith("buffer_") else 4
    return c
def v(a,n=1): return f"v{a}" if n==1 else f"v[{a}:{a+n-1}]"
def a_(a,n=4): return f"a[{a}:{a+n-1}]"
MF="v_mfma_f32_16x16x32_bf16"
SC="sc1"
NSL=88
def ins(l): return [("i",x) for x in l]

class Gen:
    def __init__(g,**o):
        g.o=dict(D=6,WE=4,L1=(0,12,12,12),KX=20,LQ=32,L2=20,L3=(0,0,0,0),G3=(3,),L4=(28,30,0,8),FB=(1,2,3,4,5,6,7),cpf=True,HBT=2,xm=4,STG=200,
                 DEPTH=440,LOW=150,LEAD=24,FULL=520,URG=48,COST=72,prof=False,vp0=2.0,vp1=4.0,vpq=5.0,vp2=8.0,vp3=3.4,vp4=2.8,vp5=3,SK=512,half=False,inl=True,ipf=192,sd=1100,l1=128,l2=128,QD=0,QL=48,abl='',
                 rd1=750,rd2=600,rd3=850,ld2=200,ld3=350,LAT0=200,burst=7,kvd1=1100,kvd2=700,kvd3=850,kvd4=600,hd1=800,hd2=800,hd3=750,
                 exd1=750,exd2=600,exd3=850,exd4=600,pre0=4,p0o=0,wnt='nt',xnt='nt',tst='sc1')
        g.o.update(o); g.p=Prog(); g.slow=[]; g.nlab=0; g.tsq=[]; g.names=[]
        g.dma_t={}; g.lastrd={}; g.ready=set(); g.released=set(); g.nextD=0; g.maxD=2*NSL*4; g.t=0; g.free_at=0; g.ev=set()
        g.nu=0; g.pos={}; g.nunit=0; g.forced=0; g.m0dirty=False; g.instream=False; g.nk=0; g.kbase={}; g.nstage=0
    def stamp(g,name,now=False):
        if not g.o["prof"]: return
        if g.o.get("fine") and not(name[0]=="u" or name in("start","end","p3s0","p3s1")): return
        if len(g.tsq)==15 and not now: g.flush_stamps()
        r=S_TAB+6 if now else S_TAB+2*len(g.tsq)
        g.p(f"{'s_memtime' if g.o['prof']=='cy' else 's_memrealtime'} s[{r}:{r+1}]"); g.tsq.append((name,r))
        if now: g.flush_stamps()
    def flush_stamps(g):
        if not g.o["prof"] or not g.tsq: return
        p=g.p; p.waitall(vm=False)
        for name,r in g.tsq:
            assert len(g.names)<64; p(f"v_writelane_b32 v{V_TS}, s{r}, {len(g.names)}"); g.names.append(name)
        g.tsq=[]
    def vm(g,text,cost=None):
        ab=g.o["abl"] if g.instream else ""
        if ("s" in ab and text.startswith("buffer_store_dwordx4") and TS not in text) or ("a" in ab and text.startswith("global_load_dwordx4")) or ("w" in ab and "load_lds" in text) or ("k" in ab and "add_f32" in text): t=g.p.nvm
        else: t=g.p(text)
        c=g.o["COST"] if cost is None else cost
        g.t=max(g.t,g.free_at-g.o["FULL"])
        g.free_at=max(g.free_at,g.t)+c; return t
    def barrier(g):
        p=g.p; p("s_barrier")
        for s,t in g.lastrd.items():
            if t<=p.lgdone: g.released.add(s)
        for s,(t,n) in g.dma_t.items():
            if n==4 and t<=p.vmdone: g.ready.add(s)
    def dma_ok(g):
        s=g.nextD//4
        return g.nextD<g.maxD and (s<8 or (s-8) in g.released)
    def dma_ops(g):
        s,q=divmod(g.nextD,4); g.nextD+=1; p=g.p; ops=[]
        I_=lambda t:ops.append((4,lambda:p(t)))
        if q==0 or g.m0dirty: I_(f"s_add_u32 m0, {S.LDSW}, {(s%8)*16384}")
        if q==0 and s and g.o.get("fakeW"): I_(f"v_add_u32 v{V_WP}, {16384 if s%4 else hex((-3*16384)&0xffffffff)}, v{V_WP}")
        elif q==0 and s: I_(f"v_add_u32 v{V_WP}, {16384 if s!=NSL else hex((16384*(1-NSL))&0xffffffff)}, v{V_WP}")
        g.m0dirty=False
        def go(): g.dma_t[s]=(g.vm(f"global_load_lds_dwordx4 v{V_WP}, {WSP} offset:{q*1024} {SC}"),q+1)
        ops.append((8,go)); return ops
    def dma(g):
        for c,f in g.dma_ops(): f()
    def pump(g,n):
        while n>0 and g.dma_ok(): g.dma(); n-=1
    def arrive(g,r,soff,off,ticket):
        if "p" in g.o["abl"]: return
        p=g.p; p(f"v_mov_b32 v{r}, 1"); p.wait(vm=ticket)
        g.vm(f"buffer_atomic_add v{r}, v{V_ONE}, {WS}, {soff} offen offset:{off} sc1",8)
    def poll_issue(g,r,soff,off):
        if "p" in g.o["abl"]: return
        g.p(f"v_mov_b32 v{r}, 0"); g.vm(f"buffer_atomic_add v{r}, v{V_ONE}, {WS}, {soff} offen offset:{off} sc0 sc1",8)
    def poll_check(g,r,soff,off,target):
        if "c" in g.o["abl"]: return
        p=g.p; n=g.nlab; g.nlab+=1
        p(f"v_readfirstlane_b32 {S.STG}, v{r}"); p(f"s_cmp_lt_u32 {S.STG}, {target}")
        g.retry(n,f"""L_slow{n}:
v_mov_b32 v{r}, 0
buffer_atomic_add v{r}, v{V_ONE}, {WS}, {soff} offen offset:{off} sc0 sc1
s_sub_u32 {S.TO}, {S.TO}, 1
s_cbranch_scc1 L_end
s_waitcnt vmcnt(0)
v_readfirstlane_b32 {S.STG}, v{r}
s_nop 0
s_cmp_lt_u32 {S.STG}, {target}
s_cbranch_scc1 L_slow{n}""")
    def retry(g,n,body):
        p=g.p
        if g.o["inl"]: p(f"s_cbranch_scc0 L_back{n}"); p.raw(body)
        else: p(f"s_cbranch_scc1 L_slow{n}"); g.slow.append(body+f"\ns_branch L_back{n}")
        p.raw(f"L_back{n}:")
    def gstore(g,l,cost=None):
        for x in l:
            t=g.vm(x+" sc1",g.o["STG"] if cost is None else cost)
            if cost is None: g.p.cyc+=48
        return t
    def flag(g,k,ticket):
        if "p" in g.o["abl"]: return
        p=g.p; n=g.nlab; g.nlab+=1; p(f"v_mov_b32 v{V_FLG}, {k}"); p.wait(vm=ticket)
        x=f"buffer_store_dword v{V_FLG}, v{V_ONE}, {WS}, {S.RFW} offen offset:128"
        p(f"s_cbranch_vccnz L_alt{n}"); n0=len(p.out); g.vm(x,8); assert len(p.out)-n0==1
        p.raw(f"L_bk{n}:"); g.slow.append(f"L_alt{n}:\n{x} sc1\ns_branch L_bk{n}")
    def fpoll(g):
        if "p" not in g.o["abl"]: g.vm(f"buffer_load_dword v{V_FLG}, v{V_FPAR}, {WS}, {S.RF} offen offset:128 {SC}",8)
    def fcheck(g,k):
        if "c" in g.o["abl"]: return
        p=g.p; n=g.nlab; g.nlab+=1
        p(f"v_cmp_gt_u32 {SM}, {k}, v{V_FLG}"); p(f"s_cmp_lg_u64 {SM}, 0")
        g.retry(n,f"""L_slow{n}:
buffer_load_dword v{V_FLG}, v{V_FPAR}, {WS}, {S.RF} offen offset:128 {SC}
s_sub_u32 {S.TO}, {S.TO}, 1
s_cbranch_scc1 L_end
s_waitcnt vmcnt(0)
v_cmp_gt_u32 {SM}, {k}, v{V_FLG}
s_nop 0
s_cmp_lg_u64 {SM}, 0
s_cbranch_scc1 L_slow{n}""")
    def panel(g,key,n): g.kbase[key]=g.nk; g.nk+=n
    def areg(g,key,ks): return 8*((g.kbase[key]+ks)%32)
    def unit(g,mat,key,ks,nb,acc,tr,first):
        u=g.nu; g.nu+=1; a=g.areg(key,ks)
        assert g.pos.setdefault((mat,ks,nb),u%(NSL*16))==u%(NSL*16)
        return dict(slot=u//16,rd=(V_RD+(u%128)//64,(u%64)*1024),x=[a_(a),a_(a+4)],acc=acc,tr=tr,first=first,akey=(key,ks))
    def stair(g,U,mat,key,n,blocks,accf,tr=False,first=lambda ks,nb:None,mid=None):
        done={}
        for ks in range(n):
            if mid and ks==mid[0]: U+=mid[1]
            for name,nbs,lag in blocks:
                if ks<n-lag:
                    for nb in nbs: U.append(g.unit(mat,key,ks,nb,accf(nb),tr,first(ks,nb)))
                    done[name]=len(U)-1
        for name,nbs,lag in blocks:
            for ks in range(n-lag,n):
                for nb in nbs: U.append(g.unit(mat,key,ks,nb,accf(nb),tr,first(ks,nb)))
                done[name]=len(U)-1
        return done
    def ext(g,off,accs,tr,first,ev):
        return dict(slot=None,rd=(V_EXT,off),x=[v(V_XE,4),v(V_XE+4,4)],acc=accs,tr=tr,first="0" if first else None,akey=None,ev=ev)
    def stream(g,U,Aq,sides,vpu,lat=550):
        p=g.p; D=g.o["D"]; WE=g.o["WE"]; NF=D+1; N=len(U); base=g.nunit
        firstuse={}; lastu={}; firstu={}
        for n,u in enumerate(U):
            if u["akey"]: firstuse.setdefault(u["akey"],n)
            if u["slot"] is not None: lastu[u["slot"]]=n; firstu.setdefault(u["slot"],n)
        At={}; rd_t={}; st=dict(n=-1,dl=1e9,th=0,c0=0,q=0); mq=[]; g.instream=True; g.stall=0; g.log=[]; g.evlog=[]; g.evt={}
        def tpeek(side,force=False):
            while side:
                it=side[0]
                if it[0]=="at":
                    if st["n"]<it[1]: return None
                elif it[0]=="quiet": st["q"]+=it[1]
                elif it[0]=="wait":
                    if it[1] not in g.ev: return None
                elif it[0]=="since":
                    side[0]=("delay",it[2],g.evt[it[1]]+it[2]); continue
                elif it[0]=="delay":
                    if len(it)==2: side[0]=it=("delay",it[1],g.t+it[1])
                    if g.t<it[2] and not force: return None
                elif it[0]=="ev":
                    if it[1] not in g.ev: g.evlog.append((st["n"],it[1])); g.evt[it[1]]=g.t
                    g.ev.add(it[1])
                else:
                    if it[0]=="vm" and not force and g.free_at-g.t>g.o["DEPTH"]+100: return None
                    return 8 if it[0]=="fn" else icost(it[1])
                side.pop(0)
            return None
        def side_peek(force=False):
            for s_ in reversed(sides): tpeek(s_)
            for k,s_ in enumerate(sides):
                c=tpeek(s_)
                if c is not None: st["th"]=k; return c
            if force:
                dl=[(s_[0][2],k) for k,s_ in enumerate(sides) if s_ and s_[0][0]=="delay"]+[(g.free_at-g.o["DEPTH"]-100,k) for k,s_ in enumerate(sides) if s_ and s_[0][0]=="vm"]
                if dl: t_,k=min(dl); g.stall+=max(t_-g.t,0); g.t=max(g.t,t_); return side_peek(True)
            return None
        def side_emit():
            it=sides[st["th"]].pop(0)
            if it[0]=="fn": it[1]()
            elif it[0]=="vm": g.vm(it[1],it[2] if len(it)>2 else None)
            elif "v" in g.o["abl"] and it[1].startswith(("v_mul_f32","v_fma_f32","v_exp","v_rcp","v_max_f32","v_cvt_pk","v_dot2","v_add_f32")): p.cyc+=icost(it[1])
            else:
                p(it[1])
                if it[1].startswith("v_mfma"): p.cyc+=8
        def until(ev):
            s0=g.stall; k=0
            while True:
                for s_ in reversed(sides): tpeek(s_)
                if ev in g.ev: break
                fill()
                c=side_peek(True)
                if ev in g.ev: break
                assert c is not None,("stuck",ev,st["n"],[x[:2] for x in sides])
                c0=p.cyc; side_emit(); g.t+=p.cyc-c0; st["c0"]+=p.cyc-c0; k+=1
            if k: g.log.append((st["n"],ev,k,g.stall-s0))
        def fill():
            while g.free_at-g.t<g.o["LOW"]:
                refill(True)
                if not mq: break
                flush()
        def flush():
            while mq: mq.pop(0)[1]()
        def nextA():
            x=Aq.pop(0); return x["ops"](At)
        def A_ok(): return Aq and Aq[0]["ok"](st["n"]) and (Aq[0].get("ev") is None or Aq[0]["ev"] in g.ev)
        def refill(force=False):
            if mq: return
            da=firstuse.get(Aq[0]["id"][:2],1e8) if A_ok() else None
            dd=(firstu.get(g.nextD//4,1e9)-D-WE) if g.dma_ok() else None
            if da is None and dd is None: return
            dl=min(x for x in(da,dd) if x is not None)
            if not force and g.free_at-g.t>(g.o["QD"] if st["q"] and dl-st["n"]>g.o["QL"] else g.o["DEPTH"]) and dl-st["n"]>g.o["LEAD"]: return
            st["dl"]=dl
            mq.extend(nextA() if dd is None or (da is not None and da<=dd) else g.dma_ops())
        def rd(n):
            u=U[n]; r=V_WF+4*(n%NF); s=u["slot"]
            if s is None: until(u["ev"])
            elif firstu[s]==n:
                if g.dma_t.get(s,(0,0))[1]<4:
                    flush(); g.forced+=1
                    while g.nextD<4*(s+1):
                        if not g.dma_ok(): p.waitall(vm=False); g.barrier()
                        g.dma()
                if s not in g.ready: p.wait(vm=g.dma_t[s][0])
                g.barrier(); assert s in g.ready
            rd_t[n]=p(f"ds_read_b128 {v(r,4)}, v{u['rd'][0]} offset:{u['rd'][1]}")
            if s is not None and lastu[s]==n: g.lastrd[s]=rd_t[n]
        cr=dict(c=0.0)
        def peek():
            refill()
            if mq: return mq[0][0]
            return side_peek()
        def emit():
            if mq: mq.pop(0)[1]()
            else: cr["c"]-=side_peek(); side_emit()
        for _ in range(g.o['burst']): refill(True); flush()
        for _ in range(40):
            if side_peek() is None: break
            side_emit()
        for n in range(D): rd(n)
        g.t+=lat; g.free_at+=g.o["LAT0"]
        for n,u in enumerate(U):
            st["c0"]=p.cyc; r=V_WF+4*(n%NF)
            if n==N//2: p.raw("@ISLAND@")
            if g.o["ipf"] and n%g.o["ipf"]==0 and n<N-300:
                p(f"s_getpc_b64 s[4:5]\ns_add_u32 s4, s4, s6\ns_addc_u32 s5, s5, 0\ns_load_dword s7, s[4:5], 0\ns_load_dword s8, s[4:5], 64" if g.o.get("ips") else f"s_getpc_b64 s[4:5]\nv_mov_b32 v{V_RD+1}, v{V_RD+1}")
                if not g.o.get("ips"): g.vm(f"global_load_lds_dword v{V_CP}, s[4:5]" if 0 else f"global_load_dword v{V_CP+1}, v{V_CP}, s[4:5]",8)
            if u.get("pre"): until(u["pre"])
            if u.get("stamp"): g.stamp(u["stamp"])
            fine=g.o.get("fine")
            if fine and fine[0]<=base+n<fine[0]+fine[2]*fine[1] and (base+n-fine[0])%fine[1]==0: g.stamp(f"u{base+n}_{g.t}_{p.nvm}")
            tv=None
            for m in range(n,min(N,n+WE-n%WE)):
                w=U[m]
                if w["akey"] and firstuse[w["akey"]]==m:
                    k=w["akey"]+(1,)
                    if m==n and k not in At:
                        flush(); g.forced+=1
                        while k not in At:
                            if Aq[0].get("ev") and Aq[0]["ev"] not in g.ev: until(Aq[0]["ev"]); continue
                            assert Aq[0]["ok"](st["n"]); mq.extend(nextA()); flush()
                        for _ in range(g.o["burst"]-2): refill(True); flush()
                        g.stall+=lat; g.t+=lat; g.free_at+=g.o["LAT0"]; g.log.append((n,"A late",u["akey"]))
                    if k in At and (m==n or n%WE==0): tv=At[k]
            if n%WE==0:
                for m in range(n+D,min(N,n+D+WE)):
                    s=U[m]["slot"]
                    if s is not None and firstu[s]==m and g.dma_t.get(s,(0,0))[1]==4: tv=max(tv or 0,g.dma_t[s][0])
            p.wait(vm=tv,lg=rd_t.get(min(n+WE-1-(n%WE),N-1,n+D-1)))
            cr["c"]=max(min(cr["c"],16),-8)+4*vpu(n)
            def mf(mh):
                acc=v(u["acc"][mh],4); c=u["first"] or acc; w=v(r,4); x=u["x"][mh]
                p(f"{MF} {acc}, {x}, {w}, {c}" if u["tr"] else f"{MF} {acc}, {w}, {x}, {c}")
            wnext=4 if (n+1)%WE==0 else 0
            mf(0); c1=p.cyc; r1=n+D<N
            c=peek()
            if r1 and not(c==8 and wnext): rd(n+D); r1=False
            while True:
                c=peek()
                if c is not None and c<=8-(p.cyc-c1): emit()
                else: break
            mf(1); st["n"]=n; c1=p.cyc
            if r1: rd(n+D)
            while True:
                c=peek()
                if c is None: break
                if c<=8-wnext-(p.cyc-c1) or (mq and (g.free_at-g.t<g.o["LOW"] and st["dl"]-n<g.o["URG"] or st["dl"]-n<g.o["LEAD"]-4)): emit(); continue
                break
            while True:
                c=side_peek()
                if c is None or (cr["c"]<c and st["th"]==len(sides)-1): break
                cr["c"]-=c; side_emit()
            g.t+=max(32,p.cyc-st["c0"])
        g.nunit+=N; flush(); assert not Aq
        st["n"]=1e9
        while side_peek(True) is not None:
            c0=p.cyc; side_emit(); g.t+=p.cyc-c0
    def aloads(g,key,nks,vb,off,ok,ev):
        q=[]; p=g.p
        for ks in range(nks):
            for mh in range(2):
                f=2*ks+mh
                def ops(At,f=f,ks=ks,mh=mh):
                    l=[]
                    if f==0: l.append((4,lambda:p(f"v_add_u32 v{V_A}, {off+4096}, v{vb}")))
                    elif f%8==0 and g.o.get("fakeA"): l.append((4,lambda:p(f"v_add_u32 v{V_A}, 0, v{V_A}")))
                    elif f%8==0: l.append((4,lambda:p(f"v_add_u32 v{V_A}, {8192 if f%16 or nks!=32 else S.AW2 if f==32 else S.AW1}, v{V_A}")))
                    l.append((8,lambda:At.__setitem__((key,ks,mh),g.vm(f"global_load_dwordx4 {a_(g.areg(key,ks)+4*mh)}, v{V_A}, {WSP} offset:{(f%8)*1024-4096} {SC}"))))
                    return l
                q.append(dict(id=(key,ks,mh),ops=ops,ok=ok(g.kbase[key]+ks),ev=ev(ks)))
        return q
    def red4(g,a,b,c,d):
        return [f"v_permlane32_swap_b32 v{a}, v{c}",f"v_permlane32_swap_b32 v{b}, v{d}",f"v_add_f32 v{a}, v{a}, v{c}",f"v_add_f32 v{b}, v{b}, v{d}",
                f"v_permlane16_swap_b32 v{a}, v{b}",f"v_add_f32 v{a}, v{a}, v{b}"]
    def pub_half(g,k2,xi,tk,J=S.J):
        T=V_T; s=ins([f"s_add_u32 {S.T0}, {S.XW}, {WS_X+xi*XB+k2*32768}"])
        s.append(("fn",lambda:tk.__setitem__(("x",k2),g.gstore([f"buffer_store_dwordx4 {v(V_RES+8*k2+4*mh,4)}, v{V_L16}, {WS}, {S.T0} offen offset:{mh*1024}" for mh in range(2)]))))
        if k2==0: s+=[("ev",f"x{xi}s0"),("i",f"v_mov_b32 v{T+4}, 0x3f803f80")]
        for i in range(4):
            for mh in range(2):
                r=V_RES+8*k2+4*mh+i; z=(i==0 and k2==0)
                s+=ins([f"v_dot2_f32_bf16 v{T+2*mh}, v{r}, v{T+4}, {'0' if z else v(T+2*mh)}",f"v_dot2_f32_bf16 v{T+2*mh+1}, v{r}, v{r}, {'0' if z else v(T+2*mh+1)}"])
        if k2:
            s+=ins([f"s_lshl_b32 {S.T0}, {J}, 8",f"s_add_u32 {S.T0}, {S.T0}, {S.STP}",f"s_add_u32 {S.T0}, {S.T0}, {xi*0x40000}"]+g.red4(T,T+1,T+2,T+3))
            s+=[("fn",lambda:tk.__setitem__(("x",k2),g.gstore([f"buffer_store_dword v{T}, v{V_STAT}, {WS}, {S.T0} offen"],16))),("ev",f"x{xi}s1")]
        return s
    def rowstage(g,name,co,tk,key):
        o=g.o; l=[("wait",name),("quiet",1),("since",name,o["rd1"])]
        if o["half"]:
            g.nstage+=1; k=g.nstage
            l+=[("fn",lambda:g.flag(k,tk[key])),("delay",o["ld2"]),("fn",lambda:(g.fpoll(),g.p(f"v_mov_b32 v{V_TS if 0 else V_FLG}, v{V_FLG}") if 0 else None)),("delay",o["ld3"]),("fn",lambda:g.fcheck(k)),("ev",name+"l")]
        l+=[("fn",lambda:g.arrive(V_FLG,S.RF,co,tk[key])),("delay",o["rd2"]),("fn",lambda:g.poll_issue(V_FLG,S.RF,co)),("delay",o["rd3"]),
            ("fn",lambda:(g.poll_check(V_FLG,S.RF,co,16),g.stamp(name))),("quiet",-1),("ev",name+"l"),("ev",name+"r")]
        return l
    def side_stats(g,p3,xi,mid):
        T=V_T; s=ins([f"s_add_u32 {S.T0}, {S.STP}, {xi*0x40000}"])
        for t in range(4): s.append(("vm",f"buffer_load_dwordx4 {v(T+4*t,4)}, v{V_L16}, {WS}, {S.T0} offen offset:{t*1024} {SC}"))
        s+=mid; o=[]
        for c in range(4): o+=[f"v_add_f32 v{T+c}, v{T+c}, v{T+4+c}",f"v_add_f32 v{T+8+c}, v{T+8+c}, v{T+12+c}"]
        for c in range(4): o+=[f"v_add_f32 v{T+c}, v{T+c}, v{T+8+c}"]
        for sw in("32","16"):
            for c in range(4): o+=[f"v_mov_b32 v{T+4+c}, v{T+c}"]
            for c in range(4): o+=[f"v_permlane{sw}_swap_b32 v{T+c}, v{T+4+c}"]
            for c in range(4): o+=[f"v_add_f32 v{T+c}, v{T+c}, v{T+4+c}"]
        for mh in range(2): o+=[f"v_mul_f32 v{T+2*mh}, {F(-1/1024)}, v{T+2*mh}",f"v_mul_f32 v{T+2*mh+1}, {F(1/1024)}, v{T+2*mh+1}"]
        for mh in range(2): o+=[f"v_fma_f32 v{T+2*mh+1}, -v{T+2*mh}, v{T+2*mh}, v{T+2*mh+1}"]
        for mh in range(2): o+=[f"v_max_f32 v{T+2*mh+1}, 0, v{T+2*mh+1}"]
        for mh in range(2): o+=[f"v_add_f32 v{T+2*mh+1}, {F(1e-5)}, v{T+2*mh+1}"]
        for mh in range(2): o+=[f"v_rsq_f32 v{T+4+mh}, v{T+2*mh+1}"]
        for mh in range(2): o+=[f"v_mul_f32 v{T+2*mh+1}, v{T+2*mh+1}, v{T+4+mh}"]
        for mh in range(2):
            m,sg,X=T+2*mh,T+2*mh+1,V_XE+4*mh
            o+=[f"v_cvt_pk_bf16_f32 v{T+6}, v{m}, v{m}",f"v_cvt_pk_bf16_f32 v{T+7}, v{sg}, v{sg}",
                f"v_lshlrev_b32 v{T+8}, 16, v{T+6}",f"v_lshlrev_b32 v{T+9}, 16, v{T+7}",
                f"v_sub_f32 v{T+8}, v{m}, v{T+8}",f"v_sub_f32 v{T+9}, v{sg}, v{T+9}",
                f"v_cvt_pk_bf16_f32 v{T+8}, v{T+8}, v{sg}",f"v_cvt_pk_bf16_f32 v{T+9}, v{T+9}, 0",
                f"v_cndmask_b32 v{X}, 0, v{T+6}, {SN}",f"v_cndmask_b32 v{X+1}, 0, v{T+8}, {SN}",f"v_cndmask_b32 v{X+2}, 0, v{T+9}, {SN}"]
        if p3:
            c0=-2*math.sqrt(2/math.pi)*LOG2E
            for mh in range(2):
                r=T+4+mh; L=V_LC+3*mh
                o+=[f"v_mul_f32 v{L}, {F(c0)}, v{r}",f"v_mul_f32 v{T+6}, v{r}, v{r}",f"v_mov_b32 v{L+2}, v{T+2*mh+1}",
                    f"v_mul_f32 v{T+6}, {F(0.044715)}, v{T+6}",f"v_mul_f32 v{L+1}, v{T+6}, v{L}"]
        else:
            for mh in range(2): o+=[f"v_mul_f32 v{T+46+mh}, {F(LOG2E)}, v{T+4+mh}"]
            o+=[f"v_and_b32 v{T+6}, 48, v{V_LANE}"]
            for mh in range(2):
                for r in range(4): o+=[f"ds_bpermute_b32 v{V_LC+4*mh+r}, v{T+6}, v{T+46+mh} offset:{4*r}"]
        return s+ins(o)
    def table_load(g,p3,T):
        s=ins([f"v_lshrrev_b32 v{T+16}, 4, v{V_LANE}",f"v_lshlrev_b32 v{T+18}, 14, v{T+16}",f"v_lshl_add_u32 v{T+18}, v{V_FALL}, 2, v{T+18}",f"v_add_u32 v{T+17}, v{V_FALL}, v{T+16}",
               f"s_lshl_b32 {S.T2}, {S.J}, 2",f"s_add_u32 {S.T2}, {S.T2}, {S.W}",f"s_lshl_b32 {S.T2}, {S.T2}, 8",f"s_add_u32 {S.T2}, {S.T2}, {WS_CS1 if p3 else WS_CSQ}"])
        for t in range(4):
            s.append(("vm",f"buffer_load_dwordx4 {v(T+4*t,4)}, v{T+18}, {WS}, {S.T2} offen {SC}"))
            if t<3: s.append(("i",f"s_add_u32 {S.T2}, {S.T2}, 65536"))
        if p3:
            s+=ins([f"v_lshlrev_b32 v{T+18}, 1, v{T+17}",f"s_lshl_b32 {S.T3}, {S.PAR}, 6",f"s_lshl_b32 {S.T2}, {S.W}, 7",f"s_add_u32 {S.T2}, {S.T2}, {S.T3}",
                    f"s_cmp_eq_u32 {S.T2}, 448\ns_cselect_b32 {S.T2}, -64, {S.T2}\ns_cselect_b32 {S.T3}, 32, 0",f"v_xor_b32 v{T+17}, {S.T3}, v{T+17}",
                    f"s_mul_i32 {S.T3}, {S.J}, 448",f"s_add_u32 {S.T2}, {S.T2}, {S.T3}"])
            s.append(("vm",f"buffer_load_ushort v{T+19}, v{T+18}, {B1}, {S.T2} offen",16))
        return s
    def table_make(g,p3,T,tk):
        o=[]
        for c in range(4): o+=[f"v_add_f32 v{T+c}, v{T+c}, v{T+4+c}",f"v_add_f32 v{T+8+c}, v{T+8+c}, v{T+12+c}"]
        for c in range(4): o+=[f"v_add_f32 v{T+c}, v{T+c}, v{T+8+c}"]
        o+=g.red4(T,T+1,T+2,T+3)
        o+=[f"v_cvt_pk_bf16_f32 v{T+5}, v{T}, 0",f"s_lshl_b32 {S.T2}, {S.W}, 10",f"v_lshlrev_b32 v{T+8}, 16, v{T+5}",f"v_sub_f32 v{T+8}, v{T}, v{T+8}",
            f"v_cvt_pk_bf16_f32 v{T+4}, v{T}, v{T+8}",f"s_add_u32 {S.T2}, {S.T2}, {L_EXT3 if p3 else L_EXT1}",f"v_mov_b32 v{T+7}, 0"]
        if p3: o+=[f"v_lshl_add_u32 v{T+5}, v{T+19}, 16, v{T+5}",f"v_mov_b32 v{T+6}, v{T+19}"]
        else: o+=[f"v_mov_b32 v{T+6}, 0"]
        o+=[f"v_lshl_add_u32 v{T+17}, v{T+17}, 4, {S.T2}"]
        return ins(o)+[("fn",lambda:tk.__setitem__("t",g.p(f"ds_write_b128 v{T+17}, {v(T+4,4)}")))]
    def run_list(g,l):
        for it in l:
            if it[0]=="i": g.p(it[1])
            elif it[0]=="vm": g.vm(it[1],it[2] if len(it)>2 else None)
            elif it[0]=="fn": it[1]()
    def rowaddr(g,J=S.J):
        T=V_T
        g.p(f"""v_lshlrev_b32 v{T+1}, 9, v{V_FALL}
v_and_b32 v{T+2}, 16, v{V_LANE}
v_lshl_add_u32 v{T+1}, v{T+2}, 1, v{T+1}
v_lshrrev_b32 v{T+2}, 5, v{V_LANE}
v_lshl_add_u32 v{T+1}, v{T+2}, 4, v{T+1}
s_lshl_b32 {S.T0}, {S.MBk}, 16
s_lshl_b32 {S.T1}, {J}, 7
s_add_u32 {S.T0}, {S.T0}, {S.T1}
s_add_u32 {S.T1}, {S.T0}, 32768""")
    def p0(g):
        p=g.p; o=g.o; T=V_T; ACC=V_ACC
        p.raw(f"{NAME}:")
        p(f"s_cmp_ge_u32 s2, 256\ns_cbranch_scc1 L_end")
        p("s_load_dwordx2 s[24:25], s[0:1], 0\ns_load_dwordx2 s[4:5], s[0:1], 8\ns_load_dwordx2 s[8:9], s[0:1], 16\ns_load_dwordx2 s[12:13], s[0:1], 32\ns_load_dwordx2 s[28:29], s[0:1], 40")
        p("s_load_dwordx2 s[16:17], s[0:1], 48\ns_load_dwordx2 s[100:101], s[0:1], 56\ns_load_dwordx2 s[20:21], s[0:1], 80")
        p(f"v_lshrrev_b32 v{T}, 6, v0\nv_and_b32 v{V_LANE}, 63, v0\nv_readfirstlane_b32 {S.W}, v{T}\nv_lshlrev_b32 v{V_L16}, 4, v{V_LANE}\nv_mov_b32 v{V_TS}, 0")
        if o["xm"]==4: p(f"""s_and_b32 {S.PAR}, s2, 1
s_bfe_u32 {S.T0}, s2, 0x20001
s_bfe_u32 {S.T1}, s2, 0x20003
s_lshl_b32 {S.T0}, {S.T0}, 2
s_add_u32 {S.I}, {S.T0}, {S.T1}
s_lshr_b32 {S.T0}, s2, 5
s_lshl_b32 {S.T0}, {S.T0}, 1
s_add_u32 {S.J}, {S.T0}, {S.PAR}""")
        elif o["xm"]==2: p(f"""s_and_b32 {S.I}, s2, 15
s_lshr_b32 {S.J}, s2, 4
s_and_b32 {S.PAR}, {S.J}, 1""")
        elif o["xm"]==8: p(f"""s_and_b32 {S.PAR}, s2, 1
s_bfe_u32 {S.I}, s2, 0x40002
s_lshr_b32 {S.T0}, s2, 6
s_lshl_b32 {S.T0}, {S.T0}, 2
s_and_b32 {S.T1}, s2, 3
s_add_u32 {S.J}, {S.T0}, {S.T1}""")
        p(f"""s_lshl_b32 {S.MBk}, {S.I}, 2
s_add_u32 {S.MBk}, {S.MBk}, {S.W}""")
        g.stamp("start",True)
        p(f"s_lshl_b32 {S.T0}, {S.PAR}, 6\ns_add_u32 {S.T0}, {S.T0}, {S.MBk}\ns_lshl_b32 {S.T0}, {S.T0}, 7\ns_getpc_b64 s[6:7]"); p.raw("L_pc:")
        p(f"s_add_u32 {S.T0}, {S.T0}, L_tab-L_pc\ns_add_u32 s6, s6, {S.T0}\ns_addc_u32 s7, s7, 0")
        p.waitall(vm=False)
        p(f"s_load_dwordx16 s[{S_TAB}:{S_TAB+15}], s[6:7], 0\ns_load_dwordx16 s[{S_TAB+16}:{S_TAB+31}], s[6:7], 64\ns_load_dword {S.EP}, {WSP}, {WS_EP}")
        p(f"v_and_b32 v{T}, 15, v{V_LANE}\nv_lshlrev_b32 v{V_FALL}, 2, v{T}")
        JC,JX="s96","s97"
        p(f"s_lshl_b32 {JC}, {S.W}, 1\ns_xor_b32 {JC}, {JC}, {S.J}\ns_xor_b32 {JX}, {JC}, 1"); g.rowaddr(JX)
        p(f"""s_mov_b32 s26, 0x400000
s_mov_b32 s27, 0x20000
s_mov_b32 s22, 0x10000000
s_mov_b32 s23, 0x20000""")
        p(f"v_mov_b32 v{T+4}, 0\nv_mov_b32 v{T+5}, 0\nv_mov_b32 v{T+6}, 0\nv_mov_b32 v{T+7}, 0\nv_min_u32 v{V_ONE}, 1, v{V_LANE}\nv_lshlrev_b32 v{V_ONE}, 30, v{V_ONE}")
        for k2 in range(2):
            for mh in range(2): g.vm(f"buffer_load_dwordx4 {v(V_RES+8*k2+4*mh,4)}, v{T+1}, {TS}, {S.T1 if mh else S.T0} offen offset:{64*k2} {o['xnt']}")
        if o["cpf"]:
            p(f"s_getpc_b64 s[10:11]\ns_lshr_b32 {S.T2}, s2, 3\ns_lshl_b32 {S.T2}, {S.T2}, 2\ns_add_u32 {S.T2}, {S.T2}, {S.W}\ns_mul_i32 {S.T2}, {S.T2}, 1152\nv_min_u32 v{T+11}, 8, v{V_LANE}\nv_lshl_add_u32 v{T+11}, v{T+11}, 7, {S.T2}\nv_min_u32 v{T+11}, L_tab-L_pc, v{T+11}")
            g.vm(f"global_load_dword v{T+11}, v{T+11}, s[10:11]")
        PA,PB,PC,RT,WT=ACC+64,ACC+68,ACC+72,ACC+76,ACC+80
        p(f"""s_mov_b32 {S.T3}, {RQ}
s_cmp_eq_u32 {S.W}, 3
s_cselect_b32 s8, s8, s4
s_cselect_b32 s9, s9, s5
s_cselect_b32 {S.T3}, {R2}, {S.T3}
s_lshl_b32 s10, {S.T3}, 10
s_mov_b32 s11, 0x20000
s_mov_b32 s14, {1024*R1}
s_mov_b32 s15, 0x20000
s_mov_b32 s18, {3584*R2}
s_mov_b32 s19, 0x20000
s_mov_b32 s30, 7168
s_mov_b32 s31, 0x20000
v_lshrrev_b32 v{T+2}, 3, v{V_LANE}
v_and_b32 v{T+3}, 7, v{V_LANE}
v_and_b32 v{T+9}, 6, v{T+2}
v_xor_b32 v{T+3}, v{T+3}, v{T+9}
v_lshlrev_b32 v{T+3}, 4, v{T+3}
v_mul_u32_u24 v{PA}, {S.T3}, v{T+2}
v_add_u32 v{PA}, v{PA}, v{T+3}
s_lshl_b32 {S.T3}, {S.T3}, 3
s_sub_u32 {S.T3}, {S.T3}, 1024
v_add_u32 v{PA+1}, {S.T3}, v{PA}
v_add_u32 v{PA+2}, {S.T3}, v{PA+1}
v_add_u32 v{PA+3}, {S.T3}, v{PA+2}
s_mul_i32 {S.LDSW}, {S.W}, 24576
s_lshr_b32 {S.T2}, {S.J}, 1
s_mul_i32 {S.T3}, {S.T2}, 896
s_lshr_b32 {S.T2}, {JC}, 1
s_lshl_b32 {S.T2}, {S.T2}, 8""")
        p.waitall(vm=False)
        for r in range(6): p(f"s_add_u32 s{S_TAB+r}, s{S_TAB+r}, {S.T3 if r in(2,3) else S.T2}")
        dt={}
        def rdma(r):
            p(f"s_add_u32 m0, {S.LDSW}, {r*4096}")
            for q in range(4): dt[r]=g.vm(f"buffer_load_dwordx4 v{(PA,PB,PC)[r//2]+q}, {(WO,W1,W2)[r//2]}, s{S_TAB+r} offen offset:{q*1024} {o['wnt']} lds")
        rdma(0); rdma(1)
        for pat,rs in((PC,R2),(PB,R1)):
            p(f"v_mul_u32_u24 v{pat}, {rs}, v{T+2}\nv_add_u32 v{pat}, v{pat}, v{T+3}")
            for q in range(1,4): p(f"v_add_u32 v{pat+q}, {q*(8*rs-1024)}, v{pat}")
        p(f"""s_mul_i32 {S.KV}, {S.J}, {KVS}
s_add_u32 {S.KV}, {S.KV}, {WS_KV}
s_and_b32 {S.T0}, {S.MBk}, 31
s_min_u32 {S.T0}, {S.T0}, 16
s_lshl_b32 {S.T0}, {S.T0}, 9
s_lshr_b32 {S.T1}, {S.MBk}, 5
s_mul_i32 {S.T1}, {S.T1}, {16*KVS}
s_add_u32 {S.T0}, {S.T0}, {S.T1}
s_mul_i32 {S.T1}, {JC}, {KVS}
s_add_u32 {S.T0}, {S.T0}, {S.T1}
s_add_u32 {S.T0}, {S.T0}, {WS_KV}
v_lshlrev_b32 v{T+2}, 3, v{V_LANE}""")
        g.vm(f"buffer_store_dwordx2 {v(T+4,2)}, v{T+2}, {WS}, {S.T0} offen {SC}")
        p(f"s_mov_b32 s24, s100\ns_mov_b32 s25, s101\ns_mov_b32 s26, 2048\nv_lshlrev_b32 v{T+2}, 1, v{V_LANE}\ns_lshl_b32 {S.T0}, {S.J}, 7")
        g.vm(f"buffer_load_ushort v{T+8}, v{T+2}, {TS}, {S.T0} offen")
        p("s_load_dwordx2 s[24:25], s[0:1], 64\ns_mov_b32 s26, 0x400000")
        p(f"""v_lshrrev_b32 v{T+2}, 2, v{V_LANE}
v_and_b32 v{T+3}, 3, v{V_LANE}
v_lshlrev_b32 v{T+3}, 3, v{T+3}
v_lshl_add_u32 v{RT}, v{T+2}, 7, v{T+3}
v_and_b32 v{T+9}, 6, v{T+2}
v_lshl_add_u32 v{RT}, v{T+9}, 4, v{RT}
v_add_u32 v{RT}, {S.LDSW}, v{RT}""")
        for b in range(1,4): p(f"v_xor_b32 v{RT+b}, {32*b}, v{RT}")
        p(f"""v_lshrrev_b32 v{T+2}, 4, v{V_LANE}
v_lshlrev_b32 v{T+2}, 2, v{T+2}
v_lshl_add_u32 v{V_STAT}, v{T}, 4, v{T+2}
v_lshlrev_b32 v{V_EXT}, 4, v{T}
v_add_u32 v{V_EXT}, {L_EXT1}, v{V_EXT}
v_mov_b32 v{V_XE+3}, 0
v_mov_b32 v{V_XE+7}, 0
v_mov_b32 v{V_RD}, v{V_L16}
v_add_u32 v{V_RD+1}, 0x10000, v{V_L16}
s_mul_i32 {S.T2}, {S.J}, {WTS}
s_add_u32 {S.T2}, {S.T2}, {WS_WT}
v_add_u32 v{WT}, {S.T2}, v{V_L16}
s_lshl_b32 {S.T2}, {S.W}, 12
v_add_u32 v{V_WP}, {S.T2}, v{WT}
s_mul_i32 {S.T2}, {JC}, {WTS}
s_add_u32 {S.T2}, {S.T2}, {WS_WT}
v_add_u32 v{WT+1}, {S.T2}, v{V_L16}
s_mov_b32 {S.TO}, 0x40000
s_mul_i32 {S.T2}, {S.MBk}, {65536+o["SK"]}
s_lshl_b32 {S.T3}, {S.PAR}, 15
s_sub_u32 {S.AW1}, 8192, {S.T3}
s_add_u32 {S.AW2}, 8192, {S.T3}
s_lshl_b32 {S.T3}, {S.PAR}, 14
s_add_u32 {S.U0}, {S.T2}, {S.T3}
v_add_u32 v{V_XP}, {S.U0}, v{V_L16}
s_xor_b32 {S.T3}, {S.T3}, 16384
s_add_u32 {S.XW}, {S.T2}, {S.T3}
s_lshr_b32 {S.T3}, {JX}, 1
s_lshl_b32 {S.T3}, {S.T3}, 11
s_add_u32 {S.XW}, {S.XW}, {S.T3}
s_mul_i32 {S.HW}, {S.MBk}, {229376+o["SK"]}
s_mul_i32 {S.T2}, {S.PAR}, 114688
s_add_u32 {S.HW}, {S.HW}, {S.T2}
v_add_u32 v{V_HP}, {S.HW}, v{V_L16}
s_lshr_b32 {S.T2}, {S.J}, 1
s_lshl_b32 {S.T2}, {S.T2}, 11
s_add_u32 {S.HW}, {S.HW}, {S.T2}
s_add_u32 {S.U0}, {S.U0}, {S.T2}
s_lshl_b32 {S.STP}, {S.MBk}, 12
s_add_u32 {S.STP}, {S.STP}, {WS_ST}
s_lshl_b32 {S.T2}, {S.MBk}, 4
s_add_u32 {S.T2}, {S.T2}, {S.J}
s_lshl_b32 {S.EXR}, {S.T2}, 12
s_add_u32 {S.EXR}, {S.EXR}, {WS_EX}
s_xor_b32 {S.EXW}, {S.EXR}, 4096
s_lshl_b32 {S.RF}, {S.MBk}, 8
s_lshl_b32 {S.T2}, {S.J}, 2
s_add_u32 {S.RFW}, {S.RF}, {S.T2}
s_xor_b32 {S.RFP}, {S.RFW}, 4
s_lshl_b32 {S.T2}, {S.PAR}, 2
v_and_b32 v{V_FPAR}, 56, v{V_FALL}
v_add_u32 v{V_FPAR}, {S.T2}, v{V_FPAR}
s_add_u32 {S.EP}, {S.EP}, 1
s_mov_b64 {SN}, 0xffff
s_mov_b64 vcc, -1
s_lshl_b32 {S.CF}, {S.J}, 8
s_add_u32 {S.CF}, {S.CF}, {WS_COLF}
s_min_u32 {S.T2}, {S.W}, 1
s_lshl_b32 {S.T3}, {S.T2}, 30
s_add_u32 {S.CF}, {S.CF}, {S.T3}
s_xor_b32 {S.T2}, {S.T2}, 1
s_lshl_b32 {S.CT}, {S.T2}, 4
s_mov_b32 {S.C_EPS}, {F(1e-6*LOG2E)}
s_mov_b32 {S.C_LN2}, {F(LN2)}""")
        p(f"s_min_u32 {S.T0}, {S.J}, 1\ns_lshl_b32 {S.T0}, {S.T0}, 30\ns_add_u32 {S.T0}, {S.T0}, {S.RF}\nv_lshlrev_b32 v{T+9}, 2, v{V_LANE}")
        g.vm(f"buffer_store_dword v{T+4}, v{T+9}, {WS}, {S.T0} offen {SC}")
        p(f"s_min_u32 {S.T0}, {S.I}, 1\ns_lshl_b32 {S.T0}, {S.T0}, 29\ns_add_u32 {S.T0}, {S.T0}, {S.CF}")
        g.vm(f"buffer_store_dwordx4 {v(T+4,4)}, v{V_ONE}, {WS}, {S.T0} offen {SC}")
        if o["p0o"]>=1: rdma(2)
        p.waitall(vm=False)
        for k in range(4):
            p(f"v_permlane16_swap_b32 v{V_RES+4*k}, v{V_RES+4*k+2}\nv_permlane16_swap_b32 v{V_RES+4*k+1}, v{V_RES+4*k+3}")
        g.stamp("p0x",True)
        g.run_list(g.pub_half(0,0,{})+g.pub_half(1,0,{},JX)); p(f"s_mov_b32 {S.XW}, {S.U0}")
        ON,CSD=T+12,ACC+32
        for i in range(4): p(f"v_mov_b32 v{ON+i}, 0x3f803f80")
        def proc(r):
            b=ACC+16*(r&1); p.wait(vm=dt[r])
            for nb in range(4):
                for h in range(2): p(f"ds_read_b64_tr_b16 {v(b+4*nb+2*h,2)}, v{RT+nb} offset:{r*4096+h*2048}")
            for nb in range(4): t=g.vm(f"buffer_store_dwordx4 {v(b+4*nb,4)}, v{WT if r in(2,3) else WT+1}, {WS}, s{S_TAB+8+4*r+nb} offen {o['tst']}")
            if r<4:
                for nb in range(4): p(f"{MF} {v(CSD+4*nb,4)}, {v(ON,4)}, {v(b+4*nb,4)}, {v(CSD+4*nb,4) if r&1 else '0'}")
            if r in(1,3):
                p(f"s_lshl_b32 {S.T0}, {S.I}, 6\ns_lshl_b32 {S.T1}, {S.J if r==3 else JC}, 2\ns_add_u32 {S.T0}, {S.T0}, {S.T1}\ns_add_u32 {S.T0}, {S.T0}, {S.W}\ns_lshl_b32 {S.T0}, {S.T0}, 8\ns_add_u32 {S.T0}, {S.T0}, {WS_CS1 if r==3 else WS_CSQ}\nv_lshlrev_b32 v{T+9}, 2, v{V_LANE}")
                for nb in range(1,4): p(f"v_mov_b32_dpp v{CSD}, v{CSD+4*nb} quad_perm:[0,1,2,3] row_mask:{hex(1<<nb)} bank_mask:0xf")
                t=g.vm(f"buffer_store_dword v{CSD}, v{T+9}, {WS}, {S.T0} offen {SC}",16)
            return t
        FW,FR,X2=T+16,T+17,T+2
        p(f"""s_lshl_b32 {S.T0}, {S.MBk}, 4
s_add_u32 {S.T0}, {S.T0}, {S.J}
s_lshl_b32 {S.T1}, {JC}, 2
s_add_u32 {S.T1}, {S.T1}, {S.W}
s_lshl_b32 {S.T1}, {S.T1}, 4
s_add_u32 {S.T1}, {S.T1}, {S.I}
s_add_u32 {S.T1}, {S.T1}, 1024
v_mov_b32 v{FW}, {OOB>>3}
v_writelane_b32 v{FW}, {S.T0}, 0
v_writelane_b32 v{FW}, {S.T1}, 1
v_lshlrev_b32 v{FW}, 3, v{FW}
s_lshl_b32 {S.T0}, {S.MBk}, 7
s_lshl_b32 {S.T1}, {S.J}, 2
s_add_u32 {S.T1}, {S.T1}, {S.W}
s_lshl_b32 {S.T1}, {S.T1}, 7
s_add_u32 {S.T1}, {S.T1}, 8192
v_lshl_add_u32 v{FR}, v{V_FALL}, 1, {S.T0}
v_lshl_add_u32 v{X2}, v{V_FALL}, 1, {S.T1}
v_mov_b32_dpp v{FR}, v{X2} quad_perm:[0,1,2,3] row_mask:0xa bank_mask:0xf
s_mov_b32 {S.T3}, {WS_F0}
s_getreg_b32 {S.T2}, hwreg(HW_REG_XCC_ID, 0, 4)
v_mov_b32 v{X2}, {S.EP}
v_mov_b32 v{X2+1}, {S.T2}""")
        if o["p0o"]==0: proc(0); tkc=proc(1); rdma(2); rdma(3)
        elif o["p0o"]==1: proc(0); rdma(3); tkc=proc(1); rdma(4)
        else: rdma(3); proc(0); tkc=proc(1); rdma(4); rdma(5)
        p(f"v_lshlrev_b32 v{T+8}, 16, v{T+8}\nv_add_u32 v{T+10}, {L_B2}, v{T+9}\nds_write_b32 v{T+10}, v{T+8}")
        if o["p0o"]==1: proc(2); rdma(5)
        elif o["p0o"]==2: proc(2); proc(3)
        p.wait(vm=tkc)
        g.vm(f"buffer_store_dwordx2 {v(X2,2)}, v{FW}, {WS}, {S.T3} offen {SC}",8); g.stamp("p0arr",True)
        if o["p0o"]==0: rdma(4); proc(2); rdma(5); proc(3)
        elif o["p0o"]==1: proc(3)
        pl=f"s_mov_b32 exec_hi, 0\nv_mov_b32 v{V_FLG}, 0\nbuffer_atomic_add v{V_FLG}, v{FR}, {WS}, {S.T3} offen sc0 sc1\ns_mov_b32 exec_hi, -1"
        proc(4); p(pl); proc(5); g.stamp("p0til",True)
        rf=f"v_cmp_ne_u32 {SM}, {S.EP}, v{V_FLG}\ns_nop 0\ns_cmp_lg_u32 s100, 0\ns_cbranch_scc1 L_slowx"
        p(rf); p.raw("L_backx:")
        g.slow.append(f"L_slowx:\n{pl}\ns_sub_u32 {S.TO}, {S.TO}, 1\ns_cbranch_scc1 L_end\ns_waitcnt vmcnt(0)\n{rf}\ns_branch L_backx")
        p(f"s_lshl_b32 {S.LDSW}, {S.W}, 12\ns_barrier")
        g.stamp("p1start",True); g.pump(o["pre0"])
        p(f"s_lshl_b32 {S.T0}, {S.MBk}, 7\ns_add_u32 {S.T0}, {S.T0}, {WS_F0+4}\nv_lshlrev_b32 v{FR}, 1, v{V_FPAR}")
        g.vm(f"buffer_load_dword v{V_FLG}, v{FR}, {WS}, {S.T0} offen {SC}",8)
        g.mode=ins([f"s_getreg_b32 {S.T0}, hwreg(HW_REG_XCC_ID, 0, 4)",f"v_cmp_ne_u32 vcc, {S.T0}, v{V_FLG}"]+(["s_mov_b64 vcc, -1"] if o.get("forceg") else []))
        if o["ipf"]:
            assert o["D"]<=6
            p(f"s_lshr_b32 s6, s2, 3\ns_lshl_b32 s6, s6, 2\ns_add_u32 s6, s6, {S.W}\ns_lshl_b32 s6, s6, 7\ns_add_u32 s6, s6, {o.get('ipo',6144)}\nv_mov_b32 v{V_CP}, s6")
        g.t=0; g.free_at=o["pre0"]*o["COST"]
    def build(g):
        p=g.p; o=g.o; T=V_T; g.p0()
        U=[]; Aq=[]; bulk=[]; row=[]; col=[]; marks=[]; pan=[]
        z0=lambda ks,b:"0" if ks==0 else None
        aB=lambda bases:(lambda b:(bases[b>>1]+4*(b&1),bases[b>>1]+8+4*(b&1)))
        def phi(x,r,t,n):
            s=[f"v_mul_f32 v{x[i]}, v{x[i]}, v{r[i]}" for i in range(n)]
            s+=[f"v_exp_f32 v{t+i}, v{x[i]} clamp" for i in range(n)]
            s+=[f"v_max_f32 v{x[i]}, {S.C_EPS}, v{x[i]}" for i in range(n)]
            s+=[f"v_fma_f32 v{x[i]}, v{x[i]}, {S.C_LN2}, v{t+i}" for i in range(n)]
            return s
        sev=lambda nm:(lambda ks:f"{nm}s{ks>>4}{'r' if ks&8 else 'l'}")
        for it in range(2):
            B=lambda x:V_ACC+16*((x+4*it)%8); tk={}; first=it==0; xi=2*it
            key=f"x{xi}"; g.panel(key,32); pan.append((key,32,V_XP,WS_X+xi*XB,(lambda ks:None) if first else sev(key)))
            aK=lambda nb:(B(2*((nb>>1)&1)+(nb>>2))+8*(nb&1),B(2*((nb>>1)&1)+(nb>>2))+8*(nb&1)+4)
            aQ=aB([0]*4+[B(4),B(5)]); ev=f"st1_{it}"; n0=len(U); L1=o["L1"]
            d=g.stair(U,"q",key,32,[("k0",(0,1),L1[0]),("v0",(4,5),L1[1]),("k1",(2,3),L1[2]),("v1",(6,7),L1[3])],aK,True,z0,(o["KX"],[g.ext(256*b,aK(b),True,False,ev) for b in range(8)]))
            U[n0]["stamp"]=f"p1s{it}"
            if it: U[n0]["pre"]="fin0_0"
            marks+=[(n0,"vp0"),(d["k0"]+1,"vp1"),(len(U),"vpq")]; nq=len(U)
            U+=[g.ext(256*b,aQ(b),False,True,ev) for b in range(8,12)]; U[nq]["stamp"]=f"p1q{it}"
            d.update(g.stair(U,"q",key,32,[("q0",(8,9),0),("q1",(10,11),o["LQ"])],aQ))
            if first:
                bulk+=g.side_stats(False,xi,g.table_load(False,T+16)+[("delay",700)])+g.table_make(False,T+16,tk)
                bulk+=g.mode+[("delay",150),("fn",lambda tk=tk:(p.wait(lg=tk["t"]),g.barrier()))]
            else: bulk+=[("wait",key+"s1r")]+g.side_stats(False,xi,[("delay",o["sd"])])
            bulk+=[("ev",ev)]
            FR,PQ,KD,ZD,ON,RC,L2E,AW,ARK,ARV,VAT,VAZ,VLD,VLZ=T+8,T+16,T+24,T+28,T+32,T+36,T+38,T+39,T+40,T+41,T+42,T+43,T+44,T+45
            kvo=it*16*KVS
            bulk+=ins([f"s_add_u32 {S.T0}, {S.LDSW}, {L_SCR}",f"v_add_u32 v{AW}, {S.T0}, v{V_L16}",f"s_lshr_b32 {S.T0}, {S.W}, 1",f"s_and_b32 {S.T1}, {S.W}, 1",
                       f"s_lshl_b32 {S.T2}, {S.T0}, 10",f"s_add_u32 {S.T3}, {S.T2}, {L_SCR}",f"v_add_u32 v{ARK}, {S.T3}, v{V_L16}",
                       f"s_lshl_b32 {S.T3}, {S.T1}, 10",f"s_add_u32 {S.T3}, {S.T3}, {L_SCR+2048}",f"v_add_u32 v{ARV}, {S.T3}, v{V_L16}",
                       f"v_and_b32 v{VLZ}, 48, v{V_LANE}",f"v_lshl_add_u32 v{VLD}, v{V_FALL}, 4, v{VLZ}",
                       f"v_lshl_add_u32 v{VAZ}, v{VLZ}, 25, v{V_FALL}",f"v_lshl_add_u32 v{VAT}, v{VLZ}, 4, v{V_FALL}",
                       f"s_lshl_b32 {S.T3}, {S.T1}, 11",f"s_add_u32 {S.T2}, {S.T2}, {S.T3}",f"v_add_u32 v{VAT}, {S.T2}, v{VAT}",
                       f"s_lshl_b32 {S.T0}, {S.T0}, 6",f"s_lshl_b32 {S.T1}, {S.T1}, 28",f"s_add_u32 {S.T0}, {S.T0}, {S.T1}",f"v_add_u32 v{VAZ}, {S.T0}, v{VAZ}",
                       f"v_mov_b32 v{L2E}, {F(LOG2E)}"]+[f"v_mov_b32 v{ON+i}, 0x3f803f80" for i in range(4)])
            for h in range(2):
                KF,VF=B(2*h),B(2*h+1)
                bulk+=[("at",d[f"k{h}"]+1)]
                for b in range(2):
                    for mh in range(2):
                        x=[KF+8*b+4*mh+i for i in range(4)]
                        bulk+=ins(phi(x,[V_LC+4*mh+i for i in range(4)],T,4)+[f"v_cvt_pk_bf16_f32 v{FR+4*b+2*mh+i}, v{x[2*i]}, v{x[2*i+1]}" for i in range(2)])
                    if h and b==0: bulk.append(("fn",g.barrier))
                    bulk.append(("i",f"ds_write_b128 v{AW}, {v(FR+4*b,4)} offset:{b*1024}"))
                bulk+=ins([f"s_add_u32 {S.T0}, {S.KV}, {kvo+h*4096}",f"s_add_u32 {S.T1}, {S.KV}, {kvo+8192+h*128}"])+[("at",d[f"v{h}"]+1)]
                for b in range(2):
                    x=[VF+8*b+i for i in range(8)]
                    bulk+=ins([f"v_mul_f32 v{x[i]}, v{x[i]}, v{V_LC+i}" for i in range(8)]+[f"v_cvt_pk_bf16_f32 v{FR+4*b+i}, v{x[2*i]}, v{x[2*i+1]}" for i in range(4)])
                    bulk.append(("fn",lambda b=b,tk=tk:tk.__setitem__(0,p(f"ds_write_b128 v{AW}, {v(FR+4*b,4)} offset:{2048+b*1024}"))))
                bulk+=[("delay",o["l1"]),("fn",lambda tk=tk:(p.wait(lg=tk[0]),g.barrier()))]
                for sw in range(4): bulk+=ins([f"ds_read_b128 {v(KF+4*sw,4)}, v{ARK} offset:{sw*4096}",f"ds_read_b128 {v(VF+4*sw,4)}, v{ARV} offset:{sw*4096}"])
                bulk+=[("delay",o["l2"])]
                for sw in range(4): bulk+=ins([f"{MF} {v(KD,4)}, {v(VF+4*sw,4)}, {v(KF+4*sw,4)}, {'0' if sw==0 else v(KD,4)}",f"{MF} {v(ZD,4)}, {v(ON,4)}, {v(KF+4*sw,4)}, {'0' if sw==0 else v(ZD,4)}"])
                bulk+=[("delay",40)]
                for r in range(4): bulk.append(("fn",lambda r=r:g.vm(f"buffer_atomic_add_f32 v{KD+r}, v{VAT}, {WS}, {S.T0} offen offset:{r*64} sc1",24)))
                bulk+=[("fn",lambda h=h,tk=tk:tk.__setitem__(("kv",h),g.vm(f"buffer_atomic_add_f32 v{ZD}, v{VAZ}, {WS}, {S.T1} offen sc1",16))),("ev",f"kva{it}{h}")]
                co=8*it+4*h
                col+=[("wait",f"kva{it}{h}"),("quiet",1),("since",f"kva{it}{h}",o["kvd1"]),("fn",lambda h=h,tk=tk,co=co:(p.wait(vm=tk[("kv",h)]),g.barrier(),g.arrive(V_FL2,S.CF,co,None))),
                      ("delay",o["kvd2"]),("fn",lambda co=co:g.poll_issue(V_FL2,S.CF,co))]+ins([f"s_add_u32 {S.U0}, {S.KV}, {kvo+h*4096}",f"s_add_u32 {S.U1}, {S.KV}, {kvo+8192+h*128}"])
                col+=[("delay",o["kvd3"]),("fn",lambda co=co,nm=f"kv{it}{h}":(g.poll_check(V_FL2,S.CF,co,S.CT),g.barrier(),g.stamp(nm)))]
                for e in range(2):
                    for dh in range(2): col.append(("fn",lambda r=KF+8*e+4*dh,of=e*2048+dh*1024:g.vm(f"buffer_load_dwordx4 {v(r,4)}, v{VLD}, {WS}, {S.U0} offen offset:{of} {SC}")))
                for dh in range(2): col.append(("fn",lambda r=KF+16+4*dh,of=dh*64:g.vm(f"buffer_load_dwordx4 {v(r,4)}, v{VLZ}, {WS}, {S.U1} offen offset:{of} {SC}",16)))
                col+=[("quiet",-1),("ev",f"kvl{it}{h}")]
            if first:
                bulk+=ins([f"s_add_u32 {S.T0}, {S.XW}, {WS_X}",f"s_add_u32 {S.T1}, {S.XW}, {WS_X+32768}"])
                bulk+=[("vm",f"buffer_load_dwordx4 {v(V_RES+4*k,4)}, v{V_L16}, {WS}, {S.T1 if k>1 else S.T0} offen offset:{(k&1)*1024} {SC}") for k in range(4)]+[("delay",600)]
            for k in range(16): bulk+=ins([f"v_lshlrev_b32 v{B(6)+2*k}, 16, v{V_RES+k}",f"v_and_b32 v{B(6)+2*k+1}, 0xffff0000, v{V_RES+k}"])
            bulk+=[("ev",f"ci2_{it}")]
            for h in range(2):
                KR=B(2*h); Q=B(4+h); DN=KR+24
                bulk+=[("at",d[f"q{h}"]+(h==0))]
                for mh in range(2):
                    x=[Q+8*mh+i for i in range(8)]
                    bulk+=ins(phi(x,[T+46+mh]*8,T,8)+[f"v_cvt_pk_bf16_f32 v{PQ+4*mh+i}, v{x[2*i]}, v{x[2*i+1]}" for i in range(4)])
                bulk+=[("i",f"s_add_u32 {S.T0}, {S.XW}, {WS_O+it*XB+h*32768}"),("wait",f"kvl{it}{h}"),("since",f"kvl{it}{h}",o["kvd4"])]
                for e in range(3): bulk+=ins([f"v_cvt_pk_bf16_f32 v{KR+8*e+i}, v{KR+8*e+2*i}, v{KR+8*e+2*i+1}" for i in range(4)])
                for e in(2,0,1):
                    for mh in range(2): bulk.append(("i",f"{MF} {v(DN+4*mh if e==2 else Q+8*mh+4*e,4)}, {v(KR+8*e,4)}, {v(PQ+4*mh,4)}, 0"))
                bulk+=ins([f"v_fma_f32 v{RC+mh}, v{DN+4*mh}, v{L2E}, {S.C_EPS}" for mh in range(2)]+[f"v_rcp_f32 v{RC+mh}, v{RC+mh}" for mh in range(2)])
                for mh in range(2): bulk+=ins([f"v_mul_f32 v{Q+8*mh+i}, v{Q+8*mh+i}, v{RC+mh}" for i in range(8)]+[f"v_cvt_pk_bf16_f32 v{DN+4*mh+i}, v{Q+8*mh+2*i}, v{Q+8*mh+2*i+1}" for i in range(4)])
                bulk+=[("fn",lambda h=h,tk=tk,DN=DN:tk.__setitem__(("o",h),g.gstore([f"buffer_store_dwordx4 {v(DN+4*mh,4)}, v{V_L16}, {WS}, {S.T0} offen offset:{mh*1024}" for mh in range(2)]))),("ev",f"o{it}s{h}")]
                row+=g.rowstage(f"o{it}s{h}",24*it+4*h,tk,("o",h))
            key=f"o{it}"; g.panel(key,32); pan.append((key,32,V_XP,WS_O+it*XB,sev(key))); n0=len(U); marks.append((n0,"vp2"))
            d=g.stair(U,"o",key,32,[(0,(0,1),0),(1,(2,3),o["L2"])],aB([B(6),B(7)])); U[n0]["pre"]=f"ci2_{it}"; U[n0]["stamp"]=f"p2s{it}"
            if first: bulk+=g.table_load(True,T+8)+[("delay",700)]+g.table_make(True,T+8,tk)+[("delay",150),("fn",lambda tk=tk:(p.wait(lg=tk["t"]),g.barrier()))]
            for k2 in range(2):
                bulk+=[("at",d[k2]+(k2==0))]+ins([f"v_cvt_pk_bf16_f32 v{V_RES+k}, v{B(6)+2*k}, v{B(6)+2*k+1}" for k in range(8*k2,8*k2+8)])+g.pub_half(k2,xi+1,tk)
                row+=g.rowstage(f"x{xi+1}s{k2}",24*it+8+4*k2,tk,("x",k2))
            key=f"x{xi+1}"; g.panel(key,32); pan.append((key,32,V_XP,WS_X+(xi+1)*XB,sev(key))); n0=len(U); ev=f"st3_{it}"
            a3=aB([B(b) for b in range(7)]); L3=o["L3"]; b0=len(L3)
            done=g.stair(U,"1",key,32,[(b,(2*b,2*b+1),L3[b]) for b in range(b0)],a3,first=z0,mid=(min(28,32-max(L3)),[g.ext(4096+256*b,a3(b),False,False,ev) for b in range(2*b0)]))
            U[n0]["stamp"]=f"p3s{it}"; U[n0]["pre"]=f"o{it}s1"; marks+=[(n0,"vp0"),(done[0]+1,"vp3")]; nb_=len(U)
            for nb in o["G3"]:
                U+=[g.ext(4096+256*b,a3(b),False,True,ev) for b in range(2*b0,2*(b0+nb))]
                done.update(g.stair(U,"1",key,32,[(b,(2*b,2*b+1),0) for b in range(b0,b0+nb)],a3)); b0+=nb
            assert b0==7; U[nb_]["stamp"]=f"p3b{it}"
            key=f"h{it}"; g.panel(key,56); FB=o["FB"]; L4=o["L4"]
            pan.append((key,56,V_HP,WS_H+it*HB,lambda ks,it=it:"hf%d_%d"%(it,min(i for i,x in enumerate(FB) if ks//8<x))))
            KB=[B(7),B(0)]; SB=[B(1),B(2)]; RX=B(3); B2R=T+16; n0=len(U)
            d=g.stair(U,"2",key,56,[("S0",(4,5),L4[2]),("S1",(6,7),L4[3]),("K0",(0,1),L4[0]),("K1",(2,3),L4[1])],aB(KB+SB),first=lambda ks,b:(None if ks or b<4 else "0"))
            U[n0]["pre"]=f"e3_{it}"; U[n0]["stamp"]=f"p4s{it}"; U[d["S0"]+1]["stamp"]=f"p4k{it}"; marks+=[(n0,"vp4"),(d["S0"]+1,"vp5")]
            bulk+=[("wait",f"x{xi+1}s1r")]+g.side_stats(True,xi+1,[("delay",o["sd"])])+[("ev",ev)]
            bulk+=ins([f"v_and_b32 v{T}, 48, v{V_LANE}",f"v_add_u32 v{T}, {L_B2}, v{T}"]+[f"ds_read_b128 {v(B2R+4*b,4)}, v{T} offset:{64*b}" for b in range(4)])
            def cinit(k2):
                l=[]
                for k in range(8):
                    dd=KB[k2]+2*k; bb=B2R+8*k2+(2*k)%8
                    l+=[f"v_lshlrev_b32 v{dd}, 16, v{V_RES+8*k2+k}",f"v_and_b32 v{dd+1}, 0xffff0000, v{V_RES+8*k2+k}",f"v_add_f32 v{dd}, v{dd}, v{bb}",f"v_add_f32 v{dd+1}, v{dd+1}, v{bb+1}"]
                return ins(l)
            bulk+=[("delay",100)]+cinit(0); batch=[]
            for b in range(7):
                bulk.append(("at",done[b]+1))
                for mh in range(2):
                    Oo=T+32+8*(b&1)+4*mh; L=V_LC+3*mh
                    for c in range(2):
                        x=[B(b)+8*mh+4*c+i for i in range(4)]; t=[T+i for i in range(4)]; l=[]
                        l+=[f"v_mul_f32 v{t[i]}, v{x[i]}, v{x[i]}" for i in range(4)]
                        l+=[f"v_fma_f32 v{t[i]}, v{t[i]}, v{L+1}, v{L}" for i in range(4)]
                        l+=[f"v_mul_f32 v{t[i]}, v{t[i]}, v{x[i]}" for i in range(4)]
                        l+=[f"v_exp_f32 v{t[i]}, v{t[i]}" for i in range(4)]
                        l+=[f"v_fma_f32 v{t[i]}, v{t[i]}, v{L+2}, v{L+2}" for i in range(4)]
                        l+=[f"v_rcp_f32 v{t[i]}, v{t[i]}" for i in range(4)]
                        l+=[f"v_mul_f32 v{t[i]}, v{t[i]}, v{x[i]}" for i in range(4)]
                        l+=[f"v_cvt_pk_bf16_f32 v{Oo+2*c+i}, v{t[2*i]}, v{t[2*i+1]}" for i in range(2)]
                        bulk+=ins(l)
                    batch.append((Oo,b,mh))
                    if len(batch)>=o["HBT"] or (mh and b+1 in FB):
                        for bb in sorted({x[1] for x in batch}): bulk.append(("i",f"s_add_u32 {S.T0 if bb&1 else S.T1}, {S.HW}, {WS_H+it*HB+bb*16384}"))
                        bulk.append(("fn",lambda b=b,batch=batch,tk=tk:tk.__setitem__(("h",b),g.gstore([f"buffer_store_dwordx4 {v(r,4)}, v{V_L16}, {WS}, {S.T0 if bb&1 else S.T1} offen offset:{m*1024}" for r,bb,m in batch]))))
                        batch=[]
                if b+1 in FB:
                    g.nstage+=1; k=g.nstage; bulk.append(("ev",f"hs{it}{b}"))
                    row+=[("wait",f"hs{it}{b}"),("since",f"hs{it}{b}",o["hd1"]),("fn",lambda k=k,b=b,tk=tk:g.flag(k,tk[("h",b)])),("delay",o["hd2"]),("fn",g.fpoll),("delay",o["hd3"]),
                          ("fn",lambda k=k:g.fcheck(k)),("ev",f"hf{it}_{FB.index(b+1)}")]
                if b==0: bulk+=cinit(1)
                if b==2: bulk.append(("ev",f"e3_{it}"))
            for k2 in range(2):
                bulk+=[("i",f"s_add_u32 {S.T0}, {S.EXW}, {it*4*MB}"),("at",d[f"S{k2}"]+1)]+ins([f"v_cvt_pk_bf16_f32 v{RX+8*k2+k}, v{SB[k2]+2*k}, v{SB[k2]+2*k+1}" for k in range(8)])
                bulk+=[("fn",lambda k2=k2,tk=tk,RX=RX:tk.__setitem__(("e",k2),g.gstore([f"buffer_store_dwordx4 {v(RX+8*k2+4*m,4)}, v{V_L16}, {WS}, {S.T0} offen offset:{(2*k2+m)*1024}" for m in range(2)]))),("ev",f"es{it}{k2}")]
                col+=[("wait",f"es{it}{k2}"),("since",f"es{it}{k2}",o["exd1"]),("fn",lambda k2=k2,tk=tk:g.arrive(V_FL2,S.RFW,64,tk[("e",k2)])),("delay",o["exd2"]),("fn",lambda:g.poll_issue(V_FL2,S.RFP,64)),
                      ("i",f"s_add_u32 {S.U0}, {S.EXR}, {it*4*MB}"),("delay",o["exd3"]),("fn",lambda c=2*it+k2+1,nm=f"ex{it}{k2}":(g.poll_check(V_FL2,S.RFP,64,c),g.stamp(nm)))]
                col+=[("fn",lambda r=RX+8*k2+4*m,of=(2*k2+m)*1024:g.vm(f"buffer_load_dwordx4 {v(r,4)}, v{V_L16}, {WS}, {S.U0} offen offset:{of} {SC}")) for m in range(2)]+[("ev",f"el{it}{k2}")]
            if it: bulk.append(("fn",g.rowaddr))
            for k2 in range(2):
                bulk+=[("wait",f"el{it}{k2}"),("since",f"el{it}{k2}",o["exd4"])]
                for k in range(8): bulk+=ins([f"v_lshlrev_b32 v{SB[k2]+2*k}, 16, v{RX+8*k2+k}",f"v_and_b32 v{SB[k2]+2*k+1}, 0xffff0000, v{RX+8*k2+k}"])
                bulk+=[("at",d[f"K{k2}"]+(k2==0))]
                for k in range(8): bulk+=ins([f"v_add_f32 v{KB[k2]+2*k}, v{KB[k2]+2*k}, v{SB[k2]+2*k}",f"v_add_f32 v{KB[k2]+2*k+1}, v{KB[k2]+2*k+1}, v{SB[k2]+2*k+1}",
                                              f"v_cvt_pk_bf16_f32 v{V_RES+8*k2+k}, v{KB[k2]+2*k}, v{KB[k2]+2*k+1}"])
                bulk+=[("ev",f"fin{it}_{k2}")]
                if it==0: bulk+=g.pub_half(k2,2,tk); row+=g.rowstage(f"x2s{k2}",16+4*k2,tk,("x",k2))
                else:
                    for k in(2*k2,2*k2+1):
                        bulk+=ins([f"v_permlane16_swap_b32 v{V_RES+4*k}, v{V_RES+4*k+2}",f"v_permlane16_swap_b32 v{V_RES+4*k+1}, v{V_RES+4*k+3}"])
                        bulk+=[("fn",lambda k=k:g.vm(f"buffer_store_dwordx4 {v(V_RES+4*k,4)}, v{T+1}, {TS}, {S.T1 if k&1 else S.T0} offen offset:{64*(k>>1)}"))]
            assert g.nu==NSL*16*(it+1)
        lastuse={}
        for n,u in enumerate(U):
            if u["akey"]: lastuse[g.kbase[u["akey"][0]]+u["akey"][1]]=n
        for key,n,vb,off,ev in pan: Aq+=g.aloads(key,n,vb,off,lambda k:(lambda n:k<32 or n>=lastuse[k-32]),ev)
        vp=[0]*len(U)
        for (n,nm),(m,_) in zip(marks,marks[1:]+[(len(U),0)]): vp[n:m]=[o[nm]]*(m-n)
        g.stream(U,Aq,[row,col,bulk],lambda n:vp[n])
        assert not(row or col or bulk),(row[:2],col[:2],bulk[:2])
        p(f"s_add_u32 {S.T2}, s2, {S.W}\ns_min_u32 {S.T2}, {S.T2}, 1\ns_lshl_b32 {S.T2}, {S.T2}, 30\ns_add_u32 {S.T2}, {S.T2}, {WS_EP}\nv_mov_b32 v{V_FLG}, {S.EP}")
        p(f"buffer_store_dword v{V_FLG}, v{V_ONE}, {WS}, {S.T2} offen")
        return g.finish()
    def table(g):
        rows=[]; P=lambda m,ks,nb:g.pos[(m,ks,nb)]*1024
        for par in range(2):
            for mb in range(64):
                i,w=divmod(mb,4); src=[]; pos=[]
                for r in range(2):
                    ks=2*i+r; kp=r*16+((i&1)^par)*8+(i>>1)
                    if w<3: src.append(ks*32*RQ+(2048,4096,0)[w]+128*par); pos+=[P("q",kp,4*w+nb) for nb in range(4)]
                    else: src.append(ks*32*R2+128*par); pos+=[P("o",kp,nb) for nb in range(4)]
                for r in range(2):
                    ks=2*i+r; kp=r*16+((i&1)^par)*8+(i>>1)
                    if w<3: src.append(ks*32*R1+512*par+128*w); pos+=[P("1",kp,4*w+nb) for nb in range(4)]
                    else: src.append(ks*32*R1+384); pos+=[P("1",kp,12+(nb&1)) if nb>>1==par else OOB for nb in range(4)]
                for r in range(2):
                    q=7*i+min(2*w+r,6); ks,pr=divmod(q,2); b,jj=divmod(ks,8)
                    row=448*jj+224*par+((32+32*b if b<6 else 0) if par else 32*b)
                    src.append(row*R2+128*(pr^par)); pos+=[P("2",ks,4*pr+nb) if 2*w+r<7 else OOB for nb in range(4)]
                rows.append(src+[0,0]+pos)
        return ".p2align 7\n.type L_tab,@object\nL_tab:\n"+"".join(".long "+",".join(map(str,r))+"\n" for r in rows)
    def finish(g):
        p=g.p
        if g.o["prof"]:
            p.waitall(); g.stamp("end"); g.flush_stamps()
            p(f"s_lshl_b32 {S.T0}, s2, 2\ns_add_u32 {S.T0}, {S.T0}, {S.W}\ns_lshl_b32 {S.T0}, {S.T0}, 8\ns_add_u32 {S.T0}, {S.T0}, {WS_TS}\nv_lshlrev_b32 v{V_T}, 2, v{V_LANE}")
            p(f"buffer_store_dword v{V_TS}, v{V_T}, {WS}, {S.T0} offen")
            if g.o.get("dbg"):
                p("s_load_dwordx2 s[96:97], s[0:1], 72\ns_mov_b32 s98, 256\ns_mov_b32 s99, 0x20000"); p.waitall()
                sel=[0,0]+[g.names.index(n) for n in g.o["dbg"]]
                for k,l in enumerate(sel[1:],1):
                    p(f"v_readlane_b32 {S.T1}, v{V_TS}, {l}")
                    if k==1: p(f"s_not_b32 {S.T1}, {S.T1}")
                    p(f"v_writelane_b32 v{V_T+1}, {S.T1}, {k}")
                p(f"s_cmp_lg_u32 {S.W}, 0\ns_cbranch_scc1 L_end\ns_mov_b64 exec, {hex((1<<len(sel))-2)}\nbuffer_atomic_umax v{V_T+1}, v{V_T}, s[96:99], 0 offen sc1")
        if g.o.get("diag"):
            nm,tk=g.o["diag"]
            p(f"v_readlane_b32 {S.T1}, v{V_TS}, {g.names.index(nm)}"); p.raw(f"L_dg:\ns_memrealtime s[4:5]\ns_waitcnt lgkmcnt(0)\ns_sub_u32 s4, s4, {S.T1}\ns_cmp_lt_u32 s4, {tk}\ns_cbranch_scc1 L_dg")
        p.raw("s_endpgm")
        p.out[p.out.index("@ISLAND@")]="s_branch L_over\nL_end:\ns_endpgm\n"+"\n".join(g.slow)+"\nL_over:"
        p.raw(g.table())
        hdr=open("cdna_kernels/"+NAME[:-7]+".s.ref").read().split("; Override")[0]
        hdr+=f"; @launch grid=(256,1,1) block=(256,1,1) lds={LDS_BYTES}\n"
        hdr+=f'.amdgcn_target "amdgcn-amd-amdhsa--gfx950"\n.text\n.globl {NAME}\n.p2align 8\n.type {NAME},@function\n'
        kd=f""".section .rodata,"a"
.p2align 6
.amdhsa_kernel {NAME}
  .amdhsa_next_free_vgpr 512
  .amdhsa_next_free_sgpr 102
  .amdhsa_accum_offset 256
  .amdhsa_group_segment_fixed_size 0
  .amdhsa_kernarg_size 88
  .amdhsa_user_sgpr_count 2
  .amdhsa_user_sgpr_kernarg_segment_ptr 1
  .amdhsa_system_sgpr_workgroup_id_x 1
  .amdhsa_float_denorm_mode_32 3
.end_amdhsa_kernel
"""
        return hdr+p.text()+kd
def make(**o):
    g=Gen(**o); s=g.build(); return s,g
if __name__=="__main__":
    o={}
    for x in sys.argv[2:]:
        k,val=x.split("="); o[k]=eval(val)
    s,g=make(**o); open(sys.argv[1],"w").write(s)
    print("bytes",len(s),"lines",s.count("\n"),"nops",g.p.nops,"autowaits",g.p.autow,"est cyc",g.t,"forced",g.forced,"stall",g.stall); print(g.log)
```

```python
import re
TRANS=("v_exp_f32","v_log_f32","v_rcp_f32","v_rsq_f32","v_sqrt_f32","v_sin_f32","v_cos_f32")
_rx=re.compile(r"^(-|abs\()?([vas])(?:(\d+)|\[(\d+):(\d+)\])\)?$")
def regs(op):
    op=op.strip()
    if op in("vcc","exec","m0","scc"): return [op]
    if op in("vcc_lo","vcc_hi"): return ["vcc"]
    if op in("exec_lo","exec_hi"): return ["exec"]
    m=_rx.match(op)
    if not m: return []
    k=m.group(2)
    if m.group(3) is not None: return [(k,int(m.group(3)))]
    return [(k,i) for i in range(int(m.group(4)),int(m.group(5))+1)]
class I:
    __slots__=("text","op","kind","rd","wr","srcs","states","wide","lds")
    def __init__(s,text):
        s.text=text; p=text.split(None,1); s.op=p[0]; rest=p[1] if len(p)>1 else ""
        ops=[]
        for x in rest.split(","):
            x=x.strip()
            if x: ops.append(x.split()[0])
        op=s.op; s.states=1; s.wide=False; s.lds=False; s.srcs=[]
        R=lambda l:[r for o in l for r in regs(o)]
        if op.endswith(":") or op.startswith("."): s.kind="label"; s.rd=[]; s.wr=[]; s.states=0
        elif op=="s_nop": s.kind="nop"; s.rd=[]; s.wr=[]; s.states=int(ops[0])+1
        elif op.startswith("v_mfma"):
            s.kind="mfma"; s.wr=R(ops[:1]); s.srcs=[regs(o) for o in ops[1:4]]; s.rd=R(ops[1:4])
        elif op.startswith("buffer_load"):
            s.kind="vmem"; s.lds=(" lds" in text)
            if s.lds: s.wr=[]; s.rd=R(ops)+["m0"]
            else: s.wr=R(ops[:1]); s.rd=R(ops[1:])
        elif op.startswith("global_load"):
            s.kind="vmem"; s.lds=("_lds_" in op)
            if s.lds: s.wr=[]; s.rd=R(ops)+["m0"]
            else: s.wr=R(ops[:1]); s.rd=R(ops[1:])
        elif op.startswith("buffer_store") or op.startswith("buffer_atomic"):
            s.kind="vmem"; s.wr=[]; s.rd=R(ops); s.wide=op.endswith("x4") or op.endswith("x3"); s.srcs=[regs(ops[0])]
            if op.startswith("buffer_atomic") and " sc0" in text: s.wr=R(ops[:1])
        elif op.startswith("ds_read") or op.startswith("ds_bpermute"):
            s.kind="ds"; s.wr=R(ops[:1]); s.rd=R(ops[1:])
        elif op.startswith("ds_write"): s.kind="ds"; s.wr=[]; s.rd=R(ops)
        elif op.startswith("v_"):
            s.kind="valu"
            if op.startswith("v_permlane"): s.wr=R(ops[:2]); s.rd=R(ops[:2])
            elif op.startswith("v_writelane") or op.startswith("v_fmac") or op.startswith("v_dot2c"): s.wr=R(ops[:1]); s.rd=R(ops)
            elif op.endswith("_dpp"): s.wr=R(ops[:1]); s.rd=R(ops)
            else: s.wr=R(ops[:1]); s.rd=R(ops[1:])
            s.srcs=[regs(o) for o in ops[1:]]
        elif op.startswith("s_"):
            s.kind="salu"
            if op in("s_waitcnt","s_barrier","s_sleep","s_endpgm","s_setprio","s_branch") : s.rd=[]; s.wr=[]
            elif op.startswith("s_cbranch"): s.rd=["vcc"] if "vcc" in op else []; s.wr=[]
            elif op.startswith(("s_cmp","s_bitcmp")): s.rd=R(ops); s.wr=[]
            elif op.startswith("s_load") or op.startswith("s_mem"): s.kind="smem"; s.wr=R(ops[:1]); s.rd=R(ops[1:])
            else: s.wr=R(ops[:1]); s.rd=R(ops[1:])
        else: raise ValueError(text)
def isv(r): return isinstance(r,tuple) and r[0] in "va"
def iss(r): return r=="vcc" or (isinstance(r,tuple) and r[0]=="s")
def need(p,c):
    n=0; pw=set(p.wr); crd=set(c.rd); cwr=set(c.wr)
    if p.kind=="mfma":
        pas=4 if "16x16x32" in p.op else 8
        if c.kind=="mfma":
            if pw&(set(c.srcs[0])|set(c.srcs[1])): n=max(n,pas+4)
            if pw&set(c.srcs[2]) and p.wr!=c.srcs[2]: n=max(n,pas+2)
            if pw&cwr and p.wr!=c.srcs[2]: n=max(n,pas+2)
        elif c.kind in("valu","vmem","ds"):
            if pw&(crd|cwr): n=max(n,pas+4)
            if set(p.srcs[2])&cwr: n=max(n,pas-1)
    elif p.kind=="valu":
        wv={r for r in pw if isv(r)}; ws={r for r in pw if iss(r)}
        if c.kind=="mfma" and wv&crd: n=max(n,3 if p.op.startswith("v_dot2") else 2)
        if c.kind=="valu":
            if wv&crd:
                if c.op.startswith("v_permlane") or c.op.endswith("_dpp"): n=max(n,2)
                if c.op.startswith("v_readlane") or c.op.startswith("v_readfirstlane"): n=max(n,1)
                if p.op in TRANS or "op_sel" in p.text or "sdwa" in p.op: n=max(n,1)
            if p.op.startswith("v_dot2") and wv&(crd|cwr):
                if c.op!=p.op or wv&(set(c.srcs[0])|set(c.srcs[1])): n=max(n,3)
            if ws&crd: n=max(n,4 if c.op.startswith(("v_readlane","v_writelane")) else 2)
        if c.kind in("vmem","ds") and p.op.startswith("v_dot2") and wv&crd: n=max(n,3)
        if c.kind in("vmem","ds") and p.op in TRANS and wv&crd: n=max(n,1)
        if c.kind=="vmem" and ws&crd: n=max(n,5)
        if c.kind in("salu","smem") and ws&crd: n=max(n,1)
    elif p.kind=="salu":
        if "m0" in pw and "m0" in crd and c.kind in("vmem","valu"): n=max(n,1)
    elif p.kind=="vmem":
        if p.wide and set(p.srcs[0])&cwr: n=max(n,2)
    return n
class Prog:
    def __init__(s):
        s.out=[]; s.hist=[]; s.nvm=0; s.nlg=0; s.vmdone=0; s.lgdone=0; s.pvm={}; s.plg={}; s.nops=0; s.cyc=0; s.autow=0; s.vseen=False; s.dseen=False; s.gap0=0; s.pen=0
    def raw(s,text): s.out.append(text)
    def _put(s,i):
        s.out.append(i.text)
        if i.states: s.hist.append(i); s.hist=s.hist[-24:]
        s.cyc+= 8 if (i.kind=="mfma" or i.op in TRANS or i.op.startswith("buffer_")) else 4*i.states
        if i.kind in("vmem","ds") and s.vseen: s.cyc+=8; s.pen+=1; s.vseen=False
        if i.op.startswith("v_dot2") and not s.dseen: s.cyc+=16; s.dseen=True
        if i.kind=="valu": s.vseen=True
        if i.kind=="mfma": s.vseen=False; s.dseen=False; s.gap0=s.cyc
    def wait(s,vm=None,lg=None):
        parts=[]
        if vm is not None and vm>s.vmdone:
            n=min(s.nvm-vm,63); parts.append(f"vmcnt({n})"); s.vmdone=s.nvm-n
        if lg is not None and lg>s.lgdone:
            n=min(s.nlg-lg,15); parts.append(f"lgkmcnt({n})"); s.lgdone=s.nlg-n
        if parts: s._put(I("s_waitcnt "+" ".join(parts)))
        return bool(parts)
    def waitall(s,vm=True,lg=True):
        p=[]
        if vm: p.append("vmcnt(0)"); s.vmdone=s.nvm
        if lg: p.append("lgkmcnt(0)"); s.lgdone=s.nlg
        s._put(I("s_waitcnt "+" ".join(p)))
    def __call__(s,text):
        t=None
        for l in text.split("\n"):
            l=l.split(";")[0].strip()
            if l: t=s.one(l)
        return t
    def prep(s,text):
        s.one(text,True)
    def one(s,text,dry=False):
        i=I(text)
        touched=list(i.rd)+list(i.wr)
        vm=max([s.pvm.get(r,0) for r in touched]+[0]); lg=max([s.plg.get(r,0) for r in touched]+[0])
        if s.wait(vm or None,lg or None): s.autow+=1
        d=0; k=0
        for p in reversed(s.hist):
            k=max(k,need(p,i)-d); d+=p.states
            if d>=14: break
        if k>0: s.nops+=k; s._put(I(f"s_nop {k-1}"))
        if dry: return
        s._put(i)
        if i.kind=="vmem":
            s.nvm+=1
            for r in i.wr: s.pvm[r]=s.nvm
            return s.nvm
        if i.kind=="ds":
            s.nlg+=1
            for r in i.wr: s.plg[r]=s.nlg
            return s.nlg
    def text(s): return "\n".join(s.out)+"\n"
```

```python
import sys, math, struct
from ir import *
NAME="interleave_layers__linear_attn_block__dense_activation_gelu__prompt_kernel"
def f2u(x): return struct.unpack("<I",struct.pack("<f",x))[0]
def F(x): return hex(f2u(x))
LOG2E=1.4426950408889634; LN2=0.6931471805599453
MB=1<<20
WS_ROWF=0; WS_COLF=16384; WS_F0=0x8000; WS_EP=0x6000; WS_CSQ=0x40000; WS_CS1=0x80000; WS_KV=0xc0000; WS_ST=0x140000; WS_TS=0x240000
WS_X=3*MB; XB=4*MB+0x40000; WS_O=WS_X+4*XB; WS_EX=30*MB; WS_H=38*MB; HB=15*MB; WS_WT=68*MB
KVS=8704; WTS=88*16384+2048
OOB=0x40000000
L_SCR=131072; L_EXT1=147456; L_EXT3=L_EXT1+4096; L_B2=L_EXT3+4096; LDS_BYTES=L_B2+256
RQ,R2,R1=6144,2048,7168
class S: pass
_s=["I","J","W","MBk","PAR","T0","T1","T2","T3","U0","U1","LDSW","EP","STG","TO",
    "HW","XW","STP","KV","EXW","EXR","RF","RFW","RFP","CF","CT","AW1","AW2","C_EPS","C_LN2"]
for n,x in enumerate(_s): setattr(S,x,f"s{32+n}")
assert len(_s)<=32
SM='s[100:101]'; SN='s[98:99]'
S_TAB=64
WQ,WO,W1,W2,WS,TS,B1="s[4:7]","s[8:11]","s[12:15]","s[16:19]","s[20:23]","s[24:27]","s[28:31]"
WSP="s[20:21]"
V_L16,V_ONE,V_FALL,V_STAT,V_WP,V_A,V_RD,_,V_EXT,V_FLG,V_TS,V_LANE,V_FPAR,V_FL2,V_XP,V_HP=range(16)
V_CP=44; V_WF=16; V_RES=48; V_XE=64; V_LC=72; V_ACC=80; V_T=208
def icost(t):
    c=0
    for l in t.split("\n"):
        op=l.split()[0]
        c+=8 if (op in TRANS or op.startswith(("v_mfma","buffer_"))) else 4
    return c
def ismem(it): return it[0] in("vm","mem") or (it[0]=="i" and it[1].startswith(("ds_","buffer_","global_")))
def v(a,n=1): return f"v{a}" if n==1 else f"v[{a}:{a+n-1}]"
def a_(a,n=4): return f"a[{a}:{a+n-1}]"
MF="v_mfma_f32_16x16x32_bf16"
SC="sc1"
NSL=88
def ins(l): return [("i",x) for x in l]

def wave(stages,n,tail):
    l=[]
    for t in range(n+len(stages)):
        for s_,f in enumerate(stages):
            if 0<=t-s_<n: l.append(f(t-s_))
        if 0<=t-len(stages)<n: l+=tail(t-len(stages))
    return l

class Gen:
    def __init__(g,**o):
        g.o=dict(D=6,WE=4,L1=(0,14,14,14),KX=18,LQ=32,L2=20,L3=(0,0,0,0),G3=(3,),L4=(28,30,0,8),FB=(1,2,3,4,5,6,7),cpf=True,HBT=2,xm=4,STG=200,
                 DEPTH=440,LOW=150,LEAD=24,FULL=520,URG=48,COST=72,prof=False,vp0=2.0,vp1=3.2,vpq=5.0,vp2=8.0,vp3=3.4,vp4=2.8,vp5=3,SK=512,half=(),osc='',inl=True,gp=True,kvc=140,kvp=100,wp=40,rp=30,la=3,cmax=8,cmin=-16,ipf=192,sd=1100,l1=128,l2=128,QD=0,QL=48,abl='',
                 rd1=750,rd2=600,rd3=850,ld2=200,ld3=350,LAT0=200,burst=7,kvd1=1100,kvd2=700,kvd3=850,kvd4=600,hd1=800,hd2=800,hd3=750,
                 exd1=750,exd2=600,exd3=850,exd4=600,pre0=4,p0o=0,wnt='nt',xnt='nt',tst='sc1')
        g.o.update(o); g.p=Prog(); g.slow=[]; g.nlab=0; g.tsq=[]; g.names=[]
        g.dma_t={}; g.lastrd={}; g.ready=set(); g.released=set(); g.nextD=0; g.maxD=2*NSL*4; g.t=0; g.free_at=0; g.ev=set()
        g.nu=0; g.pos={}; g.nunit=0; g.forced=0; g.m0dirty=False; g.instream=False; g.nk=0; g.kbase={}; g.nstage=0
    def stamp(g,name,now=False):
        if not g.o["prof"]: return
        if g.o.get("fine") and not(name[0]=="u" or name in("start","end","p3s0","p3s1")): return
        if len(g.tsq)==15 and not now: g.flush_stamps()
        r=S_TAB+6 if now else S_TAB+2*len(g.tsq)
        g.p(f"s_sub_u32 s{r}, 0, {S.TO}" if g.o['prof']=='to' else f"{'s_memtime' if g.o['prof']=='cy' else 's_memrealtime'} s[{r}:{r+1}]"); g.tsq.append((name,r))
        if now: g.flush_stamps()
    def flush_stamps(g):
        if not g.o["prof"] or not g.tsq: return
        p=g.p; p.waitall(vm=False)
        for name,r in g.tsq:
            assert len(g.names)<64; p(f"v_writelane_b32 v{V_TS}, s{r}, {len(g.names)}"); g.names.append(name)
        g.tsq=[]
    def vm(g,text,cost=None):
        ab=g.o["abl"] if g.instream else ""
        if ("s" in ab and text.startswith("buffer_store_dwordx4") and TS not in text) or ("a" in ab and text.startswith("global_load_dwordx4")) or ("w" in ab and "load_lds" in text) or ("k" in ab and "add_f32" in text): t=g.p.nvm
        else: t=g.p(text)
        c=g.o["COST"] if cost is None else cost
        g.t=max(g.t,g.free_at-g.o["FULL"])
        g.free_at=max(g.free_at,g.t)+c; return t
    def barrier(g):
        p=g.p; p("s_barrier")
        for s,t in g.lastrd.items():
            if t<=p.lgdone: g.released.add(s)
        for s,(t,n) in g.dma_t.items():
            if n==4 and t<=p.vmdone: g.ready.add(s)
    def dma_ok(g):
        s=g.nextD//4
        return g.nextD<g.maxD and (s<8 or (s-8) in g.released)
    def dma_ops(g):
        s,q=divmod(g.nextD,4); g.nextD+=1; p=g.p; ops=[]
        I_=lambda t:ops.append((4,lambda:p(t)))
        if q==0 or g.m0dirty: I_(f"s_add_u32 m0, {S.LDSW}, {(s%8)*16384}")
        if q==0 and s and g.o.get("fakeW"): I_(f"v_add_u32 v{V_WP}, {16384 if s%4 else hex((-3*16384)&0xffffffff)}, v{V_WP}")
        elif q==0 and s: I_(f"v_add_u32 v{V_WP}, {16384 if s!=NSL else hex((16384*(1-NSL))&0xffffffff)}, v{V_WP}")
        g.m0dirty=False
        def go(): g.dma_t[s]=(g.vm(f"global_load_lds_dwordx4 v{V_WP}, {WSP} offset:{q*1024} {SC}"),q+1)
        ops.append((4,go,1)); return ops
    def dma(g):
        for x in g.dma_ops(): x[1]()
    def pump(g,n):
        while n>0 and g.dma_ok(): g.dma(); n-=1
    def arrive(g,r,soff,off,ticket):
        if "p" in g.o["abl"]: return
        p=g.p; p.wait(vm=ticket); r=V_CP+2
        g.vm(f"buffer_atomic_add v{r}, v{V_ONE}, {WS}, {soff} offen offset:{off} sc1",8)
    def poll_issue(g,r,soff,off):
        if "p" in g.o["abl"]: return
        g.vm(f"buffer_atomic_add v{r}, v{V_ONE}, {WS}, {soff} offen offset:{off} sc0 sc1",8)
    def poll_check(g,r,soff,off,target):
        if "c" in g.o["abl"]: return
        p=g.p; n=g.nlab; g.nlab+=1
        p(f"v_readfirstlane_b32 {S.STG}, v{r}"); p(f"s_cmp_lt_u32 {S.STG}, {target}")
        g.retry(n,f"""L_slow{n}:
v_mov_b32 v{r}, 0
buffer_atomic_add v{r}, v{V_ONE}, {WS}, {soff} offen offset:{off} sc0 sc1
s_sub_u32 {S.TO}, {S.TO}, 1
s_cbranch_scc1 L_end
s_waitcnt vmcnt(0)
v_readfirstlane_b32 {S.STG}, v{r}
s_nop 0
s_cmp_lt_u32 {S.STG}, {target}
s_cbranch_scc1 L_slow{n}""")
    def retry(g,n,body):
        p=g.p
        if g.o["inl"]: p(f"s_cbranch_scc0 L_back{n}"); p.raw(body)
        else: p(f"s_cbranch_scc1 L_slow{n}"); g.slow.append(body+f"\ns_branch L_back{n}")
        p.raw(f"L_back{n}:")
    def gstore(g,l,cost=None):
        for x in l:
            t=g.vm(x+" sc1",g.o["STG"] if cost is None else cost)
            if cost is None: g.p.cyc+=48
        return t
    def flag(g,k,ticket):
        if "p" in g.o["abl"]: return
        p=g.p; n=g.nlab; g.nlab+=1; p.wait(vm=ticket)
        x=f"buffer_store_dword v{V_FLG}, v{V_ONE}, {WS}, {S.RFW} offen offset:128"
        p(f"s_cbranch_vccnz L_alt{n}"); n0=len(p.out); g.vm(x,8); assert len(p.out)-n0==1
        p.raw(f"L_bk{n}:"); g.slow.append(f"L_alt{n}:\n{x} sc1\ns_branch L_bk{n}")
    def fpoll(g):
        if "p" not in g.o["abl"]: g.vm(f"buffer_load_dword v{V_FLG}, v{V_FPAR}, {WS}, {S.RF} offen offset:128 {SC}",8)
    def fcheck(g,k):
        if "c" in g.o["abl"]: return
        p=g.p; n=g.nlab; g.nlab+=1
        p(f"v_cmp_gt_u32 {SM}, {k}, v{V_FLG}"); p(f"s_cmp_lg_u64 {SM}, 0")
        g.retry(n,f"""L_slow{n}:
buffer_load_dword v{V_FLG}, v{V_FPAR}, {WS}, {S.RF} offen offset:128 {SC}
s_sub_u32 {S.TO}, {S.TO}, 1
s_cbranch_scc1 L_end
s_waitcnt vmcnt(0)
v_cmp_gt_u32 {SM}, {k}, v{V_FLG}
s_nop 0
s_cmp_lg_u64 {SM}, 0
s_cbranch_scc1 L_slow{n}""")
    def panel(g,key,n): g.kbase[key]=g.nk; g.nk+=n
    def areg(g,key,ks): return 8*((g.kbase[key]+ks)%32)
    def unit(g,mat,key,ks,nb,acc,tr,first):
        u=g.nu; g.nu+=1; a=g.areg(key,ks)
        assert g.pos.setdefault((mat,ks,nb),u%(NSL*16))==u%(NSL*16)
        return dict(slot=u//16,rd=(V_RD+(u%128)//64,(u%64)*1024),x=[a_(a),a_(a+4)],acc=acc,tr=tr,first=first,akey=(key,ks))
    def stair(g,U,mat,key,n,blocks,accf,tr=False,first=lambda ks,nb:None,mid=None):
        done={}
        for ks in range(n):
            if mid and ks==mid[0]: U+=mid[1]
            for name,nbs,lag in blocks:
                if ks<n-lag:
                    for nb in nbs: U.append(g.unit(mat,key,ks,nb,accf(nb),tr,first(ks,nb)))
                    done[name]=len(U)-1
        for name,nbs,lag in blocks:
            for ks in range(n-lag,n):
                for nb in nbs: U.append(g.unit(mat,key,ks,nb,accf(nb),tr,first(ks,nb)))
                done[name]=len(U)-1
        return done
    def ext(g,off,accs,tr,first,ev):
        return dict(slot=None,rd=(V_EXT,off),x=[v(V_XE,4),v(V_XE+4,4)],acc=accs,tr=tr,first="0" if first else None,akey=None,ev=ev)
    def stream(g,U,Aq,sides,vpu,lat=550):
        p=g.p; D=g.o["D"]; WE=g.o["WE"]; NF=D+1; N=len(U); base=g.nunit
        firstuse={}; lastu={}; firstu={}
        for n,u in enumerate(U):
            if u["akey"]: firstuse.setdefault(u["akey"],n)
            if u["slot"] is not None: lastu[u["slot"]]=n; firstu.setdefault(u["slot"],n)
        At={}; rd_t={}; st=dict(n=-1,dl=1e9,th=0,c0=0,q=0); mq=[]; g.instream=True; g.stall=0; g.log=[]; g.evlog=[]; g.evt={}
        def tpeek(side,force=False):
            while side:
                it=side[0]
                if it[0]=="at":
                    if st["n"]<it[1]: return None
                elif it[0]=="quiet": st["q"]+=it[1]
                elif it[0]=="wait":
                    if it[1] not in g.ev: return None
                elif it[0]=="since":
                    side[0]=("delay",it[2],g.evt[it[1]]+it[2]); continue
                elif it[0]=="delay":
                    if len(it)==2: side[0]=it=("delay",it[1],g.t+it[1])
                    if g.t<it[2] and not force: return None
                elif it[0]=="ev":
                    if it[1] not in g.ev: g.evlog.append((st["n"],it[1])); g.evt[it[1]]=g.t
                    g.ev.add(it[1])
                else:
                    if it[0]=="vm" and not force and g.free_at-g.t>g.o["DEPTH"]+100: return None
                    return 8 if it[0] in("fn","mem") else icost(it[1])
                side.pop(0)
            return None
        def side_peek(force=False):
            for s_ in reversed(sides): tpeek(s_)
            for k,s_ in enumerate(sides):
                c=tpeek(s_)
                if c is not None: st["th"]=k; return c
            if force:
                dl=[(s_[0][2],k) for k,s_ in enumerate(sides) if s_ and s_[0][0]=="delay"]+[(g.free_at-g.o["DEPTH"]-100,k) for k,s_ in enumerate(sides) if s_ and s_[0][0]=="vm"]
                if dl: t_,k=min(dl); g.stall+=max(t_-g.t,0); g.t=max(g.t,t_); return side_peek(True)
            return None
        def side_emit():
            it=sides[st["th"]].pop(0)
            if it[0] in("fn","mem"): it[1]()
            elif it[0]=="vm": g.vm(it[1],it[2] if len(it)>2 else None)
            elif "v" in g.o["abl"] and it[1].startswith(("v_mul_f32","v_fma_f32","v_exp","v_rcp","v_max_f32","v_cvt_pk","v_dot2","v_add_f32")): p.cyc+=icost(it[1])
            else:
                p(it[1])
                if it[1].startswith("v_mfma"): p.cyc+=8
        def until(ev):
            s0=g.stall; k=0
            while True:
                for s_ in reversed(sides): tpeek(s_)
                if ev in g.ev: break
                fill()
                c=side_peek(True)
                if ev in g.ev: break
                assert c is not None,("stuck",ev,st["n"],[x[:2] for x in sides])
                c0=p.cyc; side_emit(); g.t+=p.cyc-c0; st["c0"]+=p.cyc-c0; k+=1
            if k: g.log.append((st["n"],ev,k,g.stall-s0))
        def fill():
            while g.free_at-g.t<g.o["LOW"]:
                refill(True)
                if not mq: break
                flush()
        def flush():
            while mq: mq.pop(0)[1]()
        def nextA():
            x=Aq.pop(0); return x["ops"](At)
        def A_ok(): return Aq and Aq[0]["ok"](st["n"]) and (Aq[0].get("ev") is None or Aq[0]["ev"] in g.ev)
        def refill(force=False):
            if mq: return
            da=firstuse.get(Aq[0]["id"][:2],1e8) if A_ok() else None
            dd=(firstu.get(g.nextD//4,1e9)-D-WE) if g.dma_ok() else None
            if da is None and dd is None: return
            dl=min(x for x in(da,dd) if x is not None)
            if not force and g.free_at-g.t>(g.o["QD"] if st["q"] and dl-st["n"]>g.o["QL"] else g.o["DEPTH"]) and dl-st["n"]>g.o["LEAD"]: return
            st["dl"]=dl
            mq.extend(nextA() if dd is None or (da is not None and da<=dd) else g.dma_ops())
        def rd(n):
            u=U[n]; r=V_WF+4*(n%NF); s=u["slot"]
            if s is None: until(u["ev"])
            elif firstu[s]==n:
                if g.dma_t.get(s,(0,0))[1]<4:
                    flush(); g.forced+=1
                    while g.nextD<4*(s+1):
                        if not g.dma_ok(): p.waitall(vm=False); g.barrier()
                        g.dma()
                if s not in g.ready: p.wait(vm=g.dma_t[s][0])
                g.barrier(); assert s in g.ready
            rd_t[n]=p(f"ds_read_b128 {v(r,4)}, v{u['rd'][0]} offset:{u['rd'][1]}")
            if s is not None and lastu[s]==n: g.lastrd[s]=rd_t[n]
        def hoist(sd,want):
            seen=[]
            for k,it in enumerate(sd[:g.o["la"]+1]):
                if it[0]!="i" or "\n" in it[1] or not it[1].startswith("v_") or it[1].startswith(("v_mfma","v_cmp","v_permlane")): return False
                x=I(it[1])
                if k and icost(it[1])==want and all(not(set(y.wr)&(set(x.rd)|set(x.wr)) or set(y.rd)&set(x.wr)) for y in seen) and not any(need(y,x)>d for d,y in enumerate(reversed(p.hist[-2:]))):
                    sd.insert(0,sd.pop(k)); return True
                seen.append(x)
            return False
        cr=dict(c=0.0)
        def peek():
            refill()
            if mq: return mq[0][0]
            return side_peek()
        def emit():
            if mq: mq.pop(0)[1]()
            else: cr["c"]-=side_peek(); side_emit()
        for _ in range(g.o['burst']): refill(True); flush()
        for _ in range(40):
            if side_peek() is None: break
            side_emit()
        for n in range(D): rd(n)
        g.t+=lat; g.free_at+=g.o["LAT0"]
        for n,u in enumerate(U):
            st["c0"]=p.cyc; r=V_WF+4*(n%NF)
            if n==N//2: p.raw("@ISLAND@")
            if g.o["ipf"] and n%g.o["ipf"]==0 and n<N-300:
                mq.extend([(4,lambda:p("s_getpc_b64 s[4:5]")),(4,lambda:g.vm(f"global_load_dword v{V_CP+1}, v{V_CP}, s[4:5]",8),1)])
            if u.get("pre"): until(u["pre"])
            if u.get("stamp"): g.stamp(u["stamp"])
            fine=g.o.get("fine")
            if fine and fine[0]<=base+n<fine[0]+fine[2]*fine[1] and (base+n-fine[0])%fine[1]==0: g.stamp(f"u{base+n}_{g.t}_{p.nvm}")
            tv=None
            for m in range(n,min(N,n+WE-n%WE)):
                w=U[m]
                if w["akey"] and firstuse[w["akey"]]==m:
                    k=w["akey"]+(1,)
                    if m==n and k not in At:
                        flush(); g.forced+=1
                        while k not in At:
                            if Aq[0].get("ev") and Aq[0]["ev"] not in g.ev: until(Aq[0]["ev"]); continue
                            assert Aq[0]["ok"](st["n"]); mq.extend(nextA()); flush()
                        for _ in range(g.o["burst"]-2): refill(True); flush()
                        g.stall+=lat; g.t+=lat; g.free_at+=g.o["LAT0"]; g.log.append((n,"A late",u["akey"]))
                    if k in At and (m==n or n%WE==0): tv=At[k]
            if n%WE==0:
                for m in range(n+D,min(N,n+D+WE)):
                    s=U[m]["slot"]
                    if s is not None and firstu[s]==m and g.dma_t.get(s,(0,0))[1]==4: tv=max(tv or 0,g.dma_t[s][0])
            p.wait(vm=tv,lg=rd_t.get(min(n+WE-1-(n%WE),N-1,n+D-1)))
            cr["c"]=max(min(cr["c"],g.o["cmax"]),g.o["cmin"])+4*vpu(n)
            def mf(mh):
                acc=v(u["acc"][mh],4); c=u["first"] or acc; w=v(r,4); x=u["x"][mh]
                p(f"{MF} {acc}, {x}, {w}, {c}" if u["tr"] else f"{MF} {acc}, {w}, {x}, {c}")
            wnext=4 if (n+1)%WE==0 else 0
            def urgent(): return mq and (g.free_at-g.t<g.o["LOW"] and st["dl"]-n<g.o["URG"] or st["dl"]-n<g.o["LEAD"]-4)
            def due(c): return cr["c"]>=c or st["th"]!=len(sides)-1
            def gap(room,last):
                c1=p.gap0
                while True:
                    free=room-(p.cyc-c1); refill()
                    if mq and len(mq[0])==3 and not p.vseen and (free>=4 or urgent()): mq.pop(0)[1](); continue
                    c=side_peek(); m=c is not None and ismem(sides[st["th"]][0])
                    if m and not p.vseen and (c<=free or due(c)): cr["c"]-=c; side_emit(); continue
                    if mq and len(mq[0])==2 and (free>=4 or (last and urgent())): mq.pop(0)[1](); continue
                    if c is not None and not m and g.o["la"] and free in(4,8) and c!=free and hoist(sides[st["th"]],free): c=free
                    if c is not None and not m and (c<=free or (last and due(c))): cr["c"]-=c; side_emit(); continue
                    return
            mf(0); r1=n+D<N
            refill(); cs=side_peek()
            if r1 and not(wnext and cs==8 and not mq): rd(n+D); r1=False
            gap(8,False)
            mf(1); st["n"]=n
            if r1: rd(n+D)
            gap(8-wnext,True)
            g.t+=max(32,p.cyc-st["c0"])
        g.nunit+=N; flush(); assert not Aq
        st["n"]=1e9
        while side_peek(True) is not None:
            c0=p.cyc; side_emit(); g.t+=p.cyc-c0
    def aloads(g,key,nks,vb,off,ok,ev):
        q=[]; p=g.p
        for ks in range(nks):
            for mh in range(2):
                f=2*ks+mh
                def ops(At,f=f,ks=ks,mh=mh):
                    l=[]
                    if f==0: l.append((4,lambda:p(f"v_add_u32 v{V_A}, {off+4096}, v{vb}")))
                    elif f%8==0 and g.o.get("fakeA"): l.append((4,lambda:p(f"v_add_u32 v{V_A}, 0, v{V_A}")))
                    elif f%8==0: l.append((4,lambda:p(f"v_add_u32 v{V_A}, {8192 if f%16 or nks!=32 else S.AW2 if f==32 else S.AW1}, v{V_A}")))
                    l.append((4,lambda:At.__setitem__((key,ks,mh),g.vm(f"global_load_dwordx4 {a_(g.areg(key,ks)+4*mh)}, v{V_A}, {WSP} offset:{(f%8)*1024-4096} {SC}")),1))
                    return l
                q.append(dict(id=(key,ks,mh),ops=ops,ok=ok(g.kbase[key]+ks),ev=ev(ks)))
        return q
    def red4(g,a,b,c,d):
        return [f"v_permlane32_swap_b32 v{a}, v{c}",f"v_permlane32_swap_b32 v{b}, v{d}",f"v_add_f32 v{a}, v{a}, v{c}",f"v_add_f32 v{b}, v{b}, v{d}",
                f"v_permlane16_swap_b32 v{a}, v{b}",f"v_add_f32 v{a}, v{a}, v{b}"]
    def pub_half(g,k2,xi,tk,J=S.J):
        T=V_T; s=ins([f"s_add_u32 {S.T0}, {S.XW}, {WS_X+xi*XB+k2*32768}"])
        s.append(("mem",lambda:tk.__setitem__(("x",k2),g.gstore([f"buffer_store_dwordx4 {v(V_RES+8*k2+4*mh,4)}, v{V_L16}, {WS}, {S.T0} offen offset:{mh*1024}" for mh in range(2)]))))
        if k2==0: s+=[("ev",f"x{xi}s0"),("i",f"v_mov_b32 v{T+4}, 0x3f803f80")]
        l=[]
        for i in range(4):
            for mh in range(2):
                r=V_RES+8*k2+4*mh+i; z=(i==0 and k2==0)
                l+=[f"v_dot2_f32_bf16 v{T+2*mh}, v{r}, v{T+4}, {'0' if z else v(T+2*mh)}",f"v_dot2_f32_bf16 v{T+2*mh+1}, v{r}, v{r}, {'0' if z else v(T+2*mh+1)}"]
        s.append(("fn",lambda:g.p("\n".join(l))))
        if k2:
            s+=ins([f"s_lshl_b32 {S.T0}, {J}, 8",f"s_add_u32 {S.T0}, {S.T0}, {S.STP}",f"s_add_u32 {S.T0}, {S.T0}, {xi*0x40000}"]+g.red4(T,T+1,T+2,T+3))
            s+=[("mem",lambda:tk.__setitem__(("x",k2),g.gstore([f"buffer_store_dword v{T}, v{V_STAT}, {WS}, {S.T0} offen"],16))),("ev",f"x{xi}s1")]
        return s
    def rowstage(g,name,co,tk,key):
        o=g.o; l=[("wait",name),("quiet",1),("since",name,o["rd1"])]
        if name[0]+name[-1] in o["half"]:
            g.nstage+=1; k=g.nstage
            l.insert(2,("i",f"v_mov_b32 v{V_FLG}, {k}"))
            l+=[("mem",lambda:g.flag(k,tk[key])),("delay",o["ld2"]),("mem",lambda:(g.fpoll(),g.arrive(V_CP+2,S.RF,co,None))),("ev",name+"a"),("delay",o["ld3"]),("fn",lambda:g.fcheck(k)),("ev",name+"l"),("i",f"v_mov_b32 v{V_FLG}, 0"),("since",name+"a",o["rd2"])]
        else: l+=[("mem",lambda:g.arrive(V_FLG,S.RF,co,tk[key])),("i",f"v_mov_b32 v{V_FLG}, 0"),("delay",o["rd2"])]
        l+=[("mem",lambda:g.poll_issue(V_FLG,S.RF,co)),("delay",o["rd3"]),
            ("fn",lambda:(g.poll_check(V_FLG,S.RF,co,16),g.stamp(name))),("quiet",-1),("ev",name+"l"),("ev",name+"r")]
        return l
    def side_stats(g,p3,xi,mid):
        T=V_T; s=ins([f"s_add_u32 {S.T0}, {S.STP}, {xi*0x40000}"])
        for t in range(4): s.append(("vm",f"buffer_load_dwordx4 {v(T+4*t,4)}, v{V_L16}, {WS}, {S.T0} offen offset:{t*1024} {SC}"))
        s+=mid; o=[]
        for c in range(4): o+=[f"v_add_f32 v{T+c}, v{T+c}, v{T+4+c}",f"v_add_f32 v{T+8+c}, v{T+8+c}, v{T+12+c}"]
        for c in range(4): o+=[f"v_add_f32 v{T+c}, v{T+c}, v{T+8+c}"]
        for sw in("32","16"):
            for c in range(4): o+=[f"v_mov_b32 v{T+4+c}, v{T+c}"]
            for c in range(4): o+=[f"v_permlane{sw}_swap_b32 v{T+c}, v{T+4+c}"]
            for c in range(4): o+=[f"v_add_f32 v{T+c}, v{T+c}, v{T+4+c}"]
        for mh in range(2): o+=[f"v_mul_f32 v{T+2*mh}, {F(-1/1024)}, v{T+2*mh}",f"v_mul_f32 v{T+2*mh+1}, {F(1/1024)}, v{T+2*mh+1}"]
        for mh in range(2): o+=[f"v_fma_f32 v{T+2*mh+1}, -v{T+2*mh}, v{T+2*mh}, v{T+2*mh+1}"]
        for mh in range(2): o+=[f"v_max_f32 v{T+2*mh+1}, 0, v{T+2*mh+1}"]
        for mh in range(2): o+=[f"v_add_f32 v{T+2*mh+1}, {F(1e-5)}, v{T+2*mh+1}"]
        for mh in range(2): o+=[f"v_rsq_f32 v{T+4+mh}, v{T+2*mh+1}"]
        for mh in range(2): o+=[f"v_mul_f32 v{T+2*mh+1}, v{T+2*mh+1}, v{T+4+mh}"]
        for mh in range(2):
            m,sg,X=T+2*mh,T+2*mh+1,V_XE+4*mh
            o+=[f"v_cvt_pk_bf16_f32 v{T+6}, v{m}, v{m}",f"v_cvt_pk_bf16_f32 v{T+7}, v{sg}, v{sg}",
                f"v_lshlrev_b32 v{T+8}, 16, v{T+6}",f"v_lshlrev_b32 v{T+9}, 16, v{T+7}",
                f"v_sub_f32 v{T+8}, v{m}, v{T+8}",f"v_sub_f32 v{T+9}, v{sg}, v{T+9}",
                f"v_cvt_pk_bf16_f32 v{T+8}, v{T+8}, v{sg}",f"v_cvt_pk_bf16_f32 v{T+9}, v{T+9}, 0",
                f"v_cndmask_b32 v{X}, 0, v{T+6}, {SN}",f"v_cndmask_b32 v{X+1}, 0, v{T+8}, {SN}",f"v_cndmask_b32 v{X+2}, 0, v{T+9}, {SN}"]
        if p3:
            c0=-2*math.sqrt(2/math.pi)*LOG2E
            for mh in range(2):
                r=T+4+mh; L=V_LC+3*mh
                o+=[f"v_mul_f32 v{L}, {F(c0)}, v{r}",f"v_mul_f32 v{T+6}, v{r}, v{r}",f"v_mov_b32 v{L+2}, v{T+2*mh+1}",
                    f"v_mul_f32 v{T+6}, {F(0.044715)}, v{T+6}",f"v_mul_f32 v{L+1}, v{T+6}, v{L}"]
        else:
            for mh in range(2): o+=[f"v_mul_f32 v{T+46+mh}, {F(LOG2E)}, v{T+4+mh}"]
            o+=[f"v_and_b32 v{T+6}, 48, v{V_LANE}"]
            for mh in range(2):
                for r in range(4): o+=[f"ds_bpermute_b32 v{V_LC+4*mh+r}, v{T+6}, v{T+46+mh} offset:{4*r}"]
        return s+ins(o)
    def table_load(g,p3,T):
        s=ins([f"v_lshrrev_b32 v{T+16}, 4, v{V_LANE}",f"v_lshlrev_b32 v{T+18}, 14, v{T+16}",f"v_lshl_add_u32 v{T+18}, v{V_FALL}, 2, v{T+18}",f"v_add_u32 v{T+17}, v{V_FALL}, v{T+16}",
               f"s_lshl_b32 {S.T2}, {S.J}, 2",f"s_add_u32 {S.T2}, {S.T2}, {S.W}",f"s_lshl_b32 {S.T2}, {S.T2}, 8",f"s_add_u32 {S.T2}, {S.T2}, {WS_CS1 if p3 else WS_CSQ}"])
        for t in range(4):
            s.append(("vm",f"buffer_load_dwordx4 {v(T+4*t,4)}, v{T+18}, {WS}, {S.T2} offen {SC}"))
            if t<3: s.append(("i",f"s_add_u32 {S.T2}, {S.T2}, 65536"))
        if p3:
            s+=ins([f"v_lshlrev_b32 v{T+18}, 1, v{T+17}",f"s_lshl_b32 {S.T3}, {S.PAR}, 6",f"s_lshl_b32 {S.T2}, {S.W}, 7",f"s_add_u32 {S.T2}, {S.T2}, {S.T3}",
                    f"s_cmp_eq_u32 {S.T2}, 448\ns_cselect_b32 {S.T2}, -64, {S.T2}\ns_cselect_b32 {S.T3}, 32, 0",f"v_xor_b32 v{T+17}, {S.T3}, v{T+17}",
                    f"s_mul_i32 {S.T3}, {S.J}, 448",f"s_add_u32 {S.T2}, {S.T2}, {S.T3}"])
            s.append(("vm",f"buffer_load_ushort v{T+19}, v{T+18}, {B1}, {S.T2} offen",16))
        return s
    def table_make(g,p3,T,tk):
        o=[]
        for c in range(4): o+=[f"v_add_f32 v{T+c}, v{T+c}, v{T+4+c}",f"v_add_f32 v{T+8+c}, v{T+8+c}, v{T+12+c}"]
        for c in range(4): o+=[f"v_add_f32 v{T+c}, v{T+c}, v{T+8+c}"]
        o+=g.red4(T,T+1,T+2,T+3)
        o+=[f"v_cvt_pk_bf16_f32 v{T+5}, v{T}, 0",f"s_lshl_b32 {S.T2}, {S.W}, 10",f"v_lshlrev_b32 v{T+8}, 16, v{T+5}",f"v_sub_f32 v{T+8}, v{T}, v{T+8}",
            f"v_cvt_pk_bf16_f32 v{T+4}, v{T}, v{T+8}",f"s_add_u32 {S.T2}, {S.T2}, {L_EXT3 if p3 else L_EXT1}",f"v_mov_b32 v{T+7}, 0"]
        if p3: o+=[f"v_lshl_add_u32 v{T+5}, v{T+19}, 16, v{T+5}",f"v_mov_b32 v{T+6}, v{T+19}"]
        else: o+=[f"v_mov_b32 v{T+6}, 0"]
        o+=[f"v_lshl_add_u32 v{T+17}, v{T+17}, 4, {S.T2}"]
        return ins(o)+[("mem",lambda:tk.__setitem__("t",g.p(f"ds_write_b128 v{T+17}, {v(T+4,4)}")))]
    def run_list(g,l):
        for it in l:
            if it[0]=="i": g.p(it[1])
            elif it[0]=="vm": g.vm(it[1],it[2] if len(it)>2 else None)
            elif it[0] in("fn","mem"): it[1]()
    def rowaddr(g,J=S.J):
        T=V_T
        g.p(f"""v_lshlrev_b32 v{T+1}, 9, v{V_FALL}
v_and_b32 v{T+2}, 16, v{V_LANE}
v_lshl_add_u32 v{T+1}, v{T+2}, 1, v{T+1}
v_lshrrev_b32 v{T+2}, 5, v{V_LANE}
v_lshl_add_u32 v{T+1}, v{T+2}, 4, v{T+1}
s_lshl_b32 {S.T0}, {S.MBk}, 16
s_lshl_b32 {S.T1}, {J}, 7
s_add_u32 {S.T0}, {S.T0}, {S.T1}
s_add_u32 {S.T1}, {S.T0}, 32768""")
    def p0(g):
        p=g.p; o=g.o; T=V_T; ACC=V_ACC
        p.raw(f"{NAME}:")
        p(f"s_cmp_ge_u32 s2, 256\ns_cbranch_scc1 L_end")
        p("s_load_dwordx16 s[44:59], s[0:1], 0\ns_load_dwordx2 s[20:21], s[0:1], 80")
        p(f"v_lshrrev_b32 v{T}, 6, v0\nv_and_b32 v{V_LANE}, 63, v0\nv_readfirstlane_b32 {S.W}, v{T}\nv_lshlrev_b32 v{V_L16}, 4, v{V_LANE}\nv_mov_b32 v{V_TS}, 0")
        if o["xm"]==4: p(f"""s_and_b32 {S.PAR}, s2, 1
s_bfe_u32 {S.T0}, s2, 0x20001
s_bfe_u32 {S.T1}, s2, 0x20003
s_lshl_b32 {S.T0}, {S.T0}, 2
s_add_u32 {S.I}, {S.T0}, {S.T1}
s_lshr_b32 {S.T0}, s2, 5
s_lshl_b32 {S.T0}, {S.T0}, 1
s_add_u32 {S.J}, {S.T0}, {S.PAR}""")
        elif o["xm"]==2: p(f"""s_and_b32 {S.I}, s2, 15
s_lshr_b32 {S.J}, s2, 4
s_and_b32 {S.PAR}, {S.J}, 1""")
        elif o["xm"]==8: p(f"""s_and_b32 {S.PAR}, s2, 1
s_bfe_u32 {S.I}, s2, 0x40002
s_lshr_b32 {S.T0}, s2, 6
s_lshl_b32 {S.T0}, {S.T0}, 2
s_and_b32 {S.T1}, s2, 3
s_add_u32 {S.J}, {S.T0}, {S.T1}""")
        p(f"""s_lshl_b32 {S.MBk}, {S.I}, 2
s_add_u32 {S.MBk}, {S.MBk}, {S.W}""")
        g.stamp("start",True)
        p(f"s_lshl_b32 {S.T0}, {S.PAR}, 6\ns_add_u32 {S.T0}, {S.T0}, {S.MBk}\ns_lshl_b32 {S.T0}, {S.T0}, 7\ns_getpc_b64 s[6:7]"); p.raw("L_pc:")
        p(f"s_add_u32 {S.T0}, {S.T0}, L_tab-L_pc\ns_add_u32 s6, s6, {S.T0}\ns_addc_u32 s7, s7, 0")
        p(f"s_load_dwordx16 s[{S_TAB}:{S_TAB+15}], s[6:7], 0\ns_load_dwordx16 s[{S_TAB+16}:{S_TAB+31}], s[6:7], 64")
        p(f"v_and_b32 v{T}, 15, v{V_LANE}\nv_lshlrev_b32 v{V_FALL}, 2, v{T}")
        JC,JX="s96","s97"
        p(f"s_lshl_b32 {JC}, {S.W}, 1\ns_xor_b32 {JC}, {JC}, {S.J}\ns_xor_b32 {JX}, {JC}, 1"); g.rowaddr(JX)
        p(f"""s_mov_b32 s26, 0x400000
s_mov_b32 s27, 0x20000
s_mov_b32 s22, 0x10000000
s_mov_b32 s23, 0x20000""")
        p(f"v_mov_b32 v{T+4}, 0\nv_mov_b32 v{T+5}, 0\nv_mov_b32 v{T+6}, 0\nv_mov_b32 v{T+7}, 0\nv_min_u32 v{V_ONE}, 1, v{V_LANE}\nv_lshlrev_b32 v{V_ONE}, 30, v{V_ONE}")
        p.waitall(vm=False)
        p("s_mov_b64 s[24:25], s[44:45]\ns_mov_b64 s[4:5], s[46:47]\ns_mov_b64 s[8:9], s[48:49]\ns_mov_b64 s[12:13], s[52:53]\ns_mov_b64 s[28:29], s[54:55]\ns_mov_b64 s[16:17], s[56:57]\ns_mov_b64 s[100:101], s[58:59]")
        p(f"s_load_dword {S.EP}, {WSP}, {WS_EP}")
        for k2 in range(2):
            for mh in range(2): g.vm(f"buffer_load_dwordx4 {v(V_RES+8*k2+4*mh,4)}, v{T+1}, {TS}, {S.T1 if mh else S.T0} offen offset:{64*k2} {o['xnt']}")
        if o["cpf"]:
            p(f"s_getpc_b64 s[10:11]\ns_lshr_b32 {S.T2}, s2, 3\ns_lshl_b32 {S.T2}, {S.T2}, 2\ns_add_u32 {S.T2}, {S.T2}, {S.W}\ns_mul_i32 {S.T2}, {S.T2}, 1152\nv_min_u32 v{T+11}, 8, v{V_LANE}\nv_lshl_add_u32 v{T+11}, v{T+11}, 7, {S.T2}\nv_min_u32 v{T+11}, L_tab-L_pc, v{T+11}")
            g.vm(f"global_load_dword v{T+11}, v{T+11}, s[10:11]")
        PA,PB,PC,RT,WT=ACC+64,ACC+68,ACC+72,ACC+76,ACC+80
        p(f"""s_mov_b32 {S.T3}, {RQ}
s_cmp_eq_u32 {S.W}, 3
s_cselect_b32 s8, s8, s4
s_cselect_b32 s9, s9, s5
s_cselect_b32 {S.T3}, {R2}, {S.T3}
s_lshl_b32 s10, {S.T3}, 10
s_mov_b32 s11, 0x20000
s_mov_b32 s14, {1024*R1}
s_mov_b32 s15, 0x20000
s_mov_b32 s18, {3584*R2}
s_mov_b32 s19, 0x20000
s_mov_b32 s30, 7168
s_mov_b32 s31, 0x20000
v_lshrrev_b32 v{T+2}, 3, v{V_LANE}
v_and_b32 v{T+3}, 7, v{V_LANE}
v_and_b32 v{T+9}, 6, v{T+2}
v_xor_b32 v{T+3}, v{T+3}, v{T+9}
v_lshlrev_b32 v{T+3}, 4, v{T+3}
v_mul_u32_u24 v{PA}, {S.T3}, v{T+2}
v_add_u32 v{PA}, v{PA}, v{T+3}
s_lshl_b32 {S.T3}, {S.T3}, 3
s_sub_u32 {S.T3}, {S.T3}, 1024
v_add_u32 v{PA+1}, {S.T3}, v{PA}
v_add_u32 v{PA+2}, {S.T3}, v{PA+1}
v_add_u32 v{PA+3}, {S.T3}, v{PA+2}
s_mul_i32 {S.LDSW}, {S.W}, 24576
s_lshr_b32 {S.T2}, {S.J}, 1
s_mul_i32 {S.T3}, {S.T2}, 896
s_lshr_b32 {S.T2}, {JC}, 1
s_lshl_b32 {S.T2}, {S.T2}, 8""")
        for r in range(6): p(f"s_add_u32 s{S_TAB+r}, s{S_TAB+r}, {S.T3 if r in(2,3) else S.T2}")
        dt={}
        def rdma(r):
            p(f"s_add_u32 m0, {S.LDSW}, {r*4096}")
            for q in range(4): dt[r]=g.vm(f"buffer_load_dwordx4 v{(PA,PB,PC)[r//2]+q}, {(WO,W1,W2)[r//2]}, s{S_TAB+r} offen offset:{q*1024} {o['wnt']} lds")
        rdma(0); rdma(1)
        for pat,rs in((PC,R2),(PB,R1)):
            p(f"v_mul_u32_u24 v{pat}, {rs}, v{T+2}\nv_add_u32 v{pat}, v{pat}, v{T+3}")
            for q in range(1,4): p(f"v_add_u32 v{pat+q}, {q*(8*rs-1024)}, v{pat}")
        p(f"""s_mul_i32 {S.KV}, {S.J}, {KVS}
s_add_u32 {S.KV}, {S.KV}, {WS_KV}
s_and_b32 {S.T0}, {S.MBk}, 31
s_min_u32 {S.T0}, {S.T0}, 16
s_lshl_b32 {S.T0}, {S.T0}, 9
s_lshr_b32 {S.T1}, {S.MBk}, 5
s_mul_i32 {S.T1}, {S.T1}, {16*KVS}
s_add_u32 {S.T0}, {S.T0}, {S.T1}
s_mul_i32 {S.T1}, {JC}, {KVS}
s_add_u32 {S.T0}, {S.T0}, {S.T1}
s_add_u32 {S.T0}, {S.T0}, {WS_KV}
v_lshlrev_b32 v{T+2}, 3, v{V_LANE}""")
        g.vm(f"buffer_store_dwordx2 {v(T+4,2)}, v{T+2}, {WS}, {S.T0} offen {SC}")
        p(f"s_mov_b32 s24, s100\ns_mov_b32 s25, s101\ns_mov_b32 s26, 2048\nv_lshlrev_b32 v{T+2}, 1, v{V_LANE}\ns_lshl_b32 {S.T0}, {S.J}, 7")
        g.vm(f"buffer_load_ushort v{T+8}, v{T+2}, {TS}, {S.T0} offen")
        p("s_load_dwordx2 s[24:25], s[0:1], 64\ns_mov_b32 s26, 0x400000")
        p(f"""v_lshrrev_b32 v{T+2}, 2, v{V_LANE}
v_and_b32 v{T+3}, 3, v{V_LANE}
v_lshlrev_b32 v{T+3}, 3, v{T+3}
v_lshl_add_u32 v{RT}, v{T+2}, 7, v{T+3}
v_and_b32 v{T+9}, 6, v{T+2}
v_lshl_add_u32 v{RT}, v{T+9}, 4, v{RT}
v_add_u32 v{RT}, {S.LDSW}, v{RT}""")
        for b in range(1,4): p(f"v_xor_b32 v{RT+b}, {32*b}, v{RT}")
        p(f"""v_lshrrev_b32 v{T+2}, 4, v{V_LANE}
v_lshlrev_b32 v{T+2}, 2, v{T+2}
v_lshl_add_u32 v{V_STAT}, v{T}, 4, v{T+2}
v_lshlrev_b32 v{V_EXT}, 4, v{T}
v_add_u32 v{V_EXT}, {L_EXT1}, v{V_EXT}
v_mov_b32 v{V_XE+3}, 0
v_mov_b32 v{V_XE+7}, 0
v_mov_b32 v{V_RD}, v{V_L16}
v_add_u32 v{V_RD+1}, 0x10000, v{V_L16}
s_mul_i32 {S.T2}, {S.J}, {WTS}
s_add_u32 {S.T2}, {S.T2}, {WS_WT}
v_add_u32 v{WT}, {S.T2}, v{V_L16}
s_lshl_b32 {S.T2}, {S.W}, 12
v_add_u32 v{V_WP}, {S.T2}, v{WT}
s_mul_i32 {S.T2}, {JC}, {WTS}
s_add_u32 {S.T2}, {S.T2}, {WS_WT}
v_add_u32 v{WT+1}, {S.T2}, v{V_L16}
s_mov_b32 {S.TO}, 0x40000
s_mul_i32 {S.T2}, {S.MBk}, {65536+o["SK"]}
s_lshl_b32 {S.T3}, {S.PAR}, 15
s_sub_u32 {S.AW1}, 8192, {S.T3}
s_add_u32 {S.AW2}, 8192, {S.T3}
s_lshl_b32 {S.T3}, {S.PAR}, 14
s_add_u32 {S.U0}, {S.T2}, {S.T3}
v_add_u32 v{V_XP}, {S.U0}, v{V_L16}
s_xor_b32 {S.T3}, {S.T3}, 16384
s_add_u32 {S.XW}, {S.T2}, {S.T3}
s_lshr_b32 {S.T3}, {JX}, 1
s_lshl_b32 {S.T3}, {S.T3}, 11
s_add_u32 {S.XW}, {S.XW}, {S.T3}
s_mul_i32 {S.HW}, {S.MBk}, {229376+o["SK"]}
s_mul_i32 {S.T2}, {S.PAR}, 114688
s_add_u32 {S.HW}, {S.HW}, {S.T2}
v_add_u32 v{V_HP}, {S.HW}, v{V_L16}
s_lshr_b32 {S.T2}, {S.J}, 1
s_lshl_b32 {S.T2}, {S.T2}, 11
s_add_u32 {S.HW}, {S.HW}, {S.T2}
s_add_u32 {S.U0}, {S.U0}, {S.T2}
s_lshl_b32 {S.STP}, {S.MBk}, 12
s_add_u32 {S.STP}, {S.STP}, {WS_ST}
s_lshl_b32 {S.T2}, {S.MBk}, 4
s_add_u32 {S.T2}, {S.T2}, {S.J}
s_lshl_b32 {S.EXR}, {S.T2}, 12
s_add_u32 {S.EXR}, {S.EXR}, {WS_EX}
s_xor_b32 {S.EXW}, {S.EXR}, 4096
s_lshl_b32 {S.RF}, {S.MBk}, 8
s_lshl_b32 {S.T2}, {S.J}, 2
s_add_u32 {S.RFW}, {S.RF}, {S.T2}
s_xor_b32 {S.RFP}, {S.RFW}, 4
s_lshl_b32 {S.T2}, {S.PAR}, 2
v_and_b32 v{V_FPAR}, 56, v{V_FALL}
v_add_u32 v{V_FPAR}, {S.T2}, v{V_FPAR}
s_mov_b64 {SN}, 0xffff
s_mov_b64 vcc, -1
s_lshl_b32 {S.CF}, {S.J}, 8
s_add_u32 {S.CF}, {S.CF}, {WS_COLF}
s_min_u32 {S.T2}, {S.W}, 1
s_lshl_b32 {S.T3}, {S.T2}, 30
s_add_u32 {S.CF}, {S.CF}, {S.T3}
s_xor_b32 {S.T2}, {S.T2}, 1
s_lshl_b32 {S.CT}, {S.T2}, 4
s_mov_b32 {S.C_EPS}, {F(1e-6*LOG2E)}
s_mov_b32 {S.C_LN2}, {F(LN2)}""")
        p(f"s_min_u32 {S.T0}, {S.J}, 1\ns_lshl_b32 {S.T0}, {S.T0}, 30\ns_add_u32 {S.T0}, {S.T0}, {S.RF}\nv_lshlrev_b32 v{T+9}, 2, v{V_LANE}")
        g.vm(f"buffer_store_dword v{T+4}, v{T+9}, {WS}, {S.T0} offen {SC}")
        p(f"s_min_u32 {S.T0}, {S.I}, 1\ns_lshl_b32 {S.T0}, {S.T0}, 29\ns_add_u32 {S.T0}, {S.T0}, {S.CF}")
        g.vm(f"buffer_store_dwordx4 {v(T+4,4)}, v{V_ONE}, {WS}, {S.T0} offen {SC}")
        if o["p0o"]>=1: rdma(2)
        p.waitall(vm=False)
        for k in range(4):
            p(f"v_permlane16_swap_b32 v{V_RES+4*k}, v{V_RES+4*k+2}\nv_permlane16_swap_b32 v{V_RES+4*k+1}, v{V_RES+4*k+3}")
        g.stamp("p0x",True)
        g.run_list(g.pub_half(0,0,{})+g.pub_half(1,0,{},JX)); p(f"s_mov_b32 {S.XW}, {S.U0}")
        ON,CSD=T+12,ACC+32
        for i in range(4): p(f"v_mov_b32 v{ON+i}, 0x3f803f80")
        def proc(r):
            b=ACC+16*(r&1); p.wait(vm=dt[r])
            for nb in range(4):
                for h in range(2): p(f"ds_read_b64_tr_b16 {v(b+4*nb+2*h,2)}, v{RT+nb} offset:{r*4096+h*2048}")
            for nb in range(4): t=g.vm(f"buffer_store_dwordx4 {v(b+4*nb,4)}, v{WT if r in(2,3) else WT+1}, {WS}, s{S_TAB+8+4*r+nb} offen {o['tst']}")
            if r<4:
                for nb in range(4): p(f"{MF} {v(CSD+4*nb,4)}, {v(ON,4)}, {v(b+4*nb,4)}, {v(CSD+4*nb,4) if r&1 else '0'}")
            if r in(1,3):
                p(f"s_lshl_b32 {S.T0}, {S.I}, 6\ns_lshl_b32 {S.T1}, {S.J if r==3 else JC}, 2\ns_add_u32 {S.T0}, {S.T0}, {S.T1}\ns_add_u32 {S.T0}, {S.T0}, {S.W}\ns_lshl_b32 {S.T0}, {S.T0}, 8\ns_add_u32 {S.T0}, {S.T0}, {WS_CS1 if r==3 else WS_CSQ}\nv_lshlrev_b32 v{T+9}, 2, v{V_LANE}")
                for nb in range(1,4): p(f"v_mov_b32_dpp v{CSD}, v{CSD+4*nb} quad_perm:[0,1,2,3] row_mask:{hex(1<<nb)} bank_mask:0xf")
                t=g.vm(f"buffer_store_dword v{CSD}, v{T+9}, {WS}, {S.T0} offen {SC}",16)
            return t
        FW,FR,X2=T+16,T+17,T+2
        p(f"""s_lshl_b32 {S.T0}, {S.MBk}, 4
s_add_u32 {S.T0}, {S.T0}, {S.J}
s_lshl_b32 {S.T1}, {JC}, 2
s_add_u32 {S.T1}, {S.T1}, {S.W}
s_lshl_b32 {S.T1}, {S.T1}, 4
s_add_u32 {S.T1}, {S.T1}, {S.I}
s_add_u32 {S.T1}, {S.T1}, 1024
v_mov_b32 v{FW}, {OOB>>3}
v_writelane_b32 v{FW}, {S.T0}, 0
v_writelane_b32 v{FW}, {S.T1}, 1
v_lshlrev_b32 v{FW}, 3, v{FW}
s_lshl_b32 {S.T0}, {S.MBk}, 7
s_lshl_b32 {S.T1}, {S.J}, 2
s_add_u32 {S.T1}, {S.T1}, {S.W}
s_lshl_b32 {S.T1}, {S.T1}, 7
s_add_u32 {S.T1}, {S.T1}, 8192
v_lshl_add_u32 v{FR}, v{V_FALL}, 1, {S.T0}
v_lshl_add_u32 v{X2}, v{V_FALL}, 1, {S.T1}
v_mov_b32_dpp v{FR}, v{X2} quad_perm:[0,1,2,3] row_mask:0xa bank_mask:0xf
s_mov_b32 {S.T3}, {WS_F0}
s_getreg_b32 {S.T2}, hwreg(HW_REG_XCC_ID, 0, 4)
s_add_u32 {S.EP}, {S.EP}, 1
v_mov_b32 v{X2}, {S.EP}
v_mov_b32 v{X2+1}, {S.T2}""")
        if o["p0o"]==0: proc(0); tkc=proc(1); rdma(2); rdma(3)
        elif o["p0o"]==1: proc(0); rdma(3); tkc=proc(1); rdma(4)
        else: rdma(3); proc(0); tkc=proc(1); rdma(4); rdma(5)
        p(f"v_lshlrev_b32 v{T+8}, 16, v{T+8}\nv_add_u32 v{T+10}, {L_B2}, v{T+9}\nds_write_b32 v{T+10}, v{T+8}")
        if o["p0o"]==1: proc(2); rdma(5)
        elif o["p0o"]==2: proc(2); proc(3)
        p.wait(vm=tkc)
        g.vm(f"buffer_store_dwordx2 {v(X2,2)}, v{FW}, {WS}, {S.T3} offen {SC}",8); g.stamp("p0arr",True)
        if o["p0o"]==0: rdma(4); proc(2); rdma(5); proc(3)
        elif o["p0o"]==1: proc(3)
        pl=f"s_mov_b32 exec_hi, 0\nv_mov_b32 v{V_FLG}, 0\nbuffer_atomic_add v{V_FLG}, v{FR}, {WS}, {S.T3} offen sc0 sc1\ns_mov_b32 exec_hi, -1"
        proc(4); p(pl); proc(5); g.stamp("p0til",True)
        rf=f"v_cmp_ne_u32 {SM}, {S.EP}, v{V_FLG}\ns_nop 0\ns_cmp_lg_u32 s100, 0\ns_cbranch_scc1 L_slowx"
        p(rf); p.raw("L_backx:")
        g.slow.append(f"L_slowx:\n{pl}\ns_sub_u32 {S.TO}, {S.TO}, 1\ns_cbranch_scc1 L_end\ns_waitcnt vmcnt(0)\n{rf}\ns_branch L_backx")
        p(f"s_lshl_b32 {S.LDSW}, {S.W}, 12\ns_barrier")
        g.stamp("p1start",True); g.pump(o["pre0"])
        p(f"s_lshl_b32 {S.T0}, {S.MBk}, 7\ns_add_u32 {S.T0}, {S.T0}, {WS_F0+4}\nv_lshlrev_b32 v{FR}, 1, v{V_FPAR}")
        g.vm(f"buffer_load_dword v{V_FLG}, v{FR}, {WS}, {S.T0} offen {SC}",8)
        g.mode=ins([f"s_getreg_b32 {S.T0}, hwreg(HW_REG_XCC_ID, 0, 4)",f"v_cmp_ne_u32 vcc, {S.T0}, v{V_FLG}"]+(["s_mov_b64 vcc, -1"] if o.get("forceg") else []))
        p(f"v_mov_b32 v{V_CP+2}, 1")
        if o["ipf"]:
            assert o["D"]<=6
            p(f"s_lshr_b32 s6, s2, 3\ns_lshl_b32 s6, s6, 2\ns_add_u32 s6, s6, {S.W}\ns_lshl_b32 s6, s6, 7\ns_add_u32 s6, s6, {o.get('ipo',6144)}\nv_mov_b32 v{V_CP}, s6")
        g.t=0; g.free_at=o["pre0"]*o["COST"]
    def build(g):
        p=g.p; o=g.o; T=V_T; g.p0()
        U=[]; Aq=[]; bulk=[]; row=[]; col=[]; marks=[]; pan=[]
        z0=lambda ks,b:"0" if ks==0 else None
        aB=lambda bases:(lambda b:(bases[b>>1]+4*(b&1),bases[b>>1]+8+4*(b&1)))
        def phi(x,r,d):
            return wave([lambda e:f"v_mul_f32 v{x[e]}, v{x[e]}, v{r[e]}",lambda e:f"v_exp_f32 v{T+e%4}, v{x[e]} clamp",lambda e:f"v_max_f32 v{x[e]}, {S.C_EPS}, v{x[e]}",
                         lambda e:f"v_fma_f32 v{x[e]}, v{x[e]}, {S.C_LN2}, v{T+e%4}"],len(x),lambda e:[f"v_cvt_pk_bf16_f32 v{d+e//2}, v{x[e-1]}, v{x[e]}"] if e&1 else [])
        sev=lambda nm:(lambda ks:f"{nm}s{ks>>4}{'r' if ks&8 else 'l'}")
        for it in range(2):
            B=lambda x:V_ACC+16*((x+4*it)%8); tk={}; first=it==0; xi=2*it
            key=f"x{xi}"; g.panel(key,32); pan.append((key,32,V_XP,WS_X+xi*XB,(lambda ks:None) if first else sev(key)))
            aK=lambda nb:(B(2*((nb>>1)&1)+(nb>>2))+8*(nb&1),B(2*((nb>>1)&1)+(nb>>2))+8*(nb&1)+4)
            aQ=aB([0]*4+[B(4),B(5)]); ev=f"st1_{it}"; n0=len(U); L1=o["L1"]
            d=g.stair(U,"q",key,32,[("k0",(0,1),L1[0]),("v0",(4,5),L1[1]),("k1",(2,3),L1[2]),("v1",(6,7),L1[3])],aK,True,z0,(o["KX"],[g.ext(256*b,aK(b),True,False,ev) for b in range(8)]))
            U[n0]["stamp"]=f"p1s{it}"
            if it: U[n0]["pre"]="fin0_0"
            marks+=[(n0,"vp0"),(d["k0"]+1,"vp1"),(len(U),"vpq")]; nq=len(U)
            U+=[g.ext(256*b,aQ(b),False,True,ev) for b in range(8,12)]; U[nq]["stamp"]=f"p1q{it}"
            d.update(g.stair(U,"q",key,32,[("q0",(8,9),0),("q1",(10,11),o["LQ"])],aQ))
            if first:
                bulk+=g.side_stats(False,xi,g.table_load(False,T+16)+[("delay",700)])+g.table_make(False,T+16,tk)
                bulk+=g.mode+[("delay",150),("fn",lambda tk=tk:(p.wait(lg=tk["t"]),g.barrier()))]
            else: bulk+=[("wait",key+"s1r")]+g.side_stats(False,xi,[("delay",o["sd"])])
            bulk+=[("ev",ev)]
            FR,PQ,KD,ZD,ON,RC,L2E,AW,ARK,ARV,VAT,VAZ,VLD,VLZ=T+8,T+16,T+24,T+28,T+32,T+36,T+38,T+39,T+40,T+41,T+42,T+43,T+44,T+45
            kvo=it*16*KVS
            bulk+=ins([f"s_add_u32 {S.T0}, {S.LDSW}, {L_SCR}",f"v_add_u32 v{AW}, {S.T0}, v{V_L16}",f"s_lshr_b32 {S.T0}, {S.W}, 1",f"s_and_b32 {S.T1}, {S.W}, 1",
                       f"s_lshl_b32 {S.T2}, {S.T0}, 10",f"s_add_u32 {S.T3}, {S.T2}, {L_SCR}",f"v_add_u32 v{ARK}, {S.T3}, v{V_L16}",
                       f"s_lshl_b32 {S.T3}, {S.T1}, 10",f"s_add_u32 {S.T3}, {S.T3}, {L_SCR+2048}",f"v_add_u32 v{ARV}, {S.T3}, v{V_L16}",
                       f"v_and_b32 v{VLZ}, 48, v{V_LANE}",f"v_lshl_add_u32 v{VLD}, v{V_FALL}, 4, v{VLZ}",
                       f"v_lshl_add_u32 v{VAZ}, v{VLZ}, 25, v{V_FALL}",f"v_lshl_add_u32 v{VAT}, v{VLZ}, 4, v{V_FALL}",
                       f"s_lshl_b32 {S.T3}, {S.T1}, 11",f"s_add_u32 {S.T2}, {S.T2}, {S.T3}",f"v_add_u32 v{VAT}, {S.T2}, v{VAT}",
                       f"s_lshl_b32 {S.T0}, {S.T0}, 6",f"s_lshl_b32 {S.T1}, {S.T1}, 28",f"s_add_u32 {S.T0}, {S.T0}, {S.T1}",f"v_add_u32 v{VAZ}, {S.T0}, v{VAZ}",
                       f"v_mov_b32 v{L2E}, {F(LOG2E)}"]+[f"v_mov_b32 v{ON+i}, 0x3f803f80" for i in range(4)])
            for h in range(2):
                KF,VF=B(2*h),B(2*h+1)
                bulk+=[("at",d[f"k{h}"]+1)]
                bulk+=ins(phi([KF+e for e in range(16)],[V_LC+e%8 for e in range(16)],FR))
                if h: bulk.append(("fn",g.barrier))
                for b in range(2): bulk+=[("i",f"ds_write_b128 v{AW}, {v(FR+4*b,4)} offset:{b*1024}"),("delay",o["wp"])]
                bulk+=ins([f"s_add_u32 {S.T0}, {S.KV}, {kvo+h*4096}",f"s_add_u32 {S.T1}, {S.KV}, {kvo+8192+h*128}"])+[("at",d[f"v{h}"]+1)]
                for b in range(2):
                    x=[VF+8*b+i for i in range(8)]
                    bulk+=ins([f"v_mul_f32 v{x[i]}, v{x[i]}, v{V_LC+i}" for i in range(8)]+[f"v_cvt_pk_bf16_f32 v{FR+4*b+i}, v{x[2*i]}, v{x[2*i+1]}" for i in range(4)])
                    bulk.append(("mem",lambda b=b,tk=tk:tk.__setitem__(0,p(f"ds_write_b128 v{AW}, {v(FR+4*b,4)} offset:{2048+b*1024}"))))
                bulk+=[("delay",o["l1"]),("fn",lambda tk=tk:(p.wait(lg=tk[0]),g.barrier()))]
                for sw in range(4): bulk+=ins([f"ds_read_b128 {v(KF+4*sw,4)}, v{ARK} offset:{sw*4096}",f"ds_read_b128 {v(VF+4*sw,4)}, v{ARV} offset:{sw*4096}"])+[("delay",o["rp"])]
                bulk+=[("delay",o["l2"])]
                for sw in range(4): bulk+=ins([f"{MF} {v(KD,4)}, {v(VF+4*sw,4)}, {v(KF+4*sw,4)}, {'0' if sw==0 else v(KD,4)}",f"{MF} {v(ZD,4)}, {v(ON,4)}, {v(KF+4*sw,4)}, {'0' if sw==0 else v(ZD,4)}"])
                bulk+=[("delay",80)]
                for r in range(4): bulk.append(("mem",lambda r=r:g.vm(f"buffer_atomic_add_f32 v{KD+r}, v{VAT}, {WS}, {S.T0} offen offset:{r*64} sc1",24)))
                bulk+=[("mem",lambda h=h,tk=tk:tk.__setitem__(("kv",h),g.vm(f"buffer_atomic_add_f32 v{ZD}, v{VAZ}, {WS}, {S.T1} offen sc1",16))),("ev",f"kva{it}{h}")]
                co=8*it+4*h
                col+=[("wait",f"kva{it}{h}"),("quiet",1),("since",f"kva{it}{h}",o["kvd1"]),("mem",lambda h=h,tk=tk,co=co:(p.wait(vm=tk[("kv",h)]),g.barrier(),g.arrive(V_FL2,S.CF,co,None))),("i",f"v_mov_b32 v{V_FL2}, 0"),
                      ("delay",o["kvd2"]),("mem",lambda co=co:g.poll_issue(V_FL2,S.CF,co))]+ins([f"s_add_u32 {S.U0}, {S.KV}, {kvo+h*4096}",f"s_add_u32 {S.U1}, {S.KV}, {kvo+8192+h*128}"])
                col+=[("delay",o["kvd3"]),("fn",lambda co=co,nm=f"kv{it}{h}":(g.poll_check(V_FL2,S.CF,co,S.CT),g.barrier(),g.stamp(nm)))]
                for e in range(2):
                    for dh in range(2): col.append(("mem",lambda r=KF+8*e+4*dh,of=e*2048+dh*1024:g.vm(f"buffer_load_dwordx4 {v(r,4)}, v{VLD}, {WS}, {S.U0} offen offset:{of} {SC}",o["kvc"]))); col.append(("delay",o["kvp"]))
                for dh in range(2): col.append(("mem",lambda r=KF+16+4*dh,of=dh*64:g.vm(f"buffer_load_dwordx4 {v(r,4)}, v{VLZ}, {WS}, {S.U1} offen offset:{of} {SC}",16)))
                col+=[("quiet",-1),("ev",f"kvl{it}{h}")]
            if first:
                bulk+=ins([f"s_add_u32 {S.T0}, {S.XW}, {WS_X}",f"s_add_u32 {S.T1}, {S.XW}, {WS_X+32768}"])
                bulk+=[("vm",f"buffer_load_dwordx4 {v(V_RES+4*k,4)}, v{V_L16}, {WS}, {S.T1 if k>1 else S.T0} offen offset:{(k&1)*1024} {SC}") for k in range(4)]+[("delay",600)]
            for k in range(16): bulk+=ins([f"v_lshlrev_b32 v{B(6)+2*k}, 16, v{V_RES+k}",f"v_and_b32 v{B(6)+2*k+1}, 0xffff0000, v{V_RES+k}"])
            bulk+=[("ev",f"ci2_{it}")]
            for h in range(2):
                KR=B(2*h); Q=B(4+h); DN=KR+24
                bulk+=[("at",d[f"q{h}"]+(h==0))]
                bulk+=ins(phi([Q+e for e in range(16)],[T+46+e//8 for e in range(16)],PQ))
                bulk+=[("i",f"s_add_u32 {S.T0}, {S.XW}, {WS_O+it*XB+h*32768}"),("wait",f"kvl{it}{h}"),("since",f"kvl{it}{h}",o["kvd4"])]
                for e in range(3): bulk+=ins([f"v_cvt_pk_bf16_f32 v{KR+8*e+i}, v{KR+8*e+2*i}, v{KR+8*e+2*i+1}" for i in range(4)])
                for e in(2,0,1):
                    for mh in range(2): bulk.append(("i",f"{MF} {v(DN+4*mh if e==2 else Q+8*mh+4*e,4)}, {v(KR+8*e,4)}, {v(PQ+4*mh,4)}, 0"))
                bulk+=ins([f"v_fma_f32 v{RC+mh}, v{DN+4*mh}, v{L2E}, {S.C_EPS}" for mh in range(2)]+[f"v_rcp_f32 v{RC+mh}, v{RC+mh}" for mh in range(2)])
                for mh in range(2): bulk+=ins([f"v_mul_f32 v{Q+8*mh+i}, v{Q+8*mh+i}, v{RC+mh}" for i in range(8)]+[f"v_cvt_pk_bf16_f32 v{DN+4*mh+i}, v{Q+8*mh+2*i}, v{Q+8*mh+2*i+1}" for i in range(4)])
                bulk+=[("mem",lambda h=h,tk=tk,DN=DN:tk.__setitem__(("o",h),g.gstore([f"buffer_store_dwordx4 {v(DN+4*mh,4)}, v{V_L16}, {WS}, {S.T0} offen offset:{mh*1024}" for mh in range(2)]))),("ev",f"o{it}s{h}")]
                row+=g.rowstage(f"o{it}s{h}",24*it+4*h,tk,("o",h))
            key=f"o{it}"; g.panel(key,32); pan.append((key,32,V_XP,WS_O+it*XB,sev(key))); n0=len(U); marks.append((n0,"vp2"))
            d=g.stair(U,"o",key,32,[(0,(0,1),0),(1,(2,3),o["L2"])],aB([B(6),B(7)])); U[n0]["pre"]=f"ci2_{it}"; U[n0]["stamp"]=f"p2s{it}"
            if first: bulk+=g.table_load(True,T+8)+[("delay",700)]+g.table_make(True,T+8,tk)+[("delay",150),("fn",lambda tk=tk:(p.wait(lg=tk["t"]),g.barrier()))]
            for k2 in range(2):
                bulk+=[("at",d[k2]+(k2==0))]+ins([f"v_cvt_pk_bf16_f32 v{V_RES+k}, v{B(6)+2*k}, v{B(6)+2*k+1}" for k in range(8*k2,8*k2+8)])+g.pub_half(k2,xi+1,tk)
                row+=g.rowstage(f"x{xi+1}s{k2}",24*it+8+4*k2,tk,("x",k2))
            key=f"x{xi+1}"; g.panel(key,32); pan.append((key,32,V_XP,WS_X+(xi+1)*XB,sev(key))); n0=len(U); ev=f"st3_{it}"
            a3=aB([B(b) for b in range(7)]); L3=o["L3"]; b0=len(L3)
            done=g.stair(U,"1",key,32,[(b,(2*b,2*b+1),L3[b]) for b in range(b0)],a3,first=z0,mid=(min(28,32-max(L3)),[g.ext(4096+256*b,a3(b),False,False,ev) for b in range(2*b0)]))
            U[n0]["stamp"]=f"p3s{it}"; U[n0]["pre"]=f"o{it}s1"; marks+=[(n0,"vp0"),(done[0]+1,"vp3")]; nb_=len(U)
            for nb in o["G3"]:
                U+=[g.ext(4096+256*b,a3(b),False,True,ev) for b in range(2*b0,2*(b0+nb))]
                done.update(g.stair(U,"1",key,32,[(b,(2*b,2*b+1),0) for b in range(b0,b0+nb)],a3)); b0+=nb
            assert b0==7; U[nb_]["stamp"]=f"p3b{it}"
            key=f"h{it}"; g.panel(key,56); FB=o["FB"]; L4=o["L4"]
            pan.append((key,56,V_HP,WS_H+it*HB,lambda ks,it=it:"hf%d_%d"%(it,min(i for i,x in enumerate(FB) if ks//8<x))))
            KB=[B(7),B(0)]; SB=[B(1),B(2)]; RX=B(3); B2R=T+16; n0=len(U)
            d=g.stair(U,"2",key,56,[("S0",(4,5),L4[2]),("S1",(6,7),L4[3]),("K0",(0,1),L4[0]),("K1",(2,3),L4[1])],aB(KB+SB),first=lambda ks,b:(None if ks or b<4 else "0"))
            U[n0]["pre"]=f"e3_{it}"; U[n0]["stamp"]=f"p4s{it}"; U[d["S0"]+1]["stamp"]=f"p4k{it}"; marks+=[(n0,"vp4"),(d["S0"]+1,"vp5")]
            bulk+=[("wait",f"x{xi+1}s1r")]+g.side_stats(True,xi+1,[("delay",o["sd"])])+[("ev",ev)]
            bulk+=ins([f"v_and_b32 v{T}, 48, v{V_LANE}",f"v_add_u32 v{T}, {L_B2}, v{T}"]+[f"ds_read_b128 {v(B2R+4*b,4)}, v{T} offset:{64*b}" for b in range(4)])
            def cinit(k2):
                l=[]
                for k in range(8):
                    dd=KB[k2]+2*k; bb=B2R+8*k2+(2*k)%8
                    l+=[f"v_lshlrev_b32 v{dd}, 16, v{V_RES+8*k2+k}",f"v_and_b32 v{dd+1}, 0xffff0000, v{V_RES+8*k2+k}",f"v_add_f32 v{dd}, v{dd}, v{bb}",f"v_add_f32 v{dd+1}, v{dd+1}, v{bb+1}"]
                return ins(l)
            bulk+=[("delay",100)]+cinit(0); batch=[]
            for b in range(7):
                bulk.append(("at",done[b]+1))
                X=B(b); t=lambda e:T+e%8; L=lambda e:V_LC+3*(e//8); O0=T+32+8*(b&1)
                bulk+=ins(wave([lambda e:f"v_mul_f32 v{t(e)}, v{X+e}, v{X+e}",lambda e:f"v_fma_f32 v{t(e)}, v{t(e)}, v{L(e)+1}, v{L(e)}",lambda e:f"v_mul_f32 v{t(e)}, v{t(e)}, v{X+e}",
                                lambda e:f"v_exp_f32 v{t(e)}, v{t(e)}",lambda e:f"v_fma_f32 v{t(e)}, v{t(e)}, v{L(e)+2}, v{L(e)+2}",lambda e:f"v_rcp_f32 v{t(e)}, v{t(e)}",
                                lambda e:f"v_mul_f32 v{X+e}, v{t(e)}, v{X+e}"],16,lambda e:[f"v_cvt_pk_bf16_f32 v{O0+e//2}, v{X+e-1}, v{X+e}"] if e&1 else []))
                for mh in range(2):
                    Oo=O0+4*mh
                    batch.append((Oo,b,mh))
                    if len(batch)>=o["HBT"] or (mh and b+1 in FB):
                        for bb in sorted({x[1] for x in batch}): bulk.append(("i",f"s_add_u32 {S.T0 if bb&1 else S.T1}, {S.HW}, {WS_H+it*HB+bb*16384}"))
                        bulk.append(("mem",lambda b=b,batch=batch,tk=tk:tk.__setitem__(("h",b),g.gstore([f"buffer_store_dwordx4 {v(r,4)}, v{V_L16}, {WS}, {S.T0 if bb&1 else S.T1} offen offset:{m*1024}" for r,bb,m in batch]))))
                        batch=[]
                if b+1 in FB:
                    g.nstage+=1; k=g.nstage; bulk.append(("ev",f"hs{it}{b}"))
                    row+=[("wait",f"hs{it}{b}"),("i",f"v_mov_b32 v{V_FLG}, {k}"),("since",f"hs{it}{b}",o["hd1"]),("mem",lambda k=k,b=b,tk=tk:g.flag(k,tk[("h",b)])),("delay",o["hd2"]),("mem",g.fpoll),("delay",o["hd3"]),
                          ("fn",lambda k=k,nm=f"hf{it}{b}":(g.fcheck(k),g.stamp(nm) if o.get("hst") else None)),("ev",f"hf{it}_{FB.index(b+1)}")]
                if b==0: bulk+=cinit(1)
                if b==2: bulk.append(("ev",f"e3_{it}"))
            for k2 in range(2):
                bulk+=[("i",f"s_add_u32 {S.T0}, {S.EXW}, {it*4*MB}"),("at",d[f"S{k2}"]+1)]+ins([f"v_cvt_pk_bf16_f32 v{RX+8*k2+k}, v{SB[k2]+2*k}, v{SB[k2]+2*k+1}" for k in range(8)])
                bulk+=[("mem",lambda k2=k2,tk=tk,RX=RX:tk.__setitem__(("e",k2),g.gstore([f"buffer_store_dwordx4 {v(RX+8*k2+4*m,4)}, v{V_L16}, {WS}, {S.T0} offen offset:{(2*k2+m)*1024}" for m in range(2)]))),("ev",f"es{it}{k2}")]
                col+=[("wait",f"es{it}{k2}"),("since",f"es{it}{k2}",o["exd1"]),("mem",lambda k2=k2,tk=tk:g.arrive(V_FL2,S.RFW,64,tk[("e",k2)])),("i",f"v_mov_b32 v{V_FL2}, 0"),("delay",o["exd2"]),("mem",lambda:g.poll_issue(V_FL2,S.RFP,64)),
                      ("i",f"s_add_u32 {S.U0}, {S.EXR}, {it*4*MB}"),("delay",o["exd3"]),("fn",lambda c=2*it+k2+1,nm=f"ex{it}{k2}":(g.poll_check(V_FL2,S.RFP,64,c),g.stamp(nm)))]
                col+=[("mem",lambda r=RX+8*k2+4*m,of=(2*k2+m)*1024:g.vm(f"buffer_load_dwordx4 {v(r,4)}, v{V_L16}, {WS}, {S.U0} offen offset:{of} {SC}")) for m in range(2)]+[("ev",f"el{it}{k2}")]
            if it: bulk.append(("fn",g.rowaddr))
            for k2 in range(2):
                bulk+=[("wait",f"el{it}{k2}"),("since",f"el{it}{k2}",o["exd4"])]
                for k in range(8): bulk+=ins([f"v_lshlrev_b32 v{SB[k2]+2*k}, 16, v{RX+8*k2+k}",f"v_and_b32 v{SB[k2]+2*k+1}, 0xffff0000, v{RX+8*k2+k}"])
                bulk+=[("at",d[f"K{k2}"]+(k2==0))]
                for k in range(8): bulk+=ins([f"v_add_f32 v{KB[k2]+2*k}, v{KB[k2]+2*k}, v{SB[k2]+2*k}",f"v_add_f32 v{KB[k2]+2*k+1}, v{KB[k2]+2*k+1}, v{SB[k2]+2*k+1}",
                                              f"v_cvt_pk_bf16_f32 v{V_RES+8*k2+k}, v{KB[k2]+2*k}, v{KB[k2]+2*k+1}"])
                bulk+=[("ev",f"fin{it}_{k2}")]
                if it==0: bulk+=g.pub_half(k2,2,tk); row+=g.rowstage(f"x2s{k2}",16+4*k2,tk,("x",k2))
                else:
                    for k in(2*k2,2*k2+1):
                        bulk+=ins([f"v_permlane16_swap_b32 v{V_RES+4*k}, v{V_RES+4*k+2}",f"v_permlane16_swap_b32 v{V_RES+4*k+1}, v{V_RES+4*k+3}"])
                        bulk+=[("mem",lambda k=k:g.vm(f"buffer_store_dwordx4 {v(V_RES+4*k,4)}, v{T+1}, {TS}, {S.T1 if k&1 else S.T0} offen offset:{64*(k>>1)} {o['osc']}"))]
            assert g.nu==NSL*16*(it+1)
        lastuse={}
        for n,u in enumerate(U):
            if u["akey"]: lastuse[g.kbase[u["akey"][0]]+u["akey"][1]]=n
        for key,n,vb,off,ev in pan: Aq+=g.aloads(key,n,vb,off,lambda k:(lambda n:k<32 or n>=lastuse[k-32]),ev)
        vp=[0]*len(U)
        for (n,nm),(m,_) in zip(marks,marks[1:]+[(len(U),0)]): vp[n:m]=[o[nm]]*(m-n)
        g.stream(U,Aq,[row,col,bulk],lambda n:vp[n])
        assert not(row or col or bulk),(row[:2],col[:2],bulk[:2])
        p(f"s_add_u32 {S.T2}, s2, {S.W}\ns_min_u32 {S.T2}, {S.T2}, 1\ns_lshl_b32 {S.T2}, {S.T2}, 30\ns_add_u32 {S.T2}, {S.T2}, {WS_EP}\nv_mov_b32 v{V_FLG}, {S.EP}")
        p(f"buffer_store_dword v{V_FLG}, v{V_ONE}, {WS}, {S.T2} offen")
        return g.finish()
    def table(g):
        rows=[]; P=lambda m,ks,nb:g.pos[(m,ks,nb)]*1024
        for par in range(2):
            for mb in range(64):
                i,w=divmod(mb,4); src=[]; pos=[]
                for r in range(2):
                    ks=2*i+r; kp=r*16+((i&1)^par)*8+(i>>1)
                    if w<3: src.append(ks*32*RQ+(2048,4096,0)[w]+128*par); pos+=[P("q",kp,4*w+nb) for nb in range(4)]
                    else: src.append(ks*32*R2+128*par); pos+=[P("o",kp,nb) for nb in range(4)]
                for r in range(2):
                    ks=2*i+r; kp=r*16+((i&1)^par)*8+(i>>1)
                    if w<3: src.append(ks*32*R1+512*par+128*w); pos+=[P("1",kp,4*w+nb) for nb in range(4)]
                    else: src.append(ks*32*R1+384); pos+=[P("1",kp,12+(nb&1)) if nb>>1==par else OOB for nb in range(4)]
                for r in range(2):
                    q=7*i+min(2*w+r,6); ks,pr=divmod(q,2); b,jj=divmod(ks,8)
                    row=448*jj+224*par+((32+32*b if b<6 else 0) if par else 32*b)
                    src.append(row*R2+128*(pr^par)); pos+=[P("2",ks,4*pr+nb) if 2*w+r<7 else OOB for nb in range(4)]
                rows.append(src+[0,0]+pos)
        return ".p2align 7\n.type L_tab,@object\nL_tab:\n"+"".join(".long "+",".join(map(str,r))+"\n" for r in rows)
    def finish(g):
        p=g.p
        if g.o["prof"]:
            p.waitall(); g.stamp("end"); g.flush_stamps()
            p(f"s_lshl_b32 {S.T0}, s2, 2\ns_add_u32 {S.T0}, {S.T0}, {S.W}\ns_lshl_b32 {S.T0}, {S.T0}, 8\ns_add_u32 {S.T0}, {S.T0}, {WS_TS}\nv_lshlrev_b32 v{V_T}, 2, v{V_LANE}")
            p(f"buffer_store_dword v{V_TS}, v{V_T}, {WS}, {S.T0} offen")
            if g.o.get("dbg"):
                p("s_load_dwordx2 s[96:97], s[0:1], 72\ns_mov_b32 s98, 256\ns_mov_b32 s99, 0x20000"); p.waitall()
                sel=[0,0]+[g.names.index(n) for n in g.o["dbg"]]
                for k,l in enumerate(sel[1:],1):
                    p(f"v_readlane_b32 {S.T1}, v{V_TS}, {l}")
                    if k==1: p(f"s_not_b32 {S.T1}, {S.T1}")
                    p(f"v_writelane_b32 v{V_T+1}, {S.T1}, {k}")
                p(f"s_cmp_lg_u32 {S.W}, 0\ns_cbranch_scc1 L_end\ns_mov_b64 exec, {hex((1<<len(sel))-2)}\nbuffer_atomic_umax v{V_T+1}, v{V_T}, s[96:99], 0 offen sc1")
        p.raw("s_endpgm")
        p.out[p.out.index("@ISLAND@")]="s_branch L_over\nL_end:\ns_endpgm\n"+"\n".join(g.slow)+"\nL_over:"
        p.raw(g.table())
        hdr=open("cdna_kernels/"+NAME[:-7]+".s.ref").read().split("; Override")[0]
        hdr+=f"; @launch grid=(256,1,1) block=(256,1,1) lds={LDS_BYTES}\n"
        hdr+=f'.amdgcn_target "amdgcn-amd-amdhsa--gfx950"\n.text\n.globl {NAME}\n.p2align 8\n.type {NAME},@function\n'
        kd=f""".section .rodata,"a"
.p2align 6
.amdhsa_kernel {NAME}
  .amdhsa_next_free_vgpr 512
  .amdhsa_next_free_sgpr 102
  .amdhsa_accum_offset 256
  .amdhsa_group_segment_fixed_size 0
  .amdhsa_kernarg_size 88
  .amdhsa_user_sgpr_count 2
  .amdhsa_user_sgpr_kernarg_segment_ptr 1
  .amdhsa_system_sgpr_workgroup_id_x 1
  .amdhsa_float_denorm_mode_32 3
.end_amdhsa_kernel
"""
        return hdr+p.text()+kd
def make(**o):
    g=Gen(**o); s=g.build(); return s,g
if __name__=="__main__":
    o={}
    for x in sys.argv[2:]:
        k,val=x.split("="); o[k]=eval(val)
    s,g=make(**o); open(sys.argv[1],"w").write(s)
    print("bytes",len(s),"lines",s.count("\n"),"nops",g.p.nops,"autowaits",g.p.autow,"est cyc",g.t,"pen",g.p.pen,"forced",g.forced,"stall",g.stall); print(g.log)
```

```python
import re
TRANS=("v_exp_f32","v_log_f32","v_rcp_f32","v_rsq_f32","v_sqrt_f32","v_sin_f32","v_cos_f32")
_rx=re.compile(r"^(-|abs\()?([vas])(?:(\d+)|\[(\d+):(\d+)\])\)?$")
def regs(op):
    op=op.strip()
    if op in("vcc","exec","m0","scc"): return [op]
    if op in("vcc_lo","vcc_hi"): return ["vcc"]
    if op in("exec_lo","exec_hi"): return ["exec"]
    m=_rx.match(op)
    if not m: return []
    k=m.group(2)
    if m.group(3) is not None: return [(k,int(m.group(3)))]
    return [(k,i) for i in range(int(m.group(4)),int(m.group(5))+1)]
class I:
    __slots__=("text","op","kind","rd","wr","srcs","states","wide","lds")
    def __init__(s,text):
        s.text=text; p=text.split(None,1); s.op=p[0]; rest=p[1] if len(p)>1 else ""
        ops=[]
        for x in rest.split(","):
            x=x.strip()
            if x: ops.append(x.split()[0])
        op=s.op; s.states=1; s.wide=False; s.lds=False; s.srcs=[]
        R=lambda l:[r for o in l for r in regs(o)]
        if op.endswith(":") or op.startswith("."): s.kind="label"; s.rd=[]; s.wr=[]; s.states=0
        elif op=="s_nop": s.kind="nop"; s.rd=[]; s.wr=[]; s.states=int(ops[0])+1
        elif op.startswith("v_mfma"):
            s.kind="mfma"; s.wr=R(ops[:1]); s.srcs=[regs(o) for o in ops[1:4]]; s.rd=R(ops[1:4])
        elif op.startswith("buffer_load"):
            s.kind="vmem"; s.lds=(" lds" in text)
            if s.lds: s.wr=[]; s.rd=R(ops)+["m0"]
            else: s.wr=R(ops[:1]); s.rd=R(ops[1:])
        elif op.startswith("global_load"):
            s.kind="vmem"; s.lds=("_lds_" in op)
            if s.lds: s.wr=[]; s.rd=R(ops)+["m0"]
            else: s.wr=R(ops[:1]); s.rd=R(ops[1:])
        elif op.startswith("buffer_store") or op.startswith("buffer_atomic"):
            s.kind="vmem"; s.wr=[]; s.rd=R(ops); s.wide=op.endswith("x4") or op.endswith("x3"); s.srcs=[regs(ops[0])]
            if op.startswith("buffer_atomic") and " sc0" in text: s.wr=R(ops[:1])
        elif op.startswith("ds_read") or op.startswith("ds_bpermute"):
            s.kind="ds"; s.wr=R(ops[:1]); s.rd=R(ops[1:])
        elif op.startswith("ds_write"): s.kind="ds"; s.wr=[]; s.rd=R(ops)
        elif op.startswith("v_"):
            s.kind="valu"
            if op.startswith("v_permlane"): s.wr=R(ops[:2]); s.rd=R(ops[:2])
            elif op.startswith("v_writelane") or op.startswith("v_fmac") or op.startswith("v_dot2c"): s.wr=R(ops[:1]); s.rd=R(ops)
            elif op.endswith("_dpp"): s.wr=R(ops[:1]); s.rd=R(ops)
            else: s.wr=R(ops[:1]); s.rd=R(ops[1:])
            s.srcs=[regs(o) for o in ops[1:]]
        elif op.startswith("s_"):
            s.kind="salu"
            if op in("s_waitcnt","s_barrier","s_sleep","s_endpgm","s_setprio","s_branch") : s.rd=[]; s.wr=[]
            elif op.startswith("s_cbranch"): s.rd=["vcc"] if "vcc" in op else []; s.wr=[]
            elif op.startswith(("s_cmp","s_bitcmp")): s.rd=R(ops); s.wr=[]
            elif op.startswith("s_atomic"): s.kind="smem"; s.wr=R(ops[:1]) if " glc" in text else []; s.rd=R(ops)
            elif op.startswith("s_load") or op.startswith("s_mem"): s.kind="smem"; s.wr=R(ops[:1]); s.rd=R(ops[1:])
            else: s.wr=R(ops[:1]); s.rd=R(ops[1:])
        else: raise ValueError(text)
def isv(r): return isinstance(r,tuple) and r[0] in "va"
def iss(r): return r=="vcc" or (isinstance(r,tuple) and r[0]=="s")
def need(p,c):
    n=0; pw=set(p.wr); crd=set(c.rd); cwr=set(c.wr)
    if p.kind=="mfma":
        pas=4 if "16x16x32" in p.op else 8
        if c.kind=="mfma":
            if pw&(set(c.srcs[0])|set(c.srcs[1])): n=max(n,pas+4)
            if pw&set(c.srcs[2]) and p.wr!=c.srcs[2]: n=max(n,pas+2)
            if pw&cwr and p.wr!=c.srcs[2]: n=max(n,pas+2)
        elif c.kind in("valu","vmem","ds"):
            if pw&(crd|cwr): n=max(n,pas+4)
            if set(p.srcs[2])&cwr: n=max(n,pas-1)
    elif p.kind=="valu":
        wv={r for r in pw if isv(r)}; ws={r for r in pw if iss(r)}
        if c.kind=="mfma" and wv&crd: n=max(n,3 if p.op.startswith("v_dot2") else 2)
        if c.kind=="valu":
            if wv&crd:
                if c.op.startswith("v_permlane") or c.op.endswith("_dpp"): n=max(n,2)
                if c.op.startswith("v_readlane") or c.op.startswith("v_readfirstlane"): n=max(n,1)
                if p.op in TRANS or "op_sel" in p.text or "sdwa" in p.op: n=max(n,1)
            if p.op.startswith("v_dot2") and wv&(crd|cwr):
                if c.op!=p.op or wv&(set(c.srcs[0])|set(c.srcs[1])): n=max(n,3)
            if ws&crd: n=max(n,4 if c.op.startswith(("v_readlane","v_writelane")) else 2)
        if c.kind in("vmem","ds") and p.op.startswith("v_dot2") and wv&crd: n=max(n,3)
        if c.kind in("vmem","ds") and p.op in TRANS and wv&crd: n=max(n,1)
        if c.kind=="vmem" and ws&crd: n=max(n,5)
        if c.kind in("salu","smem") and ws&crd: n=max(n,1)
    elif p.kind=="salu":
        if "m0" in pw and "m0" in crd and c.kind in("vmem","valu"): n=max(n,1)
    elif p.kind=="vmem":
        if p.wide and set(p.srcs[0])&cwr: n=max(n,2)
    return n
class Prog:
    def __init__(s):
        s.out=[]; s.hist=[]; s.nvm=0; s.nlg=0; s.vmdone=0; s.lgdone=0; s.pvm={}; s.plg={}; s.nops=0; s.cyc=0; s.autow=0; s.vseen=False; s.dseen=False; s.gap0=0; s.pen=0; s.onwait=None; s.onlg=None
    def raw(s,text): s.out.append(text)
    def _put(s,i):
        s.out.append(i.text)
        if i.states: s.hist.append(i); s.hist=s.hist[-24:]
        s.cyc+= 8 if (i.kind=="mfma" or i.op in TRANS or i.op.startswith("buffer_")) else 4*i.states
        if i.kind in("vmem","ds") and s.vseen: s.cyc+=8; s.pen+=1; s.vseen=False
        if i.op.startswith("v_dot2") and not s.dseen: s.cyc+=16; s.dseen=True
        if i.kind=="valu": s.vseen=True
        if i.kind=="mfma": s.vseen=False; s.dseen=False; s.gap0=s.cyc
    def wait(s,vm=None,lg=None):
        parts=[]
        if vm is not None and vm>s.vmdone:
            n=min(s.nvm-vm,63); parts.append(f"vmcnt({n})"); s.vmdone=s.nvm-n
            if s.onwait: s.onwait(s.vmdone)
        if lg is not None and lg>s.lgdone:
            n=min(s.nlg-lg,15); parts.append(f"lgkmcnt({n})"); s.lgdone=s.nlg-n
            if s.onlg: s.onlg(n)
        if parts: s._put(I("s_waitcnt "+" ".join(parts)))
        return bool(parts)
    def waitall(s,vm=True,lg=True):
        p=[]
        if vm: p.append("vmcnt(0)"); s.vmdone=s.nvm
        if lg: p.append("lgkmcnt(0)"); s.lgdone=s.nlg
        s._put(I("s_waitcnt "+" ".join(p)))
    def __call__(s,text):
        t=None
        for l in text.split("\n"):
            l=l.split(";")[0].strip()
            if l: t=s.one(l)
        return t
    def prep(s,text):
        s.one(text,True)
    def one(s,text,dry=False):
        i=I(text)
        touched=list(i.rd)+list(i.wr)
        vm=max([s.pvm.get(r,0) for r in touched]+[0]); lg=max([s.plg.get(r,0) for r in touched]+[0])
        if s.wait(vm or None,lg or None): s.autow+=1
        d=0; k=0
        for p in reversed(s.hist):
            k=max(k,need(p,i)-d); d+=p.states
            if d>=14: break
        if k>0: s.nops+=k; s._put(I(f"s_nop {k-1}"))
        if dry: return
        s._put(i)
        if i.kind=="vmem":
            s.nvm+=1
            for r in i.wr: s.pvm[r]=s.nvm
            return s.nvm
        if i.kind=="ds":
            s.nlg+=1
            for r in i.wr: s.plg[r]=s.nlg
            return s.nlg
    def text(s): return "\n".join(s.out)+"\n"
```

```python
import sys, math, struct
from ir import *
NAME="interleave_layers__linear_attn_block__dense_activation_gelu__prompt_kernel"
def f2u(x): return struct.unpack("<I",struct.pack("<f",x))[0]
def F(x): return hex(f2u(x))
LOG2E=1.4426950408889634; LN2=0.6931471805599453
MB=1<<20
WS_ROWF=0; WS_COLF=16384; WS_F0=0x8000; WS_EP=0x6000; WS_SA=0x10000; WS_CSQ=0x40000; WS_CS1=0x80000; WS_KV=0xc0000; WS_ST=0x140000; WS_TS=0x240000
WS_X=3*MB; XB=4*MB+0x40000; WS_O=WS_X+4*XB; WS_EX=30*MB; WS_H=38*MB; HB=15*MB; WS_WT=68*MB
KVS=8704; WTS=88*16384+2048
OOB=0x40000000
L_SCR=131072; L_EXT1=147456; L_EXT3=L_EXT1+4096; L_B2=L_EXT3+4096; LDS_BYTES=L_B2+256
RQ,R2,R1=6144,2048,7168
class S: pass
_s=["I","J","W","MBk","PAR","T0","T1","T2","T3","U0","U1","LDSW","EP","ONE","TO",
    "HW","XW","STP","KV","EXW","EXR","RF","RFW","RFP","CF","RFH","PR","PC","AW1","AW2","C_EPS","C_LN2"]
for n,x in enumerate(_s): setattr(S,x,f"s{32+n}")
assert len(_s)<=32
SM='s[100:101]'; SN='s[98:99]'
S_TAB=64
WQ,WO,W1,W2,WS,TS,B1="s[4:7]","s[8:11]","s[12:15]","s[16:19]","s[20:23]","s[24:27]","s[28:31]"
WSP="s[20:21]"
V_L16,V_ONE,V_FALL,V_STAT,V_WP,V_A,V_RD,_,V_EXT,V_FLG,V_TS,V_LANE,V_CP,_,V_XP,V_HP=range(16)
V_WF=16; V_RES=48; V_XE=64; V_LC=72; V_ACC=80; V_T=208
def icost(t):
    c=0
    for l in t.split("\n"):
        op=l.split()[0]
        c+=8 if (op in TRANS or op.startswith(("v_mfma","buffer_"))) else 4
    return c
def ismem(it): return it[0] in("vm","mem") or (it[0]=="i" and it[1].startswith(("ds_","buffer_","global_")))
def v(a,n=1): return f"v{a}" if n==1 else f"v[{a}:{a+n-1}]"
def a_(a,n=4): return f"a[{a}:{a+n-1}]"
MF="v_mfma_f32_16x16x32_bf16"
SC="sc1"
NSL=88
def ins(l): return [("i",x) for x in l]

def wave(stages,n,tail):
    l=[]
    for t in range(n+len(stages)):
        for s_,f in enumerate(stages):
            if 0<=t-s_<n: l.append(f(t-s_))
        if 0<=t-len(stages)<n: l+=tail(t-len(stages))
    return l

class Gen:
    def __init__(g,**o):
        g.o=dict(D=7,SL=800,WE=4,L1=(0,14,14,14),KX=18,LQ=32,L2=16,L3=(0,0,0,0),G3=(3,),L4=(24,28,0,8),FB=(1,2,3,4,5,6,7),cpf=True,HBT=2,xm=4,STG=200,
                 DEPTH=440,LOW=150,LEAD=24,FULL=520,URG=48,COST=72,prof=False,vp0=2.0,vp1=3.2,vpq=5.0,vp2=8.0,vp3=3.4,vp4=2.8,vp5=3,SK=512,half=(),osc='',inl=True,late=2,lt=(150,10),sat=True,rdb=300,gp=True,kvc=140,kvp=100,wp=40,rp=30,la=3,cmax=8,cmin=-16,ipf=192,sd=1100,l1=128,l2=128,QD=0,QL=48,abl='',
                 rd1=750,rd2=450,rd3=700,ld2=200,ld3=350,LAT0=200,burst=8,kvd1=1100,kvd2=700,kvd3=850,kvd4=600,hd1=800,hd2=800,hd3=750,
                 exd1=750,exd2=600,exd3=850,exd4=600,pre0=8,p0o=0,wnt='nt',xnt='nt',tst='sc1')
        g.o.update(o); g.p=Prog(); g.slow=[]; g.nlab=0; g.tsq=[]; g.names=[]
        g.dma_t={}; g.lastrd={}; g.ready=set(); g.released=set(); g.nextD=0; g.maxD=2*NSL*4; g.t=0; g.free_at=0; g.ev=set()
        g.nu=0; g.pos={}; g.nunit=0; g.forced=0; g.m0dirty=False; g.instream=False; g.later=[]; g.sm=[]; g.lgbad=0; g.nk=0; g.kbase={}; g.nstage=0
    def stamp(g,name,now=False):
        if not g.o["prof"]: return
        if g.o.get("fine") and not(name[0]=="u" or name in("start","end","p3s0","p3s1")): return
        if len(g.tsq)==8 and not now: g.flush_stamps()
        r=S_TAB+6 if now else S_TAB+2*len(g.tsq)
        g.p(f"s_sub_u32 s{r}, 0, {S.TO}" if g.o['prof']=='to' else f"{'s_memtime' if g.o['prof']=='cy' else 's_memrealtime'} s[{r}:{r+1}]"); g.tsq.append((name,r))
        if now: g.flush_stamps()
    def flush_stamps(g):
        if not g.o["prof"] or not g.tsq: return
        p=g.p; p.waitall(vm=False)
        for name,r in g.tsq:
            assert len(g.names)<64; p(f"v_writelane_b32 v{V_TS}, s{r}, {len(g.names)}"); g.names.append(name)
        g.tsq=[]
    def vm(g,text,cost=None):
        ab=g.o["abl"] if g.instream else ""
        if g.o.get("skipA") and text.startswith("global_load_dwordx4"):
            g.ska=getattr(g,"ska",0)+1
            if g.ska>64 and g.ska%g.o["skipA"]==1: return max(g.p.nvm-8,1)
        if ("s" in ab and text.startswith("buffer_store_dwordx4") and TS not in text) or ("a" in ab and text.startswith("global_load_dwordx4")) or ("w" in ab and "load_lds" in text) or ("k" in ab and "add_f32" in text): t=g.p.nvm
        else: t=g.p(text)
        c=g.o["COST"] if cost is None else cost
        g.t=max(g.t,g.free_at-g.o["FULL"])
        g.free_at=max(g.free_at,g.t)+c; return t
    def barrier(g):
        p=g.p; p("s_barrier")
        for s,t in g.lastrd.items():
            if t<=p.lgdone: g.released.add(s)
        for s,(t,n) in g.dma_t.items():
            if n==4 and t<=p.vmdone: g.ready.add(s)
    def dma_ok(g):
        s=g.nextD//4
        return g.nextD<g.maxD and (s<8 or (s-8) in g.released) and (s<32 or "kvl01" in g.ev) and (s<60 or "o0s1r" in g.ev)
    def dma_ops(g):
        s,q=divmod(g.nextD,4); g.nextD+=1; p=g.p; ops=[]
        I_=lambda t:ops.append((4,lambda:p(t)))
        if q==0 or g.m0dirty: I_(f"s_add_u32 m0, {S.LDSW}, {(s%8)*16384}")
        if q==0 and s and g.o.get("fakeW"): I_(f"v_add_u32 v{V_WP}, {16384 if s%4 else hex((-3*16384)&0xffffffff)}, v{V_WP}")
        elif q==0 and s: I_(f"v_add_u32 v{V_WP}, {16384 if s!=NSL else hex((16384*(1-NSL))&0xffffffff)}, v{V_WP}")
        g.m0dirty=False
        def go(): g.dma_t[s]=(g.vm(f"global_load_lds_dwordx4 v{V_WP}, {WSP} offset:{q*1024} {SC}"),q+1)
        ops.append((4,go,1)); return ops
    def dma(g):
        for x in g.dma_ops(): x[1]()
    def pump(g,n):
        while n>0 and g.dma_ok(): g.dma(); n-=1
    def arrive(g,soff,off,ticket):
        if "p" in g.o["abl"]: return
        g.p.wait(vm=ticket); g.p(f"s_atomic_add {S.ONE}, {WSP}, {soff} offset:{off}"); g.sm.append(g.t+g.o["SL"])
    def poll_issue(g,r,soff,off):
        if "p" in g.o["abl"]: return
        g.p(f"s_atomic_add {r}, {WSP}, {soff} offset:{off} glc"); g.sm.append(1e18)
    def poll_check(g,r,soff,off,target):
        if "p" not in g.o["abl"]: g.sm.remove(1e18)
        if "c" in g.o["abl"]: return
        p=g.p; n=g.nlab; g.nlab+=1
        p(f"s_cmp_lt_u32 {r}, {target}")
        g.retry(n,f"""L_slow{n}:
s_waitcnt lgkmcnt(0)
s_cmp_ge_u32 {r}, {target}
s_cbranch_scc1 L_back{n}
s_mov_b32 {r}, 0
s_atomic_add {r}, {WSP}, {soff} offset:{off} glc
s_sub_u32 {S.TO}, {S.TO}, 1
s_cbranch_scc0 L_slow{n}
s_endpgm""")
    def stage(g,r,ev,aoff,poff,off,tk,key,target,d,after=None):
        return [("wait",ev),("i",f"s_mov_b32 {r}, 0"),("since",ev,d[0]),("fn",lambda:g.arrive(aoff,off,tk[key])),("delay",d[1]),("fn",lambda:g.poll_issue(r,poff,off)),("delay",d[2]),
                ("fn",lambda:(g.poll_check(r,poff,off,target),after() if after else None))]
    def retry(g,n,body):
        p=g.p
        if g.o["inl"]: p(f"s_cbranch_scc0 L_back{n}"); p.raw(body)
        else: p(f"s_cbranch_scc1 L_slow{n}"); g.slow.append(body)
        p.raw(f"L_back{n}:")
    def gstore(g,l,cost=None):
        for x in l:
            t=g.vm(x+" sc1",g.o["STG"] if cost is None else cost)
            if cost is None: g.p.cyc+=48
        return t
    def panel(g,key,n): g.kbase[key]=g.nk; g.nk+=n
    def areg(g,key,ks): return 8*((g.kbase[key]+ks)%32)
    def unit(g,mat,key,ks,nb,acc,tr,first):
        u=g.nu; g.nu+=1; a=g.areg(key,ks)
        assert g.pos.setdefault((mat,ks,nb),u%(NSL*16))==u%(NSL*16)
        return dict(slot=u//16,rd=(V_RD+(u%128)//64,(u%64)*1024),x=[a_(a),a_(a+4)],acc=acc,tr=tr,first=first,akey=(key,ks))
    def stair(g,U,mat,key,n,blocks,accf,tr=False,first=lambda ks,nb:None,mid=None):
        done={}
        for ks in range(n):
            if mid and ks==mid[0]: U+=mid[1]
            for name,nbs,lag in blocks:
                if ks<n-lag:
                    for nb in nbs: U.append(g.unit(mat,key,ks,nb,accf(nb),tr,first(ks,nb)))
                    done[name]=len(U)-1
        for name,nbs,lag in blocks:
            for ks in range(n-lag,n):
                for nb in nbs: U.append(g.unit(mat,key,ks,nb,accf(nb),tr,first(ks,nb)))
                done[name]=len(U)-1
        return done
    def ext(g,off,accs,tr,first,ev):
        return dict(slot=None,rd=(V_EXT,off),x=[v(V_XE,4),v(V_XE+4,4)],acc=accs,tr=tr,first="0" if first else None,akey=None,ev=ev)
    def stream(g,U,Aq,sides,vpu,lat=550):
        p=g.p; D=g.o["D"]; WE=g.o["WE"]; NF=D+1; N=len(U); base=g.nunit
        firstuse={}; lastu={}; firstu={}
        for n,u in enumerate(U):
            if u["akey"]: firstuse.setdefault(u["akey"],n)
            if u["slot"] is not None: lastu[u["slot"]]=n; firstu.setdefault(u["slot"],n)
        At={}; rd_t={}; st=dict(n=-1,dl=1e9,th=0,c0=0,q=0); mq=[]; g.instream=True; p.onlg=lambda k:setattr(g,'lgbad',g.lgbad+(k<=sum(x>g.t for x in g.sm) and any(x>g.t for x in g.sm))); g.stall=0; g.log=[]; g.evlog=[]; g.evt={}
        def tpeek(side,force=False):
            while side:
                it=side[0]
                if it[0]=="at":
                    if st["n"]<it[1]: return None
                elif it[0]=="quiet": st["q"]+=it[1]
                elif it[0]=="wait":
                    if it[1] not in g.ev: return None
                elif it[0]=="since":
                    side[0]=("delay",it[2],g.evt[it[1]]+it[2]); continue
                elif it[0]=="delay":
                    if len(it)==2: side[0]=it=("delay",it[1],g.t+it[1])
                    if g.t<it[2] and not force: return None
                elif it[0]=="ev":
                    if it[1] not in g.ev: g.evlog.append((st["n"],it[1])); g.evt[it[1]]=g.t
                    g.ev.add(it[1])
                else:
                    if it[0]=="vm" and not force and g.free_at-g.t>g.o["DEPTH"]+100: return None
                    return 8 if it[0] in("fn","mem") else icost(it[1])
                side.pop(0)
            return None
        def side_peek(force=False):
            for s_ in reversed(sides): tpeek(s_)
            for k,s_ in enumerate(sides):
                c=tpeek(s_)
                if c is not None: st["th"]=k; return c
            if force:
                dl=[(s_[0][2],k) for k,s_ in enumerate(sides) if s_ and s_[0][0]=="delay"]+[(g.free_at-g.o["DEPTH"]-100,k) for k,s_ in enumerate(sides) if s_ and s_[0][0]=="vm"]
                if dl: t_,k=min(dl); g.stall+=max(t_-g.t,0); g.t=max(g.t,t_); return side_peek(True)
            return None
        def side_emit():
            it=sides[st["th"]].pop(0)
            if it[0] in("fn","mem"): it[1]()
            elif it[0]=="vm": g.vm(it[1],it[2] if len(it)>2 else None)
            elif "v" in g.o["abl"] and it[1].startswith(("v_mul_f32","v_fma_f32","v_exp","v_rcp","v_max_f32","v_cvt_pk","v_dot2","v_add_f32")): p.cyc+=icost(it[1])
            else:
                p(it[1])
                if it[1].startswith("v_mfma"): p.cyc+=8
        def until(ev):
            s0=g.stall; k=0
            while True:
                for s_ in reversed(sides): tpeek(s_)
                if ev in g.ev: break
                fill()
                c=side_peek(True)
                if ev in g.ev: break
                assert c is not None,("stuck",ev,st["n"],[x[:2] for x in sides])
                c0=p.cyc; side_emit(); g.t+=p.cyc-c0; st["c0"]+=p.cyc-c0; k+=1
            if k: g.log.append((st["n"],ev,k,g.stall-s0))
        def fill():
            while g.free_at-g.t<g.o["LOW"]:
                refill(True)
                if not mq: break
                flush()
        def flush():
            while mq: mq.pop(0)[1]()
        def nextA():
            x=Aq.pop(0); return x["ops"](At)
        def A_ok(): return Aq and Aq[0]["ok"](st["n"]) and (Aq[0].get("ev") is None or Aq[0]["ev"] in g.ev)
        def refill(force=False):
            if mq: return
            da=firstuse.get(Aq[0]["id"][:2],1e8) if A_ok() else None
            dd=(firstu.get(g.nextD//4,1e9)-D-WE) if g.dma_ok() else None
            if da is None and dd is None: return
            dl=min(x for x in(da,dd) if x is not None)
            if not force and g.free_at-g.t>(g.o["QD"] if st["q"] and dl-st["n"]>g.o["QL"] else g.o["DEPTH"]) and dl-st["n"]>g.o["LEAD"]: return
            st["dl"]=dl
            mq.extend(nextA() if dd is None or (da is not None and da<=dd) else g.dma_ops())
        def rd(n):
            u=U[n]; r=V_WF+4*(n%NF); s=u["slot"]
            if s is None: until(u["ev"])
            elif firstu[s]==n:
                if g.dma_t.get(s,(0,0))[1]<4:
                    flush(); g.forced+=1
                    while g.nextD<4*(s+1):
                        if not g.dma_ok(): p.waitall(vm=False); g.barrier(); assert g.dma_ok()
                        g.dma()
                if s not in g.ready: p.wait(vm=g.dma_t[s][0])
                g.barrier(); assert s in g.ready
            rd_t[n]=p(f"ds_read_b128 {v(r,4)}, v{u['rd'][0]} offset:{u['rd'][1]}")
            if s is not None and lastu[s]==n: g.lastrd[s]=rd_t[n]
        def hoist(sd,want):
            seen=[]
            for k,it in enumerate(sd[:g.o["la"]+1]):
                if it[0]!="i" or "\n" in it[1] or not it[1].startswith("v_") or it[1].startswith(("v_mfma","v_cmp","v_permlane")): return False
                x=I(it[1])
                if k and icost(it[1])==want and all(not(set(y.wr)&(set(x.rd)|set(x.wr)) or set(y.rd)&set(x.wr)) for y in seen) and not any(need(y,x)>d for d,y in enumerate(reversed(p.hist[-2:]))):
                    sd.insert(0,sd.pop(k)); return True
                seen.append(x)
            return False
        cr=dict(c=0.0)
        def peek():
            refill()
            if mq: return mq[0][0]
            return side_peek()
        def emit():
            if mq: mq.pop(0)[1]()
            else: cr["c"]-=side_peek(); side_emit()
        for _ in range(g.o['burst']): refill(True); flush()
        for _ in range(40):
            if side_peek() is None: break
            side_emit()
        for n in range(D): rd(n)
        g.t+=lat; g.free_at+=g.o["LAT0"]
        for n,u in enumerate(U):
            st["c0"]=p.cyc; r=V_WF+4*(n%NF)
            if n==N//2: p.raw("@ISLAND@")
            if g.o["ipf"] and n%g.o["ipf"]==0 and n<N-300:
                mq.extend([(4,lambda:p("s_getpc_b64 s[4:5]")),(4,lambda:g.vm(f"global_load_dword v{V_CP+1}, v{V_CP}, s[4:5]",8),1)])
            if u.get("pre"): until(u["pre"])
            if u.get("stamp"): g.stamp(u["stamp"])
            fine=g.o.get("fine")
            if fine and fine[0]<=base+n<fine[0]+fine[2]*fine[1] and (base+n-fine[0])%fine[1]==0: g.stamp(f"u{base+n}_{g.t}_{p.nvm}")
            tv=None; g.sm=[x for x in g.sm if x>g.t]
            reg=rd_t[n]>p.lgdone; span=max(1,WE-len(g.sm)) if reg else 1
            for m in range(n,min(N,n+span)):
                w=U[m]
                if w["akey"] and firstuse[w["akey"]]==m:
                    k=w["akey"]+(1,)
                    if m==n and k not in At:
                        flush(); g.forced+=1
                        while k not in At:
                            if Aq[0].get("ev") and Aq[0]["ev"] not in g.ev: until(Aq[0]["ev"]); continue
                            assert Aq[0]["ok"](st["n"]); mq.extend(nextA()); flush()
                        for _ in range(g.o["burst"]-2): refill(True); flush()
                        g.stall+=lat; g.t+=lat; g.free_at+=g.o["LAT0"]; g.log.append((n,"A late",u["akey"]))
                    if k in At: tv=At[k]
            if reg:
                for m in range(n+D,min(N,n+D+span)):
                    s=U[m]["slot"]
                    if s is not None and firstu[s]==m and g.dma_t.get(s,(0,0))[1]==4: tv=max(tv or 0,g.dma_t[s][0])
            p.wait(vm=tv,lg=rd_t[min(n+span-1,N-1)])
            cr["c"]=max(min(cr["c"],g.o["cmax"]),g.o["cmin"])+4*vpu(n)
            def mf(mh):
                acc=v(u["acc"][mh],4); c=u["first"] or acc; w=v(r,4); x=u["x"][mh]
                p(f"{MF} {acc}, {x}, {w}, {c}" if u["tr"] else f"{MF} {acc}, {w}, {x}, {c}")
            wnext=4 if n+1<N and rd_t[n+1]>p.lgdone else 0
            def urgent(): return mq and (g.free_at-g.t<g.o["LOW"] and st["dl"]-n<g.o["URG"] or st["dl"]-n<g.o["LEAD"]-4)
            def due(c): return cr["c"]>=c or st["th"]!=len(sides)-1
            def gap(room,last):
                c1=p.gap0
                while True:
                    free=room-(p.cyc-c1); refill()
                    if mq and len(mq[0])==3 and not p.vseen and (free>=4 or urgent()): mq.pop(0)[1](); continue
                    c=side_peek(); m=c is not None and ismem(sides[st["th"]][0])
                    if m and not p.vseen and (c<=free or due(c)): cr["c"]-=c; side_emit(); continue
                    if mq and len(mq[0])==2 and (free>=4 or (last and urgent())): mq.pop(0)[1](); continue
                    if c is not None and not m and g.o["la"] and free in(4,8) and c!=free and hoist(sides[st["th"]],free): c=free
                    if c is not None and not m and (c<=free or (last and due(c))): cr["c"]-=c; side_emit(); continue
                    return
            mf(0); r1=n+D<N
            refill(); cs=side_peek()
            if r1 and not(wnext and cs==8 and not mq): rd(n+D); r1=False
            gap(8,False)
            mf(1); st["n"]=n
            if r1: rd(n+D)
            gap(8-wnext,True)
            g.t+=max(32,p.cyc-st["c0"])
        g.nunit+=N; flush(); assert not Aq
        st["n"]=1e9
        while side_peek(True) is not None:
            c0=p.cyc; side_emit(); g.t+=p.cyc-c0
    def aloads(g,key,nks,vb,off,ok,ev):
        q=[]; p=g.p
        for ks in range(nks):
            for mh in range(2):
                f=2*ks+mh
                def ops(At,f=f,ks=ks,mh=mh):
                    l=[]
                    if f==0: l.append((4,lambda:p(f"v_add_u32 v{V_A}, {off+4096}, v{vb}")))
                    elif f%8==0 and g.o.get("fakeA"): l.append((4,lambda:p(f"v_add_u32 v{V_A}, 0, v{V_A}")))
                    elif f%8==0: l.append((4,lambda:p(f"v_add_u32 v{V_A}, {8192 if f%16 or nks!=32 else S.AW2 if f==32 else S.AW1}, v{V_A}")))
                    l.append((4,lambda:At.__setitem__((key,ks,mh),g.vm(f"global_load_dwordx4 {a_(g.areg(key,ks)+4*mh)}, v{V_A}, {WSP} offset:{(f%8)*1024-4096} {SC}")),1))
                    return l
                q.append(dict(id=(key,ks,mh),ops=ops,ok=ok(g.kbase[key]+ks),ev=ev(ks)))
        return q
    def red4(g,a,b,c,d):
        return [f"v_permlane32_swap_b32 v{a}, v{c}",f"v_permlane32_swap_b32 v{b}, v{d}",f"v_add_f32 v{a}, v{a}, v{c}",f"v_add_f32 v{b}, v{b}, v{d}",
                f"v_permlane16_swap_b32 v{a}, v{b}",f"v_add_f32 v{a}, v{a}, v{b}"]
    def pub_half(g,k2,xi,tk,J=S.J):
        T=V_T; s=ins([f"s_add_u32 {S.T0}, {S.XW}, {WS_X+xi*XB+k2*32768}"])
        s.append(("mem",lambda:tk.__setitem__(("x",k2),g.gstore([f"buffer_store_dwordx4 {v(V_RES+8*k2+4*mh,4)}, v{V_L16}, {WS}, {S.T0} offen offset:{mh*1024}" for mh in range(2)]))))
        if k2==0: s+=[("ev",f"x{xi}s0"),("i",f"v_mov_b32 v{T+4}, 0x3f803f80")]
        l=[]
        for i in range(4):
            for mh in range(2):
                r=V_RES+8*k2+4*mh+i; z=(i==0 and k2==0)
                l+=[f"v_dot2_f32_bf16 v{T+2*mh}, v{r}, v{T+4}, {'0' if z else v(T+2*mh)}",f"v_dot2_f32_bf16 v{T+2*mh+1}, v{r}, v{r}, {'0' if z else v(T+2*mh+1)}"]
        s.append(("fn",lambda:g.p("\n".join(l))))
        if k2 and xi and g.o["sat"]:
            s+=ins([f"s_add_u32 {S.T0}, {S.RF}, {WS_SA+(xi-1)*16384}"]+g.red4(T,T+1,T+2,T+3))
            s+=[("mem",lambda:tk.__setitem__(("x",k2),g.vm(f"buffer_atomic_add_f32 v{T}, v{V_STAT}, {WS}, {S.T0} offen sc1",16))),("ev",f"x{xi}s1")]
        elif k2:
            s+=ins([f"s_lshl_b32 {S.T0}, {J}, 8",f"s_add_u32 {S.T0}, {S.T0}, {S.STP}",f"s_add_u32 {S.T0}, {S.T0}, {xi*0x40000}"]+g.red4(T,T+1,T+2,T+3))
            s+=[("mem",lambda:tk.__setitem__(("x",k2),g.gstore([f"buffer_store_dword v{T}, v{V_STAT}, {WS}, {S.T0} offen"],16))),("ev",f"x{xi}s1")]
        return s
    def rowstage(g,name,co,tk,key):
        o=g.o
        return g.stage(S.PR,name,S.RF,S.RF,co,tk,key,16,(o["rd1"]+(o["rdb"] if key==("x",1) and o["sat"] else 0),o["rd2"],o["rd3"]),lambda:g.stamp(name))+[("ev",name+"r")]
    def side_stats(g,p3,xi,mid):
        T=V_T; o=[]
        if xi and g.o["sat"]:
            s=ins([f"s_add_u32 {S.T0}, {S.RF}, {WS_SA+(xi-1)*16384}",f"v_lshlrev_b32 v{T+4}, 2, v{V_FALL}"])+[("vm",f"buffer_load_dwordx4 {v(T,4)}, v{T+4}, {WS}, {S.T0} offen {SC}",24)]+mid
        else:
            s=ins([f"s_add_u32 {S.T0}, {S.STP}, {xi*0x40000}"])
            for t in range(4): s.append(("vm",f"buffer_load_dwordx4 {v(T+4*t,4)}, v{V_L16}, {WS}, {S.T0} offen offset:{t*1024} {SC}"))
            s+=mid
            for c in range(4): o+=[f"v_add_f32 v{T+c}, v{T+c}, v{T+4+c}",f"v_add_f32 v{T+8+c}, v{T+8+c}, v{T+12+c}"]
            for c in range(4): o+=[f"v_add_f32 v{T+c}, v{T+c}, v{T+8+c}"]
            for sw in("32","16"):
                for c in range(4): o+=[f"v_mov_b32 v{T+4+c}, v{T+c}"]
                for c in range(4): o+=[f"v_permlane{sw}_swap_b32 v{T+c}, v{T+4+c}"]
                for c in range(4): o+=[f"v_add_f32 v{T+c}, v{T+c}, v{T+4+c}"]
        for mh in range(2): o+=[f"v_mul_f32 v{T+2*mh}, {F(-1/1024)}, v{T+2*mh}",f"v_mul_f32 v{T+2*mh+1}, {F(1/1024)}, v{T+2*mh+1}"]
        for mh in range(2): o+=[f"v_fma_f32 v{T+2*mh+1}, -v{T+2*mh}, v{T+2*mh}, v{T+2*mh+1}"]
        for mh in range(2): o+=[f"v_max_f32 v{T+2*mh+1}, 0, v{T+2*mh+1}"]
        for mh in range(2): o+=[f"v_add_f32 v{T+2*mh+1}, {F(1e-5)}, v{T+2*mh+1}"]
        for mh in range(2): o+=[f"v_rsq_f32 v{T+4+mh}, v{T+2*mh+1}"]
        for mh in range(2): o+=[f"v_mul_f32 v{T+2*mh+1}, v{T+2*mh+1}, v{T+4+mh}"]
        for mh in range(2):
            m,sg,X=T+2*mh,T+2*mh+1,V_XE+4*mh
            o+=[f"v_cvt_pk_bf16_f32 v{T+6}, v{m}, v{m}",f"v_cvt_pk_bf16_f32 v{T+7}, v{sg}, v{sg}",
                f"v_lshlrev_b32 v{T+8}, 16, v{T+6}",f"v_lshlrev_b32 v{T+9}, 16, v{T+7}",
                f"v_sub_f32 v{T+8}, v{m}, v{T+8}",f"v_sub_f32 v{T+9}, v{sg}, v{T+9}",
                f"v_cvt_pk_bf16_f32 v{T+8}, v{T+8}, v{sg}",f"v_cvt_pk_bf16_f32 v{T+9}, v{T+9}, 0",
                f"v_cndmask_b32 v{X}, 0, v{T+6}, {SN}",f"v_cndmask_b32 v{X+1}, 0, v{T+8}, {SN}",f"v_cndmask_b32 v{X+2}, 0, v{T+9}, {SN}"]
        if p3:
            c0=-2*math.sqrt(2/math.pi)*LOG2E
            for mh in range(2):
                r=T+4+mh; L=V_LC+3*mh
                o+=[f"v_mul_f32 v{L}, {F(c0)}, v{r}",f"v_mul_f32 v{T+6}, v{r}, v{r}",f"v_mov_b32 v{L+2}, v{T+2*mh+1}",
                    f"v_mul_f32 v{T+6}, {F(0.044715)}, v{T+6}",f"v_mul_f32 v{L+1}, v{T+6}, v{L}"]
        else:
            for mh in range(2): o+=[f"v_mul_f32 v{T+46+mh}, {F(LOG2E)}, v{T+4+mh}"]
            o+=[f"v_and_b32 v{T+6}, 48, v{V_LANE}"]
            for mh in range(2):
                for r in range(4): o+=[f"ds_bpermute_b32 v{V_LC+4*mh+r}, v{T+6}, v{T+46+mh} offset:{4*r}"]
        return s+ins(o)
    def table_load(g,p3,T):
        s=ins([f"v_lshrrev_b32 v{T+16}, 4, v{V_LANE}",f"v_lshlrev_b32 v{T+18}, 14, v{T+16}",f"v_lshl_add_u32 v{T+18}, v{V_FALL}, 2, v{T+18}",f"v_add_u32 v{T+17}, v{V_FALL}, v{T+16}",
               f"s_lshl_b32 {S.T2}, {S.J}, 2",f"s_add_u32 {S.T2}, {S.T2}, {S.W}",f"s_lshl_b32 {S.T2}, {S.T2}, 8",f"s_add_u32 {S.T2}, {S.T2}, {WS_CS1 if p3 else WS_CSQ}"])
        for t in range(4):
            s.append(("vm",f"buffer_load_dwordx4 {v(T+4*t,4)}, v{T+18}, {WS}, {S.T2} offen {SC}"))
            if t<3: s.append(("i",f"s_add_u32 {S.T2}, {S.T2}, 65536"))
        if p3:
            s+=ins([f"v_lshlrev_b32 v{T+18}, 1, v{T+17}",f"s_lshl_b32 {S.T3}, {S.PAR}, 6",f"s_lshl_b32 {S.T2}, {S.W}, 7",f"s_add_u32 {S.T2}, {S.T2}, {S.T3}",
                    f"s_cmp_eq_u32 {S.T2}, 448\ns_cselect_b32 {S.T2}, -64, {S.T2}\ns_cselect_b32 {S.T3}, 32, 0",f"v_xor_b32 v{T+17}, {S.T3}, v{T+17}",
                    f"s_mul_i32 {S.T3}, {S.J}, 448",f"s_add_u32 {S.T2}, {S.T2}, {S.T3}"])
            s.append(("vm",f"buffer_load_ushort v{T+19}, v{T+18}, {B1}, {S.T2} offen",16))
        return s
    def table_make(g,p3,T,tk):
        o=[]
        for c in range(4): o+=[f"v_add_f32 v{T+c}, v{T+c}, v{T+4+c}",f"v_add_f32 v{T+8+c}, v{T+8+c}, v{T+12+c}"]
        for c in range(4): o+=[f"v_add_f32 v{T+c}, v{T+c}, v{T+8+c}"]
        o+=g.red4(T,T+1,T+2,T+3)
        o+=[f"v_cvt_pk_bf16_f32 v{T+5}, v{T}, 0",f"s_lshl_b32 {S.T2}, {S.W}, 10",f"v_lshlrev_b32 v{T+8}, 16, v{T+5}",f"v_sub_f32 v{T+8}, v{T}, v{T+8}",
            f"v_cvt_pk_bf16_f32 v{T+4}, v{T}, v{T+8}",f"s_add_u32 {S.T2}, {S.T2}, {L_EXT3 if p3 else L_EXT1}",f"v_mov_b32 v{T+7}, 0"]
        if p3: o+=[f"v_lshl_add_u32 v{T+5}, v{T+19}, 16, v{T+5}",f"v_mov_b32 v{T+6}, v{T+19}"]
        else: o+=[f"v_mov_b32 v{T+6}, 0"]
        o+=[f"v_lshl_add_u32 v{T+17}, v{T+17}, 4, {S.T2}"]
        return ins(o)+[("mem",lambda:tk.__setitem__("t",g.p(f"ds_write_b128 v{T+17}, {v(T+4,4)}")))]
    def run_list(g,l):
        for it in l:
            if it[0]=="i": g.p(it[1])
            elif it[0]=="vm": g.vm(it[1],it[2] if len(it)>2 else None)
            elif it[0] in("fn","mem"): it[1]()
    def rowaddr(g,J=S.J):
        T=V_T
        g.p(f"""v_lshlrev_b32 v{T+1}, 9, v{V_FALL}
v_and_b32 v{T+2}, 16, v{V_LANE}
v_lshl_add_u32 v{T+1}, v{T+2}, 1, v{T+1}
v_lshrrev_b32 v{T+2}, 5, v{V_LANE}
v_lshl_add_u32 v{T+1}, v{T+2}, 4, v{T+1}
s_lshl_b32 {S.T0}, {S.MBk}, 16
s_lshl_b32 {S.T1}, {J}, 7
s_add_u32 {S.T0}, {S.T0}, {S.T1}
s_add_u32 {S.T1}, {S.T0}, 32768""")
    def p0(g):
        p=g.p; o=g.o; T=V_T; ACC=V_ACC
        p.raw(f"{NAME}:")
        p(f"s_cmp_ge_u32 s2, 256\ns_cbranch_scc1 L_end")
        p("s_load_dwordx16 s[44:59], s[0:1], 0\ns_load_dwordx2 s[20:21], s[0:1], 80")
        p(f"v_lshrrev_b32 v{T}, 6, v0\nv_and_b32 v{V_LANE}, 63, v0\nv_readfirstlane_b32 {S.W}, v{T}\nv_lshlrev_b32 v{V_L16}, 4, v{V_LANE}\nv_mov_b32 v{V_TS}, 0")
        if o["xm"]==4: p(f"""s_and_b32 {S.PAR}, s2, 1
s_bfe_u32 {S.T0}, s2, 0x20001
s_bfe_u32 {S.T1}, s2, 0x20003
s_lshl_b32 {S.T0}, {S.T0}, 2
s_add_u32 {S.I}, {S.T0}, {S.T1}
s_lshr_b32 {S.T0}, s2, 5
s_lshl_b32 {S.T0}, {S.T0}, 1
s_add_u32 {S.J}, {S.T0}, {S.PAR}""")
        elif o["xm"]==2: p(f"""s_and_b32 {S.I}, s2, 15
s_lshr_b32 {S.J}, s2, 4
s_and_b32 {S.PAR}, {S.J}, 1""")
        elif o["xm"]==8: p(f"""s_and_b32 {S.PAR}, s2, 1
s_bfe_u32 {S.I}, s2, 0x40002
s_lshr_b32 {S.T0}, s2, 6
s_lshl_b32 {S.T0}, {S.T0}, 2
s_and_b32 {S.T1}, s2, 3
s_add_u32 {S.J}, {S.T0}, {S.T1}""")
        p(f"""s_lshl_b32 {S.MBk}, {S.I}, 2
s_add_u32 {S.MBk}, {S.MBk}, {S.W}""")
        g.stamp("start",True)
        p(f"s_lshl_b32 {S.T0}, {S.PAR}, 6\ns_add_u32 {S.T0}, {S.T0}, {S.MBk}\ns_lshl_b32 {S.T0}, {S.T0}, 7\ns_getpc_b64 s[6:7]"); p.raw("L_pc:")
        p(f"s_add_u32 {S.T0}, {S.T0}, L_tab-L_pc\ns_add_u32 s6, s6, {S.T0}\ns_addc_u32 s7, s7, 0")
        p(f"s_load_dwordx16 s[{S_TAB}:{S_TAB+15}], s[6:7], 0\ns_load_dwordx16 s[{S_TAB+16}:{S_TAB+31}], s[6:7], 64")
        p(f"v_and_b32 v{T}, 15, v{V_LANE}\nv_lshlrev_b32 v{V_FALL}, 2, v{T}")
        JC,JX="s96","s97"
        p(f"s_lshl_b32 {JC}, {S.W}, 1\ns_xor_b32 {JC}, {JC}, {S.J}\ns_xor_b32 {JX}, {JC}, 1"); g.rowaddr(JX)
        p(f"""s_mov_b32 s26, 0x400000
s_mov_b32 s27, 0x20000
s_mov_b32 s22, 0x10000000
s_mov_b32 s23, 0x20000""")
        p(f"v_mov_b32 v{T+4}, 0\nv_mov_b32 v{T+5}, 0\nv_mov_b32 v{T+6}, 0\nv_mov_b32 v{T+7}, 0\nv_min_u32 v{V_ONE}, 1, v{V_LANE}\nv_lshlrev_b32 v{V_ONE}, 30, v{V_ONE}")
        p.waitall(vm=False)
        p("s_mov_b64 s[24:25], s[44:45]\ns_mov_b64 s[4:5], s[46:47]\ns_mov_b64 s[8:9], s[48:49]\ns_mov_b64 s[12:13], s[52:53]\ns_mov_b64 s[28:29], s[54:55]\ns_mov_b64 s[16:17], s[56:57]\ns_mov_b64 s[100:101], s[58:59]")
        p(f"s_load_dword {S.EP}, {WSP}, {WS_EP}")
        for k2 in range(2):
            for mh in range(2): g.vm(f"buffer_load_dwordx4 {v(V_RES+8*k2+4*mh,4)}, v{T+1}, {TS}, {S.T1 if mh else S.T0} offen offset:{64*k2} {o['xnt']}")
        if o["cpf"]:
            p(f"s_getpc_b64 s[10:11]\ns_lshr_b32 {S.T2}, s2, 3\ns_lshl_b32 {S.T2}, {S.T2}, 2\ns_add_u32 {S.T2}, {S.T2}, {S.W}\ns_mul_i32 {S.T2}, {S.T2}, 1152\nv_min_u32 v{T+11}, 8, v{V_LANE}\nv_lshl_add_u32 v{T+11}, v{T+11}, 7, {S.T2}\nv_min_u32 v{T+11}, L_tab-L_pc, v{T+11}")
            g.vm(f"global_load_dword v{T+11}, v{T+11}, s[10:11]")
        PA,PB,PC,RT=V_WF,V_WF+4,V_WF+8,V_WF+12
        p(f"""s_mov_b32 {S.T3}, {RQ}
s_cmp_eq_u32 {S.W}, 3
s_cselect_b32 s8, s8, s4
s_cselect_b32 s9, s9, s5
s_cselect_b32 {S.T3}, {R2}, {S.T3}
s_lshl_b32 s10, {S.T3}, 10
s_mov_b32 s11, 0x20000
s_mov_b32 s14, {1024*R1}
s_mov_b32 s15, 0x20000
s_mov_b32 s18, {3584*R2}
s_mov_b32 s19, 0x20000
s_mov_b32 s30, 7168
s_mov_b32 s31, 0x20000
v_lshrrev_b32 v{T+2}, 3, v{V_LANE}
v_and_b32 v{T+3}, 7, v{V_LANE}
v_and_b32 v{T+9}, 6, v{T+2}
v_xor_b32 v{T+3}, v{T+3}, v{T+9}
v_lshlrev_b32 v{T+3}, 4, v{T+3}
v_mul_u32_u24 v{PA}, {S.T3}, v{T+2}
v_add_u32 v{PA}, v{PA}, v{T+3}
s_lshl_b32 {S.T3}, {S.T3}, 3
s_sub_u32 {S.T3}, {S.T3}, 1024
v_add_u32 v{PA+1}, {S.T3}, v{PA}
v_add_u32 v{PA+2}, {S.T3}, v{PA+1}
v_add_u32 v{PA+3}, {S.T3}, v{PA+2}
s_mul_i32 {S.LDSW}, {S.W}, 24576
s_lshr_b32 {S.T2}, {S.J}, 1
s_mul_i32 {S.T3}, {S.T2}, 896
s_lshr_b32 {S.T2}, {JC}, 1
s_lshl_b32 {S.T2}, {S.T2}, 8""")
        for r in range(6): p(f"s_add_u32 s{S_TAB+r}, s{S_TAB+r}, {S.T3 if r in(2,3) else S.T2}")
        dt={}
        def rdma(r):
            p(f"s_add_u32 m0, {S.LDSW}, {r*4096}")
            for q in range(4): dt[r]=g.vm(f"buffer_load_dwordx4 v{(PA,PB,PC)[r//2]+q}, {(WO,W1,W2)[r//2]}, s{S_TAB+r} offen offset:{q*1024} {o['wnt']} lds")
        rdma(0); rdma(1)
        for pat,rs in((PC,R2),(PB,R1)):
            p(f"v_mul_u32_u24 v{pat}, {rs}, v{T+2}\nv_add_u32 v{pat}, v{pat}, v{T+3}")
            for q in range(1,4): p(f"v_add_u32 v{pat+q}, {q*(8*rs-1024)}, v{pat}")
        p(f"""s_mul_i32 {S.KV}, {S.J}, {KVS}
s_add_u32 {S.KV}, {S.KV}, {WS_KV}
s_and_b32 {S.T0}, {S.MBk}, 31
s_min_u32 {S.T0}, {S.T0}, 16
s_lshl_b32 {S.T0}, {S.T0}, 9
s_lshr_b32 {S.T1}, {S.MBk}, 5
s_mul_i32 {S.T1}, {S.T1}, {16*KVS}
s_add_u32 {S.T0}, {S.T0}, {S.T1}
s_mul_i32 {S.T1}, {JC}, {KVS}
s_add_u32 {S.T0}, {S.T0}, {S.T1}
s_add_u32 {S.T0}, {S.T0}, {WS_KV}
v_lshlrev_b32 v{T+2}, 3, v{V_LANE}""")
        g.vm(f"buffer_store_dwordx2 {v(T+4,2)}, v{T+2}, {WS}, {S.T0} offen {SC}")
        p(f"s_mov_b32 s24, s100\ns_mov_b32 s25, s101\ns_mov_b32 s26, 2048\nv_lshlrev_b32 v{T+2}, 1, v{V_LANE}\ns_lshl_b32 {S.T0}, {S.J}, 7")
        g.vm(f"buffer_load_ushort v{T+8}, v{T+2}, {TS}, {S.T0} offen")
        p("s_load_dwordx2 s[24:25], s[0:1], 64\ns_mov_b32 s26, 0x400000")
        p(f"""v_lshrrev_b32 v{T+2}, 2, v{V_LANE}
v_and_b32 v{T+3}, 3, v{V_LANE}
v_lshlrev_b32 v{T+3}, 3, v{T+3}
v_lshl_add_u32 v{RT}, v{T+2}, 7, v{T+3}
v_and_b32 v{T+9}, 6, v{T+2}
v_lshl_add_u32 v{RT}, v{T+9}, 4, v{RT}
v_add_u32 v{RT}, {S.LDSW}, v{RT}""")
        for b in range(1,4): p(f"v_xor_b32 v{RT+b}, {32*b}, v{RT}")
        p(f"""v_lshrrev_b32 v{T+2}, 4, v{V_LANE}
v_lshlrev_b32 v{T+2}, 2, v{T+2}
v_lshl_add_u32 v{V_STAT}, v{T}, 4, v{T+2}
v_lshlrev_b32 v{V_EXT}, 4, v{T}
v_add_u32 v{V_EXT}, {L_EXT1}, v{V_EXT}
v_mov_b32 v{V_XE+3}, 0
v_mov_b32 v{V_XE+7}, 0
v_mov_b32 v{V_RD}, v{V_L16}
v_add_u32 v{V_RD+1}, 0x10000, v{V_L16}
s_mul_i32 {S.T0}, {S.J}, {WTS}
s_add_u32 {S.T0}, {S.T0}, {WS_WT}
s_lshl_b32 {S.T2}, {S.W}, 12
s_add_u32 {S.T2}, {S.T2}, {S.T0}
v_add_u32 v{V_WP}, {S.T2}, v{V_L16}
s_mul_i32 {S.T1}, {JC}, {WTS}
s_add_u32 {S.T1}, {S.T1}, {WS_WT}""")
        for k in range(24): p(f"s_add_u32 s{S_TAB+8+k}, s{S_TAB+8+k}, {S.T0 if 8<=k<16 else S.T1}")
        p(f"""s_mov_b32 {S.TO}, 0x40000
s_mul_i32 {S.T2}, {S.MBk}, {65536+o["SK"]}
s_lshl_b32 {S.T3}, {S.PAR}, 15
s_sub_u32 {S.AW1}, 8192, {S.T3}
s_add_u32 {S.AW2}, 8192, {S.T3}
s_lshl_b32 {S.T3}, {S.PAR}, 14
s_add_u32 {S.U0}, {S.T2}, {S.T3}
v_add_u32 v{V_XP}, {S.U0}, v{V_L16}
s_xor_b32 {S.T3}, {S.T3}, 16384
s_add_u32 {S.XW}, {S.T2}, {S.T3}
s_lshr_b32 {S.T3}, {JX}, 1
s_lshl_b32 {S.T3}, {S.T3}, 11
s_add_u32 {S.XW}, {S.XW}, {S.T3}
s_mul_i32 {S.HW}, {S.MBk}, {229376+o["SK"]}
s_mul_i32 {S.T2}, {S.PAR}, 114688
s_add_u32 {S.HW}, {S.HW}, {S.T2}
v_add_u32 v{V_HP}, {S.HW}, v{V_L16}
s_lshr_b32 {S.T2}, {S.J}, 1
s_lshl_b32 {S.T2}, {S.T2}, 11
s_add_u32 {S.HW}, {S.HW}, {S.T2}
s_add_u32 {S.U0}, {S.U0}, {S.T2}
s_lshl_b32 {S.STP}, {S.MBk}, 12
s_add_u32 {S.STP}, {S.STP}, {WS_ST}
s_lshl_b32 {S.T2}, {S.MBk}, 4
s_add_u32 {S.T2}, {S.T2}, {S.J}
s_lshl_b32 {S.EXR}, {S.T2}, 12
s_add_u32 {S.EXR}, {S.EXR}, {WS_EX}
s_xor_b32 {S.EXW}, {S.EXR}, 4096
s_lshl_b32 {S.RF}, {S.MBk}, 8
s_lshl_b32 {S.T2}, {S.J}, 2
s_add_u32 {S.RFW}, {S.RF}, {S.T2}
s_xor_b32 {S.RFP}, {S.RFW}, 4
s_lshl_b32 {S.T2}, {S.PAR}, 2
s_add_u32 {S.RFH}, {S.RF}, {S.T2}
s_mov_b32 {S.ONE}, 1
s_mov_b64 {SN}, 0xffff
s_lshl_b32 {S.CF}, {S.J}, 2
s_add_u32 {S.CF}, {S.CF}, {S.W}
s_lshl_b32 {S.CF}, {S.CF}, 7
s_add_u32 {S.CF}, {S.CF}, {WS_COLF}
s_mov_b32 {S.C_EPS}, {F(1e-6*LOG2E)}
s_mov_b32 {S.C_LN2}, {F(LN2)}""")
        p(f"s_lshl_b32 {S.T0}, {S.J}, 14\ns_add_u32 {S.T0}, {S.T0}, {WS_SA-16384}\ns_cmp_eq_u32 {S.J}, 0\ns_cselect_b32 {S.T0}, 0, {S.T0}\ns_cmp_gt_u32 {S.J}, 3\ns_cselect_b32 {S.T0}, {OOB}, {S.T0}\ns_add_u32 {S.T0}, {S.T0}, {S.RF}\nv_lshlrev_b32 v{T+9}, 2, v{V_LANE}")
        g.vm(f"buffer_store_dword v{T+4}, v{T+9}, {WS}, {S.T0} offen {SC}")
        p(f"s_min_u32 {S.T0}, {S.I}, 1\ns_lshl_b32 {S.T0}, {S.T0}, 29\ns_lshl_b32 {S.T1}, {JC}, 2\ns_add_u32 {S.T1}, {S.T1}, {S.W}\ns_lshl_b32 {S.T1}, {S.T1}, 7\ns_add_u32 {S.T0}, {S.T0}, {S.T1}\ns_add_u32 {S.T0}, {S.T0}, {WS_COLF}")
        g.vm(f"buffer_store_dwordx4 {v(T+4,4)}, v{V_ONE}, {WS}, {S.T0} offen {SC}")
        if o["p0o"] in(1,2): rdma(2)
        p.waitall(vm=False)
        for k in range(4):
            p(f"v_permlane16_swap_b32 v{V_RES+4*k}, v{V_RES+4*k+2}\nv_permlane16_swap_b32 v{V_RES+4*k+1}, v{V_RES+4*k+3}")
        g.stamp("p0x",True)
        g.run_list(g.pub_half(0,0,{})+g.pub_half(1,0,{},JX)); p(f"s_mov_b32 {S.XW}, {S.U0}")
        ON,CSD=T+12,ACC+32
        for i in range(4): p(f"v_mov_b32 v{ON+i}, 0x3f803f80")
        def proc(r):
            b=ACC+16*(r if r<2 else r+2); p.wait(vm=dt[r]); t=None
            for nb in range(4):
                for h in range(2): p(f"ds_read_b64_tr_b16 {v(b+4*nb+2*h,2)}, v{RT+nb} offset:{r*4096+h*2048}")
            for nb in range(4):
                x=f"buffer_store_dwordx4 {v(b+4*nb,4)}, v{V_L16}, {WS}, s{S_TAB+8+4*r+nb} offen"
                if r>=o["late"]: g.later.append(x)
                else: t=g.vm(x+" sc1")
            if r<4:
                for nb in range(4): p(f"{MF} {v(CSD+4*nb,4)}, {v(ON,4)}, {v(b+4*nb,4)}, {v(CSD+4*nb,4) if r&1 else '0'}")
            if r in(1,3):
                p(f"s_lshl_b32 {S.T0}, {S.I}, 6\ns_lshl_b32 {S.T1}, {S.J if r==3 else JC}, 2\ns_add_u32 {S.T0}, {S.T0}, {S.T1}\ns_add_u32 {S.T0}, {S.T0}, {S.W}\ns_lshl_b32 {S.T0}, {S.T0}, 8\ns_add_u32 {S.T0}, {S.T0}, {WS_CS1 if r==3 else WS_CSQ}\nv_lshlrev_b32 v{T+9}, 2, v{V_LANE}")
                for nb in range(1,4): p(f"v_mov_b32_dpp v{CSD}, v{CSD+4*nb} quad_perm:[0,1,2,3] row_mask:{hex(1<<nb)} bank_mask:0xf")
                t=g.vm(f"buffer_store_dword v{CSD}, v{T+9}, {WS}, {S.T0} offen {SC}",16)
            return t
        FW,FR,X2=T+16,T+17,T+2
        p(f"""s_lshl_b32 {S.T0}, {S.MBk}, 4
s_add_u32 {S.T0}, {S.T0}, {S.J}
s_lshl_b32 {S.T1}, {JC}, 2
s_add_u32 {S.T1}, {S.T1}, {S.W}
s_lshl_b32 {S.T1}, {S.T1}, 4
s_add_u32 {S.T1}, {S.T1}, {S.I}
s_add_u32 {S.T1}, {S.T1}, 1024
v_mov_b32 v{FW}, {OOB>>3}
v_writelane_b32 v{FW}, {S.T0}, 0
v_writelane_b32 v{FW}, {S.T1}, 1
v_lshlrev_b32 v{FW}, 3, v{FW}
s_lshl_b32 {S.T0}, {S.MBk}, 7
s_lshl_b32 {S.T1}, {S.J}, 2
s_add_u32 {S.T1}, {S.T1}, {S.W}
s_lshl_b32 {S.T1}, {S.T1}, 7
s_add_u32 {S.T1}, {S.T1}, 8192
v_lshl_add_u32 v{FR}, v{V_FALL}, 1, {S.T0}
v_lshl_add_u32 v{X2}, v{V_FALL}, 1, {S.T1}
v_mov_b32_dpp v{FR}, v{X2} quad_perm:[0,1,2,3] row_mask:0xa bank_mask:0xf
s_mov_b32 {S.T3}, {WS_F0}
s_add_u32 {S.EP}, {S.EP}, 1
v_mov_b32 v{X2}, {S.EP}""")
        if o["p0o"]==0: proc(0); tkc=proc(1); rdma(2); rdma(3)
        elif o["p0o"]==1: proc(0); rdma(3); tkc=proc(1); rdma(4)
        elif o["p0o"]==2: rdma(3); proc(0); tkc=proc(1); rdma(4); rdma(5)
        elif o["p0o"]==3: proc(0); tkc=proc(1)
        else: proc(0); tkc=proc(1); rdma(2)
        p(f"v_lshlrev_b32 v{T+8}, 16, v{T+8}\nv_add_u32 v{T+10}, {L_B2}, v{T+9}\nds_write_b32 v{T+10}, v{T+8}")
        if o["p0o"]==1: proc(2); rdma(5)
        elif o["p0o"]==2: proc(2); proc(3)
        p.wait(vm=tkc)
        g.vm(f"buffer_store_dword v{X2}, v{FW}, {WS}, {S.T3} offen {SC}",8); g.stamp("p0arr",True)
        if o["p0o"]==0: rdma(4); proc(2); rdma(5); proc(3)
        elif o["p0o"]==1: proc(3)
        elif o["p0o"]==3: rdma(2); rdma(3); rdma(4); rdma(5); proc(2); proc(3)
        elif o["p0o"]==4: rdma(3); rdma(4); proc(2); rdma(5); proc(3)
        pl=f"s_mov_b32 exec_hi, 0\nv_mov_b32 v{V_FLG}, 0\nbuffer_atomic_add v{V_FLG}, v{FR}, {WS}, {S.T3} offen sc0 sc1\ns_mov_b32 exec_hi, -1"
        proc(4); p(pl); proc(5); g.stamp("p0til",True)
        rf=f"v_cmp_ne_u32 {SM}, {S.EP}, v{V_FLG}\ns_nop 0\ns_cmp_lg_u32 s100, 0\ns_cbranch_scc1 L_slowx"
        p(rf); p.raw("L_backx:")
        g.slow.append(f"L_slowx:\n{pl}\ns_sub_u32 {S.TO}, {S.TO}, 1\ns_cbranch_scc1 L_end\ns_waitcnt vmcnt(0)\n{rf}\ns_branch L_backx")
        p.waitall(vm=False); p(f"s_lshl_b32 {S.LDSW}, {S.W}, 12\ns_barrier")
        g.stamp("p1start",True); g.pump(o["pre0"])
        if o["ipf"]:
            p(f"s_lshr_b32 s6, s2, 3\ns_lshl_b32 s6, s6, 2\ns_add_u32 s6, s6, {S.W}\ns_lshl_b32 s6, s6, 7\ns_add_u32 s6, s6, {o.get('ipo',6144)}\nv_mov_b32 v{V_CP}, s6")
        g.t=0; g.free_at=o["pre0"]*o["COST"]
    def build(g):
        p=g.p; o=g.o; T=V_T; g.p0()
        U=[]; Aq=[]; bulk=[]; row=[]; col=[]; marks=[]; pan=[]
        z0=lambda ks,b:"0" if ks==0 else None
        aB=lambda bases:(lambda b:(bases[b>>1]+4*(b&1),bases[b>>1]+8+4*(b&1)))
        def phi(x,r,d):
            return wave([lambda e:f"v_mul_f32 v{x[e]}, v{x[e]}, v{r[e]}",lambda e:f"v_exp_f32 v{T+e%4}, v{x[e]} clamp",lambda e:f"v_max_f32 v{x[e]}, {S.C_EPS}, v{x[e]}",
                         lambda e:f"v_fma_f32 v{x[e]}, v{x[e]}, {S.C_LN2}, v{T+e%4}"],len(x),lambda e:[f"v_cvt_pk_bf16_f32 v{d+e//2}, v{x[e-1]}, v{x[e]}"] if e&1 else [])
        sev=lambda nm:(lambda ks:f"{nm}s{ks>>4}r")
        for it in range(2):
            B=lambda x:V_ACC+16*((x+4*it)%8); tk={}; first=it==0; xi=2*it
            key=f"x{xi}"; g.panel(key,32); pan.append((key,32,V_XP,WS_X+xi*XB,(lambda ks:None) if first else sev(key)))
            aK=lambda nb:(B(2*((nb>>1)&1)+(nb>>2))+8*(nb&1),B(2*((nb>>1)&1)+(nb>>2))+8*(nb&1)+4)
            aQ=aB([0]*4+[B(4),B(5)]); ev=f"st1_{it}"; n0=len(U); L1=o["L1"]
            d=g.stair(U,"q",key,32,[("k0",(0,1),L1[0]),("v0",(4,5),L1[1]),("k1",(2,3),L1[2]),("v1",(6,7),L1[3])],aK,True,z0,(o["KX"],[g.ext(256*b,aK(b),True,False,ev) for b in range(8)]))
            U[n0]["stamp"]=f"p1s{it}"
            if it: U[n0]["pre"]="fin0_0"
            marks+=[(n0,"vp0"),(d["k0"]+1,"vp1"),(len(U),"vpq")]; nq=len(U)
            U+=[g.ext(256*b,aQ(b),False,True,ev) for b in range(8,12)]; U[nq]["stamp"]=f"p1q{it}"
            d.update(g.stair(U,"q",key,32,[("q0",(8,9),0),("q1",(10,11),o["LQ"])],aQ))
            if first:
                bulk+=g.side_stats(False,xi,g.table_load(False,T+16)+[("delay",700)])+g.table_make(False,T+16,tk)
                bulk+=[("delay",150),("fn",lambda tk=tk:(p.wait(lg=tk["t"]),g.barrier()))]
            else: bulk+=[("wait",key+"s1r")]+g.side_stats(False,xi,[("delay",o["sd"])])
            bulk+=[("ev",ev)]
            if first:
                if len(g.later)<=8: row.append(("ev","lt0"))
                for k,x in enumerate(g.later):
                    row+=[("at",o["lt"][0]+k*o["lt"][1]),("mem",lambda x=x:g.gstore([x]))]
                    if k==len(g.later)-9: row.append(("ev","lt0"))
                row+=[("ev","lt0"),("ev","lt1")]; U[nq]["pre"]="lt0"
            FR,PQ,KD,ZD,ON,RC,L2E,AW,ARK,ARV,VAT,VAZ,VLD,VLZ=T+8,T+16,T+24,T+28,T+32,T+36,T+38,T+39,T+40,T+41,T+42,T+43,T+44,T+45
            kvo=it*16*KVS
            bulk+=ins([f"s_add_u32 {S.T0}, {S.LDSW}, {L_SCR}",f"v_add_u32 v{AW}, {S.T0}, v{V_L16}",f"s_lshr_b32 {S.T0}, {S.W}, 1",f"s_and_b32 {S.T1}, {S.W}, 1",
                       f"s_lshl_b32 {S.T2}, {S.T0}, 10",f"s_add_u32 {S.T3}, {S.T2}, {L_SCR}",f"v_add_u32 v{ARK}, {S.T3}, v{V_L16}",
                       f"s_lshl_b32 {S.T3}, {S.T1}, 10",f"s_add_u32 {S.T3}, {S.T3}, {L_SCR+2048}",f"v_add_u32 v{ARV}, {S.T3}, v{V_L16}",
                       f"v_and_b32 v{VLZ}, 48, v{V_LANE}",f"v_lshl_add_u32 v{VLD}, v{V_FALL}, 4, v{VLZ}",
                       f"v_lshl_add_u32 v{VAZ}, v{VLZ}, 25, v{V_FALL}",f"v_lshl_add_u32 v{VAT}, v{VLZ}, 4, v{V_FALL}",
                       f"s_lshl_b32 {S.T3}, {S.T1}, 11",f"s_add_u32 {S.T2}, {S.T2}, {S.T3}",f"v_add_u32 v{VAT}, {S.T2}, v{VAT}",
                       f"s_lshl_b32 {S.T0}, {S.T0}, 6",f"s_lshl_b32 {S.T1}, {S.T1}, 28",f"s_add_u32 {S.T0}, {S.T0}, {S.T1}",f"v_add_u32 v{VAZ}, {S.T0}, v{VAZ}",
                       f"v_mov_b32 v{L2E}, {F(LOG2E)}"]+[f"v_mov_b32 v{ON+i}, 0x3f803f80" for i in range(4)])
            for h in range(2):
                KF,VF=B(2*h),B(2*h+1)
                bulk+=[("at",d[f"k{h}"]+1)]
                bulk+=ins(phi([KF+e for e in range(16)],[V_LC+e%8 for e in range(16)],FR))
                if h: bulk.append(("fn",g.barrier))
                for b in range(2): bulk+=[("i",f"ds_write_b128 v{AW}, {v(FR+4*b,4)} offset:{b*1024}"),("delay",o["wp"])]
                bulk+=ins([f"s_add_u32 {S.T0}, {S.KV}, {kvo+h*4096}",f"s_add_u32 {S.T1}, {S.KV}, {kvo+8192+h*128}"])+[("at",d[f"v{h}"]+1)]
                for b in range(2):
                    x=[VF+8*b+i for i in range(8)]
                    bulk+=ins([f"v_mul_f32 v{x[i]}, v{x[i]}, v{V_LC+i}" for i in range(8)]+[f"v_cvt_pk_bf16_f32 v{FR+4*b+i}, v{x[2*i]}, v{x[2*i+1]}" for i in range(4)])
                    bulk.append(("mem",lambda b=b,tk=tk:tk.__setitem__(0,p(f"ds_write_b128 v{AW}, {v(FR+4*b,4)} offset:{2048+b*1024}"))))
                bulk+=[("delay",o["l1"]),("fn",lambda tk=tk:(p.wait(lg=tk[0]),g.barrier()))]
                for sw in range(4): bulk+=ins([f"ds_read_b128 {v(KF+4*sw,4)}, v{ARK} offset:{sw*4096}",f"ds_read_b128 {v(VF+4*sw,4)}, v{ARV} offset:{sw*4096}"])+[("delay",o["rp"])]
                bulk+=[("delay",o["l2"])]
                for sw in range(4): bulk+=ins([f"{MF} {v(KD,4)}, {v(VF+4*sw,4)}, {v(KF+4*sw,4)}, {'0' if sw==0 else v(KD,4)}",f"{MF} {v(ZD,4)}, {v(ON,4)}, {v(KF+4*sw,4)}, {'0' if sw==0 else v(ZD,4)}"])
                bulk+=[("delay",80)]+([("wait","lt1")] if h else [])
                for r in range(4): bulk.append(("mem",lambda r=r:g.vm(f"buffer_atomic_add_f32 v{KD+r}, v{VAT}, {WS}, {S.T0} offen offset:{r*64} sc1",24)))
                bulk+=[("mem",lambda h=h,tk=tk:tk.__setitem__(("kv",h),g.vm(f"buffer_atomic_add_f32 v{ZD}, v{VAZ}, {WS}, {S.T1} offen sc1",16))),("ev",f"kva{it}{h}")]
                co=8*it+4*h
                col+=ins([f"s_add_u32 {S.U0}, {S.KV}, {kvo+h*4096}",f"s_add_u32 {S.U1}, {S.KV}, {kvo+8192+h*128}"])
                col+=g.stage(S.PC,f"kva{it}{h}",S.CF,S.CF,co,tk,("kv",h),16,(o["kvd1"],o["kvd2"],o["kvd3"]),lambda nm=f"kv{it}{h}":(g.barrier(),g.stamp(nm)))
                for e in range(2):
                    for dh in range(2): col.append(("mem",lambda r=KF+8*e+4*dh,of=e*2048+dh*1024:g.vm(f"buffer_load_dwordx4 {v(r,4)}, v{VLD}, {WS}, {S.U0} offen offset:{of} {SC}",o["kvc"]))); col.append(("delay",o["kvp"]))
                for dh in range(2): col.append(("mem",lambda r=KF+16+4*dh,of=dh*64:g.vm(f"buffer_load_dwordx4 {v(r,4)}, v{VLZ}, {WS}, {S.U1} offen offset:{of} {SC}",16)))
                col+=[("ev",f"kvl{it}{h}")]
            if first:
                bulk+=ins([f"s_add_u32 {S.T0}, {S.XW}, {WS_X}",f"s_add_u32 {S.T1}, {S.XW}, {WS_X+32768}"])
                bulk+=[("vm",f"buffer_load_dwordx4 {v(V_RES+4*k,4)}, v{V_L16}, {WS}, {S.T1 if k>1 else S.T0} offen offset:{(k&1)*1024} {SC}") for k in range(4)]+[("delay",600)]
            for k in range(16): bulk+=ins([f"v_lshlrev_b32 v{B(6)+2*k}, 16, v{V_RES+k}",f"v_and_b32 v{B(6)+2*k+1}, 0xffff0000, v{V_RES+k}"])
            bulk+=[("ev",f"ci2_{it}")]
            for h in range(2):
                KR=B(2*h); Q=B(4+h); DN=KR+24
                bulk+=[("at",d[f"q{h}"]+(h==0))]
                bulk+=ins(phi([Q+e for e in range(16)],[T+46+e//8 for e in range(16)],PQ))
                bulk+=[("i",f"s_add_u32 {S.T0}, {S.XW}, {WS_O+it*XB+h*32768}"),("wait",f"kvl{it}{h}"),("since",f"kvl{it}{h}",o["kvd4"])]
                for e in range(3): bulk+=ins([f"v_cvt_pk_bf16_f32 v{KR+8*e+i}, v{KR+8*e+2*i}, v{KR+8*e+2*i+1}" for i in range(4)])
                for e in(2,0,1):
                    for mh in range(2): bulk.append(("i",f"{MF} {v(DN+4*mh if e==2 else Q+8*mh+4*e,4)}, {v(KR+8*e,4)}, {v(PQ+4*mh,4)}, 0"))
                bulk+=ins([f"v_fma_f32 v{RC+mh}, v{DN+4*mh}, v{L2E}, {S.C_EPS}" for mh in range(2)]+[f"v_rcp_f32 v{RC+mh}, v{RC+mh}" for mh in range(2)])
                for mh in range(2): bulk+=ins([f"v_mul_f32 v{Q+8*mh+i}, v{Q+8*mh+i}, v{RC+mh}" for i in range(8)]+[f"v_cvt_pk_bf16_f32 v{DN+4*mh+i}, v{Q+8*mh+2*i}, v{Q+8*mh+2*i+1}" for i in range(4)])
                bulk+=[("mem",lambda h=h,tk=tk,DN=DN:tk.__setitem__(("o",h),g.gstore([f"buffer_store_dwordx4 {v(DN+4*mh,4)}, v{V_L16}, {WS}, {S.T0} offen offset:{mh*1024}" for mh in range(2)]))),("ev",f"o{it}s{h}")]
                row+=g.rowstage(f"o{it}s{h}",24*it+4*h,tk,("o",h))
            key=f"o{it}"; g.panel(key,32); pan.append((key,32,V_XP,WS_O+it*XB,sev(key))); n0=len(U); marks.append((n0,"vp2"))
            d=g.stair(U,"o",key,32,[(0,(0,1),0),(1,(2,3),o["L2"])],aB([B(6),B(7)])); U[n0]["pre"]=f"ci2_{it}"; U[n0]["stamp"]=f"p2s{it}"
            if first: bulk+=g.table_load(True,T+8)+[("delay",700)]+g.table_make(True,T+8,tk)+[("delay",150),("fn",lambda tk=tk:(p.wait(lg=tk["t"]),g.barrier()))]
            for k2 in range(2):
                bulk+=[("at",d[k2]+(k2==0))]+ins([f"v_cvt_pk_bf16_f32 v{V_RES+k}, v{B(6)+2*k}, v{B(6)+2*k+1}" for k in range(8*k2,8*k2+8)])+g.pub_half(k2,xi+1,tk)
                row+=g.rowstage(f"x{xi+1}s{k2}",24*it+8+4*k2,tk,("x",k2))
            key=f"x{xi+1}"; g.panel(key,32); pan.append((key,32,V_XP,WS_X+(xi+1)*XB,sev(key))); n0=len(U); ev=f"st3_{it}"
            a3=aB([B(b) for b in range(7)]); L3=o["L3"]; b0=len(L3)
            done=g.stair(U,"1",key,32,[(b,(2*b,2*b+1),L3[b]) for b in range(b0)],a3,first=z0,mid=(min(28,32-max(L3)),[g.ext(4096+256*b,a3(b),False,False,ev) for b in range(2*b0)]))
            U[n0]["stamp"]=f"p3s{it}"; U[n0]["pre"]=f"o{it}s1"; marks+=[(n0,"vp0"),(done[0]+1,"vp3")]; nb_=len(U)
            for nb in o["G3"]:
                U+=[g.ext(4096+256*b,a3(b),False,True,ev) for b in range(2*b0,2*(b0+nb))]
                done.update(g.stair(U,"1",key,32,[(b,(2*b,2*b+1),0) for b in range(b0,b0+nb)],a3)); b0+=nb
            assert b0==7; U[nb_]["stamp"]=f"p3b{it}"
            key=f"h{it}"; g.panel(key,56); FB=o["FB"]; L4=o["L4"]
            pan.append((key,56,V_HP,WS_H+it*HB,lambda ks,it=it:"hf%d_%d"%(it,min(i for i,x in enumerate(FB) if ks//8<x))))
            KB=[B(7),B(0)]; SB=[B(1),B(2)]; RX=B(3); B2R=T+16; n0=len(U)
            d=g.stair(U,"2",key,56,[("S0",(4,5),L4[2]),("S1",(6,7),L4[3]),("K0",(0,1),L4[0]),("K1",(2,3),L4[1])],aB(KB+SB),first=lambda ks,b:(None if ks or b<4 else "0"))
            U[n0]["pre"]=f"e3_{it}"; U[n0]["stamp"]=f"p4s{it}"; U[d["S0"]+1]["stamp"]=f"p4k{it}"; marks+=[(n0,"vp4"),(d["S0"]+1,"vp5")]
            bulk+=[("wait",f"x{xi+1}s1r")]+g.side_stats(True,xi+1,[("delay",o["sd"])])+[("ev",ev)]
            bulk+=ins([f"v_and_b32 v{T}, 48, v{V_LANE}",f"v_add_u32 v{T}, {L_B2}, v{T}"]+[f"ds_read_b128 {v(B2R+4*b,4)}, v{T} offset:{64*b}" for b in range(4)])
            def cinit(k2):
                l=[]
                for k in range(8):
                    dd=KB[k2]+2*k; bb=B2R+8*k2+(2*k)%8
                    l+=[f"v_lshlrev_b32 v{dd}, 16, v{V_RES+8*k2+k}",f"v_and_b32 v{dd+1}, 0xffff0000, v{V_RES+8*k2+k}",f"v_add_f32 v{dd}, v{dd}, v{bb}",f"v_add_f32 v{dd+1}, v{dd+1}, v{bb+1}"]
                return ins(l)
            bulk+=[("delay",100)]+cinit(0); batch=[]
            for b in range(7):
                bulk.append(("at",done[b]+1))
                X=B(b); t=lambda e:T+e%8; L=lambda e:V_LC+3*(e//8); O0=T+32+8*(b&1)
                bulk+=ins(wave([lambda e:f"v_mul_f32 v{t(e)}, v{X+e}, v{X+e}",lambda e:f"v_fma_f32 v{t(e)}, v{t(e)}, v{L(e)+1}, v{L(e)}",lambda e:f"v_mul_f32 v{t(e)}, v{t(e)}, v{X+e}",
                                lambda e:f"v_exp_f32 v{t(e)}, v{t(e)}",lambda e:f"v_fma_f32 v{t(e)}, v{t(e)}, v{L(e)+2}, v{L(e)+2}",lambda e:f"v_rcp_f32 v{t(e)}, v{t(e)}",
                                lambda e:f"v_mul_f32 v{X+e}, v{t(e)}, v{X+e}"],16,lambda e:[f"v_cvt_pk_bf16_f32 v{O0+e//2}, v{X+e-1}, v{X+e}"] if e&1 else []))
                for mh in range(2):
                    Oo=O0+4*mh
                    batch.append((Oo,b,mh))
                    if len(batch)>=o["HBT"] or (mh and b+1 in FB):
                        for bb in sorted({x[1] for x in batch}): bulk.append(("i",f"s_add_u32 {S.T0 if bb&1 else S.T1}, {S.HW}, {WS_H+it*HB+bb*16384}"))
                        bulk.append(("mem",lambda b=b,batch=batch,tk=tk:tk.__setitem__(("h",b),g.gstore([f"buffer_store_dwordx4 {v(r,4)}, v{V_L16}, {WS}, {S.T0 if bb&1 else S.T1} offen offset:{m*1024}" for r,bb,m in batch]))))
                        batch=[]
                if b+1 in FB:
                    bulk.append(("ev",f"hs{it}{b}"))
                    (col if b&1 else row).extend(g.stage(S.PC if b&1 else S.PR,f"hs{it}{b}",S.RFH,S.RFH,128+8*(7*it+b),tk,("h",b),8,(o["hd1"],o["hd2"],o["hd3"]))+[("ev",f"hf{it}_{FB.index(b+1)}")])
                if b==0: bulk+=cinit(1)
                if b==2: bulk.append(("ev",f"e3_{it}"))
            for k2 in range(2):
                bulk+=[("i",f"s_add_u32 {S.T0}, {S.EXW}, {it*4*MB}"),("at",d[f"S{k2}"]+1)]+ins([f"v_cvt_pk_bf16_f32 v{RX+8*k2+k}, v{SB[k2]+2*k}, v{SB[k2]+2*k+1}" for k in range(8)])
                bulk+=[("mem",lambda k2=k2,tk=tk,RX=RX:tk.__setitem__(("e",k2),g.gstore([f"buffer_store_dwordx4 {v(RX+8*k2+4*m,4)}, v{V_L16}, {WS}, {S.T0} offen offset:{(2*k2+m)*1024}" for m in range(2)]))),("ev",f"es{it}{k2}")]
                col+=[("i",f"s_add_u32 {S.U0}, {S.EXR}, {it*4*MB}")]+g.stage(S.PC,f"es{it}{k2}",S.RFW,S.RFP,64,tk,("e",k2),2*it+k2+1,(o["exd1"],o["exd2"],o["exd3"]),lambda nm=f"ex{it}{k2}":g.stamp(nm))
                col+=[("mem",lambda r=RX+8*k2+4*m,of=(2*k2+m)*1024:g.vm(f"buffer_load_dwordx4 {v(r,4)}, v{V_L16}, {WS}, {S.U0} offen offset:{of} {SC}")) for m in range(2)]+[("ev",f"el{it}{k2}")]
            if it: bulk.append(("fn",g.rowaddr))
            for k2 in range(2):
                bulk+=[("wait",f"el{it}{k2}"),("since",f"el{it}{k2}",o["exd4"])]
                for k in range(8): bulk+=ins([f"v_lshlrev_b32 v{SB[k2]+2*k}, 16, v{RX+8*k2+k}",f"v_and_b32 v{SB[k2]+2*k+1}, 0xffff0000, v{RX+8*k2+k}"])
                bulk+=[("at",d[f"K{k2}"]+(k2==0))]
                for k in range(8): bulk+=ins([f"v_add_f32 v{KB[k2]+2*k}, v{KB[k2]+2*k}, v{SB[k2]+2*k}",f"v_add_f32 v{KB[k2]+2*k+1}, v{KB[k2]+2*k+1}, v{SB[k2]+2*k+1}",
                                              f"v_cvt_pk_bf16_f32 v{V_RES+8*k2+k}, v{KB[k2]+2*k}, v{KB[k2]+2*k+1}"])
                bulk+=[("ev",f"fin{it}_{k2}")]
                if it==0: bulk+=g.pub_half(k2,2,tk); row+=g.rowstage(f"x2s{k2}",16+4*k2,tk,("x",k2))
                else:
                    for k in(2*k2,2*k2+1):
                        bulk+=ins([f"v_permlane16_swap_b32 v{V_RES+4*k}, v{V_RES+4*k+2}",f"v_permlane16_swap_b32 v{V_RES+4*k+1}, v{V_RES+4*k+3}"])
                        bulk+=[("mem",lambda k=k:g.vm(f"buffer_store_dwordx4 {v(V_RES+4*k,4)}, v{T+1}, {TS}, {S.T1 if k&1 else S.T0} offen offset:{64*(k>>1)} {o['osc']}"))]
            assert g.nu==NSL*16*(it+1)
        lastuse={}
        for n,u in enumerate(U):
            if u["akey"]: lastuse[g.kbase[u["akey"][0]]+u["akey"][1]]=n
        for key,n,vb,off,ev in pan: Aq+=g.aloads(key,n,vb,off,lambda k:(lambda n:k<32 or n>=lastuse[k-32]),ev)
        vp=[0]*len(U)
        for (n,nm),(m,_) in zip(marks,marks[1:]+[(len(U),0)]): vp[n:m]=[o[nm]]*(m-n)
        g.stream(U,Aq,[row,col,bulk],lambda n:vp[n])
        assert not(row or col or bulk),(row[:2],col[:2],bulk[:2])
        p(f"s_add_u32 {S.T2}, s2, {S.W}\ns_min_u32 {S.T2}, {S.T2}, 1\ns_lshl_b32 {S.T2}, {S.T2}, 30\ns_add_u32 {S.T2}, {S.T2}, {WS_EP}\nv_mov_b32 v{V_FLG}, {S.EP}")
        p(f"buffer_store_dword v{V_FLG}, v{V_ONE}, {WS}, {S.T2} offen")
        return g.finish()
    def table(g):
        rows=[]; P=lambda m,ks,nb:g.pos[(m,ks,nb)]*1024
        for par in range(2):
            for mb in range(64):
                i,w=divmod(mb,4); src=[]; pos=[]
                for r in range(2):
                    ks=2*i+r; kp=r*16+((i&1)^par)*8+(i>>1)
                    if w<3: src.append(ks*32*RQ+(2048,4096,0)[w]+128*par); pos+=[P("q",kp,4*w+nb) for nb in range(4)]
                    else: src.append(ks*32*R2+128*par); pos+=[P("o",kp,nb) for nb in range(4)]
                for r in range(2):
                    ks=2*i+r; kp=r*16+((i&1)^par)*8+(i>>1)
                    if w<3: src.append(ks*32*R1+512*par+128*w); pos+=[P("1",kp,4*w+nb) for nb in range(4)]
                    else: src.append(ks*32*R1+384); pos+=[P("1",kp,12+(nb&1)) if nb>>1==par else OOB for nb in range(4)]
                for r in range(2):
                    q=7*i+min(2*w+r,6); ks,pr=divmod(q,2); b,jj=divmod(ks,8)
                    row=448*jj+224*par+((32+32*b if b<6 else 0) if par else 32*b)
                    src.append(row*R2+128*(pr^par) if 2*w+r<7 else OOB); pos+=[P("2",ks,4*pr+nb) if 2*w+r<7 else OOB for nb in range(4)]
                rows.append(src+[0,0]+pos)
        return ".p2align 7\n.type L_tab,@object\nL_tab:\n"+"".join(".long "+",".join(map(str,r))+"\n" for r in rows)
    def finish(g):
        p=g.p
        if g.o["prof"]:
            p.waitall(); g.stamp("end"); g.flush_stamps()
            p(f"s_lshl_b32 {S.T0}, s2, 2\ns_add_u32 {S.T0}, {S.T0}, {S.W}\ns_lshl_b32 {S.T0}, {S.T0}, 8\ns_add_u32 {S.T0}, {S.T0}, {WS_TS}\nv_lshlrev_b32 v{V_T}, 2, v{V_LANE}")
            p(f"buffer_store_dword v{V_TS}, v{V_T}, {WS}, {S.T0} offen")
            if g.o.get("dbg"):
                p("s_load_dwordx2 s[96:97], s[0:1], 72\ns_mov_b32 s98, 256\ns_mov_b32 s99, 0x20000"); p.waitall()
                sel=[0,0]+[g.names.index(n) for n in g.o["dbg"]]
                for k,l in enumerate(sel[1:],1):
                    p(f"v_readlane_b32 {S.T1}, v{V_TS}, {l}")
                    if k==1: p(f"s_not_b32 {S.T1}, {S.T1}")
                    p(f"v_writelane_b32 v{V_T+1}, {S.T1}, {k}")
                p(f"s_cmp_lg_u32 {S.W}, 0\ns_cbranch_scc1 L_end\ns_mov_b64 exec, {hex((1<<len(sel))-2)}\nbuffer_atomic_umax v{V_T+1}, v{V_T}, s[96:99], 0 offen sc1")
        p.raw("s_endpgm")
        p.out[p.out.index("@ISLAND@")]="s_branch L_over\nL_end:\ns_endpgm\n"+"\n".join(g.slow)+"\nL_over:"
        p.raw(g.table())
        hdr=open("cdna_kernels/"+NAME[:-7]+".s.ref").read().split("; Override")[0]
        hdr+=f"; @launch grid=(256,1,1) block=(256,1,1) lds={LDS_BYTES}\n"
        hdr+=f'.amdgcn_target "amdgcn-amd-amdhsa--gfx950"\n.text\n.globl {NAME}\n.p2align 8\n.type {NAME},@function\n'
        kd=f""".section .rodata,"a"
.p2align 6
.amdhsa_kernel {NAME}
  .amdhsa_next_free_vgpr 512
  .amdhsa_next_free_sgpr 102
  .amdhsa_accum_offset 256
  .amdhsa_group_segment_fixed_size 0
  .amdhsa_kernarg_size 88
  .amdhsa_user_sgpr_count 2
  .amdhsa_user_sgpr_kernarg_segment_ptr 1
  .amdhsa_system_sgpr_workgroup_id_x 1
  .amdhsa_float_denorm_mode_32 3
.end_amdhsa_kernel
"""
        return hdr+p.text()+kd
def make(**o):
    g=Gen(**o); s=g.build(); return s,g
if __name__=="__main__":
    o={}
    for x in sys.argv[2:]:
        k,val=x.split("="); o[k]=eval(val)
    s,g=make(**o); open(sys.argv[1],"w").write(s)
    print("bytes",len(s),"lines",s.count("\n"),"nops",g.p.nops,"autowaits",g.p.autow,"est cyc",g.t,"pen",g.p.pen,"forced",g.forced,"lgbad",g.lgbad,"stall",g.stall); print(g.log)
```

```python
import sys, math, struct
from ir import *
NAME="interleave_layers__linear_attn_block__dense_activation_gelu__prompt_kernel"
def f2u(x): return struct.unpack("<I",struct.pack("<f",x))[0]
def F(x): return hex(f2u(x))
LOG2E=1.4426950408889634; LN2=0.6931471805599453
MB=1<<20
WS_ROWF=0; WS_COLF=16384; WS_F0=0x8000; WS_EP=0x6000; WS_SA=0x10000; WS_CSQ=0x40000; WS_CS1=0x80000; WS_KV=0xc0000; WS_ST=0x140000; WS_TS=0x240000
WS_X=3*MB; XB=4*MB+0x40000; WS_O=WS_X+4*XB; WS_EX=30*MB; WS_H=38*MB; HB=15*MB; WS_WT=68*MB
KVS=8704; WTS=88*16384+2048
OOB=0x40000000
L_SCR=131072; L_EXT1=147456; L_EXT3=L_EXT1+4096; L_B2=L_EXT3+4096; LDS_BYTES=L_B2+256
RQ,R2,R1=6144,2048,7168
class S: pass
_s=["I","J","W","MBk","PAR","T0","T1","T2","T3","U0","U1","LDSW","EP","ONE","TO",
    "HW","XW","STP","KV","EXW","EXR","RF","RFW","RFP","CF","RFH","PR","PC","AW1","AW2","C_EPS","C_LN2"]
for n,x in enumerate(_s): setattr(S,x,f"s{32+n}")
assert len(_s)<=32
SM='s[100:101]'; SN='s[98:99]'
S_TAB=64
WQ,WO,W1,W2,WS,TS,B1="s[4:7]","s[8:11]","s[12:15]","s[16:19]","s[20:23]","s[24:27]","s[28:31]"
WSP="s[20:21]"
V_L16,V_ONE,V_FALL,V_STAT,V_WP,V_A,V_RD,_,V_EXT,V_FLG,V_TS,V_LANE,V_CP,_,V_XP,V_HP=range(16)
V_WF=16; V_RES=48; V_XE=64; V_LC=72; V_ACC=80; V_T=208
def icost(t):
    c=0
    for l in t.split("\n"):
        op=l.split()[0]
        c+=8 if (op in TRANS or op.startswith(("v_mfma","buffer_"))) else 4
    return c
def ismem(it): return it[0] in("vm","mem") or (it[0]=="i" and it[1].startswith(("ds_","buffer_","global_")))
def v(a,n=1): return f"v{a}" if n==1 else f"v[{a}:{a+n-1}]"
def a_(a,n=4): return f"a[{a}:{a+n-1}]"
MF="v_mfma_f32_16x16x32_bf16"
SC="sc1"
NSL=88
def ins(l): return [("i",x) for x in l]

def wave(stages,n,tail):
    l=[]
    for t in range(n+len(stages)):
        for s_,f in enumerate(stages):
            if 0<=t-s_<n: l.append(f(t-s_))
        if 0<=t-len(stages)<n: l+=tail(t-len(stages))
    return l

class Gen:
    def __init__(g,**o):
        g.o=dict(D=7,SL=800,WE=4,L1=(0,14,14,14),KX=18,LQ=32,L2=16,L3=(0,0,0,0),G3=(3,),L4=(24,28,0,8),FB=(1,2,3,4,5,6,7),cpf=True,HBT=2,xm=4,STG=200,
                 DEPTH=440,LOW=150,LEAD=24,FULL=520,URG=48,COST=72,prof=False,vp0=2.0,vp1=3.2,vpq=5.0,vp2=8.0,vp3=3.4,vp4=2.8,vp5=3,SK=512,half=(),osc='',inl=True,oscn=4,qw='',qn=12,qo=12,xb=100,ex1=False,nt0=True,late=2,lt=(150,10),sat=True,rdb=300,gp=True,kvc=140,kvp=100,wp=40,rp=30,la=3,cmax=8,cmin=-16,ipf=192,sd=1100,l1=128,l2=128,QD=-100000,QL=30,abl='',
                 rd1=750,rd2=450,rd3=700,ld2=200,ld3=350,LAT0=200,burst=8,kvd1=1100,kvd2=700,kvd3=850,kvd4=600,hd1=800,hd2=800,hd3=750,
                 exd1=750,exd2=600,exd3=850,exd4=600,pre0=8,p0o=4,wnt='nt',xnt='nt',tst='sc1')
        g.o.update(o); g.p=Prog(); g.slow=[]; g.nlab=0; g.tsq=[]; g.names=[]
        g.dma_t={}; g.lastrd={}; g.ready=set(); g.released=set(); g.nextD=0; g.maxD=2*NSL*4; g.t=0; g.free_at=0; g.ev=set()
        g.nu=0; g.pos={}; g.nunit=0; g.forced=0; g.m0dirty=False; g.instream=False; g.later=[]; g.sm=[]; g.lgbad=0; g.nk=0; g.kbase={}; g.nstage=0
    def stamp(g,name,now=False):
        if not g.o["prof"]: return
        if g.o.get("fine") and not(name[0]=="u" or name in("start","end","p3s0","p3s1")): return
        if len(g.tsq)==8 and not now: g.flush_stamps()
        r=S_TAB+6 if now else S_TAB+2*len(g.tsq)
        g.p(f"s_sub_u32 s{r}, 0, {S.TO}" if g.o['prof']=='to' else f"{'s_memtime' if g.o['prof']=='cy' else 's_memrealtime'} s[{r}:{r+1}]"); g.tsq.append((name,r))
        if now: g.flush_stamps()
    def flush_stamps(g):
        if not g.o["prof"] or not g.tsq: return
        p=g.p; p.waitall(vm=False)
        for name,r in g.tsq:
            assert len(g.names)<64; p(f"v_writelane_b32 v{V_TS}, s{r}, {len(g.names)}"); g.names.append(name)
        g.tsq=[]
    def vm(g,text,cost=None):
        ab=g.o["abl"] if g.instream else ""
        if g.o.get("skipA") and text.startswith("global_load_dwordx4"):
            g.ska=getattr(g,"ska",0)+1
            if g.ska>64 and g.ska%g.o["skipA"]==1: return max(g.p.nvm-8,1)
        if ("s" in ab and text.startswith("buffer_store_dwordx4") and TS not in text) or ("a" in ab and text.startswith("global_load_dwordx4")) or ("w" in ab and "load_lds" in text) or ("k" in ab and "add_f32" in text): t=g.p.nvm
        else: t=g.p(text)
        c=g.o["COST"] if cost is None else cost
        g.t=max(g.t,g.free_at-g.o["FULL"])
        g.free_at=max(g.free_at,g.t)+c; return t
    def barrier(g):
        p=g.p; p("s_barrier")
        for s,t in g.lastrd.items():
            if t<=p.lgdone: g.released.add(s)
        for s,(t,n) in g.dma_t.items():
            if n==4 and t<=p.vmdone: g.ready.add(s)
    def dma_ok(g):
        s=g.nextD//4
        return g.nextD<g.maxD and (s<8 or (s-8) in g.released) and (s<32 or "kvl01" in g.ev) and (s<60 or "o0s1r" in g.ev)
    def dma_ops(g):
        s,q=divmod(g.nextD,4); g.nextD+=1; p=g.p; ops=[]
        I_=lambda t:ops.append((4,lambda:p(t)))
        if q==0 or g.m0dirty: I_(f"s_add_u32 m0, {S.LDSW}, {(s%8)*16384}")
        if q==0 and s and g.o.get("fakeW"): I_(f"v_add_u32 v{V_WP}, {16384 if s%4 else hex((-3*16384)&0xffffffff)}, v{V_WP}")
        elif q==0 and s: I_(f"v_add_u32 v{V_WP}, {16384 if s!=NSL else hex((16384*(1-NSL))&0xffffffff)}, v{V_WP}")
        g.m0dirty=False
        def go(): g.dma_t[s]=(g.vm(f"global_load_lds_dwordx4 v{V_WP}, {WSP} offset:{q*1024} {SC}"),q+1)
        ops.append((4,go,1)); return ops
    def dma(g):
        for x in g.dma_ops(): x[1]()
    def pump(g,n):
        while n>0 and g.dma_ok(): g.dma(); n-=1
    def arrive(g,soff,off,ticket):
        if "p" in g.o["abl"]: return
        g.p.wait(vm=ticket); g.p(f"s_atomic_add {S.ONE}, {WSP}, {soff} offset:{off}"); g.sm.append(g.t+g.o["SL"])
    def poll_issue(g,r,soff,off):
        if "p" in g.o["abl"]: return
        g.p(f"s_atomic_add {r}, {WSP}, {soff} offset:{off} glc"); g.sm.append(1e18)
    def poll_check(g,r,soff,off,target):
        if "p" not in g.o["abl"]: g.sm.remove(1e18)
        if "c" in g.o["abl"]: return
        p=g.p; n=g.nlab; g.nlab+=1
        p(f"s_cmp_lt_u32 {r}, {target}")
        g.retry(n,f"""L_slow{n}:
s_waitcnt lgkmcnt(0)
s_cmp_ge_u32 {r}, {target}
s_cbranch_scc1 L_back{n}
s_mov_b32 {r}, 0
s_atomic_add {r}, {WSP}, {soff} offset:{off} glc
s_sub_u32 {S.TO}, {S.TO}, 1
s_cbranch_scc0 L_slow{n}
s_endpgm""")
    def stage(g,r,ev,aoff,poff,off,tk,key,target,d,after=None):
        return [("wait",ev),("i",f"s_mov_b32 {r}, 0"),("since",ev,d[0]),("fn",lambda:g.arrive(aoff,off,tk[key])),("delay",d[1]),("fn",lambda:g.poll_issue(r,poff,off)),("delay",d[2]),
                ("fn",lambda:(g.poll_check(r,poff,off,target),after() if after else None))]
    def retry(g,n,body):
        p=g.p
        if g.o["inl"]: p(f"s_cbranch_scc0 L_back{n}"); p.raw(body)
        else: p(f"s_cbranch_scc1 L_slow{n}"); g.slow.append(body)
        p.raw(f"L_back{n}:")
    def gstore(g,l,cost=None):
        for x in l:
            t=g.vm(x+" sc1",g.o["STG"] if cost is None else cost)
            if cost is None: g.p.cyc+=48
        return t
    def panel(g,key,n): g.kbase[key]=g.nk; g.nk+=n
    def areg(g,key,ks): return 8*((g.kbase[key]+ks)%32)
    def unit(g,mat,key,ks,nb,acc,tr,first):
        u=g.nu; g.nu+=1; a=g.areg(key,ks)
        assert g.pos.setdefault((mat,ks,nb),u%(NSL*16))==u%(NSL*16)
        return dict(slot=u//16,rd=(V_RD+(u%128)//64,(u%64)*1024),x=[a_(a),a_(a+4)],acc=acc,tr=tr,first=first,akey=(key,ks))
    def stair(g,U,mat,key,n,blocks,accf,tr=False,first=lambda ks,nb:None,mid=None):
        done={}
        for ks in range(n):
            if mid and ks==mid[0]: U+=mid[1]
            for name,nbs,lag in blocks:
                if ks<n-lag:
                    for nb in nbs: U.append(g.unit(mat,key,ks,nb,accf(nb),tr,first(ks,nb)))
                    done[name]=len(U)-1
        for name,nbs,lag in blocks:
            for ks in range(n-lag,n):
                for nb in nbs: U.append(g.unit(mat,key,ks,nb,accf(nb),tr,first(ks,nb)))
                done[name]=len(U)-1
        return done
    def ext(g,off,accs,tr,first,ev):
        return dict(slot=None,rd=(V_EXT,off),x=[v(V_XE,4),v(V_XE+4,4)],acc=accs,tr=tr,first="0" if first else None,akey=None,ev=ev)
    def stream(g,U,Aq,sides,vpu,lat=550):
        p=g.p; D=g.o["D"]; WE=g.o["WE"]; NF=D+1; N=len(U); base=g.nunit
        firstuse={}; lastu={}; firstu={}
        for n,u in enumerate(U):
            if u["akey"]: firstuse.setdefault(u["akey"],n)
            if u["slot"] is not None: lastu[u["slot"]]=n; firstu.setdefault(u["slot"],n)
        At={}; rd_t={}; st=dict(n=-1,dl=1e9,th=0,c0=0,q=0); mq=[]; g.instream=True; p.onlg=lambda k:setattr(g,'lgbad',g.lgbad+(k<=sum(x>g.t for x in g.sm) and any(x>g.t for x in g.sm))); g.stall=0; g.log=[]; g.evlog=[]; g.evt={}
        def tpeek(side,force=False):
            while side:
                it=side[0]
                if it[0]=="at":
                    if st["n"]<it[1]: return None
                elif it[0]=="quiet": st["q"]+=it[1]
                elif it[0]=="wait":
                    if it[1] not in g.ev: return None
                elif it[0]=="since":
                    side[0]=("delay",it[2],g.evt[it[1]]+it[2]); continue
                elif it[0]=="delay":
                    if len(it)==2: side[0]=it=("delay",it[1],g.t+it[1])
                    if g.t<it[2] and not force: return None
                elif it[0]=="ev":
                    if it[1] not in g.ev: g.evlog.append((st["n"],it[1])); g.evt[it[1]]=g.t
                    g.ev.add(it[1])
                else:
                    if it[0]=="vm" and not force and g.free_at-g.t>g.o["DEPTH"]+100: return None
                    return 8 if it[0] in("fn","mem") else icost(it[1])
                side.pop(0)
            return None
        def side_peek(force=False):
            for s_ in reversed(sides): tpeek(s_)
            for k,s_ in enumerate(sides):
                c=tpeek(s_)
                if c is not None: st["th"]=k; return c
            if force:
                dl=[(s_[0][2],k) for k,s_ in enumerate(sides) if s_ and s_[0][0]=="delay"]+[(g.free_at-g.o["DEPTH"]-100,k) for k,s_ in enumerate(sides) if s_ and s_[0][0]=="vm"]
                if dl: t_,k=min(dl); g.stall+=max(t_-g.t,0); g.t=max(g.t,t_); return side_peek(True)
            return None
        def side_emit():
            it=sides[st["th"]].pop(0)
            if it[0] in("fn","mem"): it[1]()
            elif it[0]=="vm": g.vm(it[1],it[2] if len(it)>2 else None)
            elif "v" in g.o["abl"] and it[1].startswith(("v_mul_f32","v_fma_f32","v_exp","v_rcp","v_max_f32","v_cvt_pk","v_dot2","v_add_f32")): p.cyc+=icost(it[1])
            else:
                p(it[1])
                if it[1].startswith("v_mfma"): p.cyc+=8
        def until(ev):
            s0=g.stall; k=0
            while True:
                for s_ in reversed(sides): tpeek(s_)
                if ev in g.ev: break
                fill()
                c=side_peek(True)
                if ev in g.ev: break
                assert c is not None,("stuck",ev,st["n"],[x[:2] for x in sides])
                c0=p.cyc; side_emit(); g.t+=p.cyc-c0; st["c0"]+=p.cyc-c0; k+=1
            if k: g.log.append((st["n"],ev,k,g.stall-s0))
        def fill():
            while g.free_at-g.t<g.o["LOW"]:
                refill(True)
                if not mq: break
                flush()
        def flush():
            while mq: mq.pop(0)[1]()
        def nextA():
            x=Aq.pop(0); return x["ops"](At)
        def A_ok(): return Aq and Aq[0]["ok"](st["n"]) and (Aq[0].get("ev") is None or Aq[0]["ev"] in g.ev)
        def refill(force=False):
            if mq: return
            da=firstuse.get(Aq[0]["id"][:2],1e8) if A_ok() else None
            dd=(firstu.get(g.nextD//4,1e9)-D-WE) if g.dma_ok() else None
            if da is None and dd is None: return
            dl=min(x for x in(da,dd) if x is not None)
            if not force and g.free_at-g.t>(g.o["QD"] if st["q"] and dl-st["n"]>g.o["QL"] else g.o["DEPTH"]) and dl-st["n"]>g.o["LEAD"]: return
            st["dl"]=dl
            mq.extend(nextA() if dd is None or (da is not None and da<=dd) else g.dma_ops())
        def rd(n):
            u=U[n]; r=V_WF+4*(n%NF); s=u["slot"]
            if s is None: until(u["ev"])
            elif firstu[s]==n:
                if g.dma_t.get(s,(0,0))[1]<4:
                    flush(); g.forced+=1
                    while g.nextD<4*(s+1):
                        if not g.dma_ok(): p.waitall(vm=False); g.barrier(); assert g.dma_ok()
                        g.dma()
                if s not in g.ready: p.wait(vm=g.dma_t[s][0])
                g.barrier(); assert s in g.ready
            rd_t[n]=p(f"ds_read_b128 {v(r,4)}, v{u['rd'][0]} offset:{u['rd'][1]}")
            if s is not None and lastu[s]==n: g.lastrd[s]=rd_t[n]
        def hoist(sd,want):
            seen=[]
            for k,it in enumerate(sd[:g.o["la"]+1]):
                if it[0]!="i" or "\n" in it[1] or not it[1].startswith("v_") or it[1].startswith(("v_mfma","v_cmp","v_permlane")): return False
                x=I(it[1])
                if k and icost(it[1])==want and all(not(set(y.wr)&(set(x.rd)|set(x.wr)) or set(y.rd)&set(x.wr)) for y in seen) and not any(need(y,x)>d for d,y in enumerate(reversed(p.hist[-2:]))):
                    sd.insert(0,sd.pop(k)); return True
                seen.append(x)
            return False
        cr=dict(c=0.0)
        def peek():
            refill()
            if mq: return mq[0][0]
            return side_peek()
        def emit():
            if mq: mq.pop(0)[1]()
            else: cr["c"]-=side_peek(); side_emit()
        for _ in range(g.o['burst']): refill(True); flush()
        for _ in range(40):
            if side_peek() is None: break
            side_emit()
        for n in range(D): rd(n)
        g.t+=lat; g.free_at+=g.o["LAT0"]
        for n,u in enumerate(U):
            st["c0"]=p.cyc; r=V_WF+4*(n%NF)
            if n==N//2: p.raw("@ISLAND@")
            if g.o["ipf"] and n%g.o["ipf"]==0 and n<N-300:
                mq.extend([(4,lambda:p("s_getpc_b64 s[4:5]")),(4,lambda:g.vm(f"global_load_dword v{V_CP+1}, v{V_CP}, s[4:5]",8),1)])
            if u.get("pre"): until(u["pre"])
            if u.get("stamp"): g.stamp(u["stamp"])
            fine=g.o.get("fine")
            if fine and fine[0]<=base+n<fine[0]+fine[2]*fine[1] and (base+n-fine[0])%fine[1]==0: g.stamp(f"u{base+n}_{g.t}_{p.nvm}")
            tv=None; g.sm=[x for x in g.sm if x>g.t]
            reg=rd_t[n]>p.lgdone; span=max(1,WE-len(g.sm)) if reg else 1
            for m in range(n,min(N,n+span)):
                w=U[m]
                if w["akey"] and firstuse[w["akey"]]==m:
                    k=w["akey"]+(1,)
                    if m==n and k not in At:
                        flush(); g.forced+=1
                        while k not in At:
                            if Aq[0].get("ev") and Aq[0]["ev"] not in g.ev: until(Aq[0]["ev"]); continue
                            assert Aq[0]["ok"](st["n"]); mq.extend(nextA()); flush()
                        for _ in range(g.o["burst"]-2): refill(True); flush()
                        g.stall+=lat; g.t+=lat; g.free_at+=g.o["LAT0"]; g.log.append((n,"A late",u["akey"]))
                    if k in At: tv=At[k]
            if reg:
                for m in range(n+D,min(N,n+D+span)):
                    s=U[m]["slot"]
                    if s is not None and firstu[s]==m and g.dma_t.get(s,(0,0))[1]==4: tv=max(tv or 0,g.dma_t[s][0])
            p.wait(vm=tv,lg=rd_t[min(n+span-1,N-1)])
            cr["c"]=max(min(cr["c"],g.o["cmax"]),g.o["cmin"])+4*vpu(n)
            def mf(mh):
                acc=v(u["acc"][mh],4); c=u["first"] or acc; w=v(r,4); x=u["x"][mh]
                p(f"{MF} {acc}, {x}, {w}, {c}" if u["tr"] else f"{MF} {acc}, {w}, {x}, {c}")
            wnext=4 if n+1<N and rd_t[n+1]>p.lgdone else 0
            def urgent(): return mq and (g.free_at-g.t<g.o["LOW"] and st["dl"]-n<g.o["URG"] or st["dl"]-n<g.o["LEAD"]-4)
            def due(c): return cr["c"]>=c or st["th"]!=len(sides)-1
            def gap(room,last):
                c1=p.gap0
                while True:
                    free=room-(p.cyc-c1); refill()
                    if mq and len(mq[0])==3 and not p.vseen and (free>=4 or urgent()): mq.pop(0)[1](); continue
                    c=side_peek(); m=c is not None and ismem(sides[st["th"]][0])
                    if m and not p.vseen and (c<=free or due(c)): cr["c"]-=c; side_emit(); continue
                    if mq and len(mq[0])==2 and (free>=4 or (last and urgent())): mq.pop(0)[1](); continue
                    if c is not None and not m and g.o["la"] and free in(4,8) and c!=free and hoist(sides[st["th"]],free): c=free
                    if c is not None and not m and (c<=free or (last and due(c))): cr["c"]-=c; side_emit(); continue
                    return
            mf(0); r1=n+D<N
            sr=g.nextD//4-8
            if g.o["xb"] and not mq and g.nextD<g.maxD and sr>=0 and sr not in g.released and g.lastrd.get(sr,1e9)<=p.lgdone and g.free_at-g.t<g.o["xb"] and not A_ok(): g.barrier()
            refill(); cs=side_peek()
            if r1 and not(wnext and cs==8 and not mq): rd(n+D); r1=False
            gap(8,False)
            mf(1); st["n"]=n
            if r1: rd(n+D)
            gap(8-wnext,True)
            g.t+=max(32,p.cyc-st["c0"])
        g.nunit+=N; flush(); assert not Aq
        st["n"]=1e9
        while side_peek(True) is not None:
            c0=p.cyc; side_emit(); g.t+=p.cyc-c0
    def aloads(g,key,nks,vb,off,ok,ev):
        q=[]; p=g.p
        for ks in range(nks):
            for mh in range(2):
                f=2*ks+mh
                def ops(At,f=f,ks=ks,mh=mh):
                    l=[]
                    if f==0: l.append((4,lambda:p(f"v_add_u32 v{V_A}, {off+4096}, v{vb}")))
                    elif f%8==0 and g.o.get("fakeA"): l.append((4,lambda:p(f"v_add_u32 v{V_A}, 0, v{V_A}")))
                    elif f%8==0: l.append((4,lambda:p(f"v_add_u32 v{V_A}, {8192 if f%16 or nks!=32 else S.AW2 if f==32 else S.AW1}, v{V_A}")))
                    l.append((4,lambda:At.__setitem__((key,ks,mh),g.vm(f"global_load_dwordx4 {a_(g.areg(key,ks)+4*mh)}, v{V_A}, {WSP} offset:{(f%8)*1024-4096} {SC}")),1))
                    return l
                q.append(dict(id=(key,ks,mh),ops=ops,ok=ok(g.kbase[key]+ks),ev=ev(ks)))
        return q
    def red4(g,a,b,c,d):
        return [f"v_permlane32_swap_b32 v{a}, v{c}",f"v_permlane32_swap_b32 v{b}, v{d}",f"v_add_f32 v{a}, v{a}, v{c}",f"v_add_f32 v{b}, v{b}, v{d}",
                f"v_permlane16_swap_b32 v{a}, v{b}",f"v_add_f32 v{a}, v{a}, v{b}"]
    def pub_half(g,k2,xi,tk,J=S.J):
        T=V_T; s=ins([f"s_add_u32 {S.T0}, {S.XW}, {WS_X+xi*XB+k2*32768}"])
        s.append(("mem",lambda:tk.__setitem__(("x",k2),g.gstore([f"buffer_store_dwordx4 {v(V_RES+8*k2+4*mh,4)}, v{V_L16}, {WS}, {S.T0} offen offset:{mh*1024}" for mh in range(2)]))))
        if k2==0: s+=[("ev",f"x{xi}s0"),("i",f"v_mov_b32 v{T+4}, 0x3f803f80")]
        l=[]
        for i in range(4):
            for mh in range(2):
                r=V_RES+8*k2+4*mh+i; z=(i==0 and k2==0)
                l+=[f"v_dot2_f32_bf16 v{T+2*mh}, v{r}, v{T+4}, {'0' if z else v(T+2*mh)}",f"v_dot2_f32_bf16 v{T+2*mh+1}, v{r}, v{r}, {'0' if z else v(T+2*mh+1)}"]
        s.append(("fn",lambda:g.p("\n".join(l))))
        if k2 and xi and g.o["sat"]:
            s+=ins([f"s_add_u32 {S.T0}, {S.RF}, {WS_SA+(xi-1)*16384}"]+g.red4(T,T+1,T+2,T+3))
            s+=[("mem",lambda:tk.__setitem__(("x",k2),g.vm(f"buffer_atomic_add_f32 v{T}, v{V_STAT}, {WS}, {S.T0} offen sc1",16))),("ev",f"x{xi}s1")]
        elif k2:
            s+=ins([f"s_lshl_b32 {S.T0}, {J}, 8",f"s_add_u32 {S.T0}, {S.T0}, {S.STP}",f"s_add_u32 {S.T0}, {S.T0}, {xi*0x40000}"]+g.red4(T,T+1,T+2,T+3))
            s+=[("mem",lambda:tk.__setitem__(("x",k2),g.gstore([f"buffer_store_dword v{T}, v{V_STAT}, {WS}, {S.T0} offen"],16))),("ev",f"x{xi}s1")]
        return s
    def rowstage(g,name,co,tk,key):
        o=g.o
        return g.stage(S.PR,name,S.RF,S.RF,co,tk,key,16,(o["rd1"]+(o["rdb"] if key==("x",1) and o["sat"] else 0),o["rd2"],o["rd3"]),lambda:g.stamp(name))+[("ev",name+"r")]
    def side_stats(g,p3,xi,mid):
        T=V_T; o=[]
        if xi and g.o["sat"]:
            s=ins([f"s_add_u32 {S.T0}, {S.RF}, {WS_SA+(xi-1)*16384}",f"v_lshlrev_b32 v{T+4}, 2, v{V_FALL}"])+[("vm",f"buffer_load_dwordx4 {v(T,4)}, v{T+4}, {WS}, {S.T0} offen {SC}",24)]+mid
        else:
            s=ins([f"s_add_u32 {S.T0}, {S.STP}, {xi*0x40000}"])
            for t in range(4): s.append(("vm",f"buffer_load_dwordx4 {v(T+4*t,4)}, v{V_L16}, {WS}, {S.T0} offen offset:{t*1024} {SC}"))
            s+=mid
            for c in range(4): o+=[f"v_add_f32 v{T+c}, v{T+c}, v{T+4+c}",f"v_add_f32 v{T+8+c}, v{T+8+c}, v{T+12+c}"]
            for c in range(4): o+=[f"v_add_f32 v{T+c}, v{T+c}, v{T+8+c}"]
            for sw in("32","16"):
                for c in range(4): o+=[f"v_mov_b32 v{T+4+c}, v{T+c}"]
                for c in range(4): o+=[f"v_permlane{sw}_swap_b32 v{T+c}, v{T+4+c}"]
                for c in range(4): o+=[f"v_add_f32 v{T+c}, v{T+c}, v{T+4+c}"]
        for mh in range(2): o+=[f"v_mul_f32 v{T+2*mh}, {F(-1/1024)}, v{T+2*mh}",f"v_mul_f32 v{T+2*mh+1}, {F(1/1024)}, v{T+2*mh+1}"]
        for mh in range(2): o+=[f"v_fma_f32 v{T+2*mh+1}, -v{T+2*mh}, v{T+2*mh}, v{T+2*mh+1}"]
        for mh in range(2): o+=[f"v_max_f32 v{T+2*mh+1}, 0, v{T+2*mh+1}"]
        for mh in range(2): o+=[f"v_add_f32 v{T+2*mh+1}, {F(1e-5)}, v{T+2*mh+1}"]
        for mh in range(2): o+=[f"v_rsq_f32 v{T+4+mh}, v{T+2*mh+1}"]
        for mh in range(2): o+=[f"v_mul_f32 v{T+2*mh+1}, v{T+2*mh+1}, v{T+4+mh}"]
        for mh in range(2):
            m,sg,X=T+2*mh,T+2*mh+1,V_XE+4*mh
            o+=[f"v_cvt_pk_bf16_f32 v{T+6}, v{m}, v{m}",f"v_cvt_pk_bf16_f32 v{T+7}, v{sg}, v{sg}",
                f"v_lshlrev_b32 v{T+8}, 16, v{T+6}",f"v_lshlrev_b32 v{T+9}, 16, v{T+7}",
                f"v_sub_f32 v{T+8}, v{m}, v{T+8}",f"v_sub_f32 v{T+9}, v{sg}, v{T+9}",
                f"v_cvt_pk_bf16_f32 v{T+8}, v{T+8}, v{sg}",f"v_cvt_pk_bf16_f32 v{T+9}, v{T+9}, 0",
                f"v_cndmask_b32 v{X}, 0, v{T+6}, {SN}",f"v_cndmask_b32 v{X+1}, 0, v{T+8}, {SN}",f"v_cndmask_b32 v{X+2}, 0, v{T+9}, {SN}"]
        if p3:
            c0=-2*math.sqrt(2/math.pi)*LOG2E
            for mh in range(2):
                r=T+4+mh; L=V_LC+3*mh
                o+=[f"v_mul_f32 v{L}, {F(c0)}, v{r}",f"v_mul_f32 v{T+6}, v{r}, v{r}",f"v_mov_b32 v{L+2}, v{T+2*mh+1}",
                    f"v_mul_f32 v{T+6}, {F(0.044715)}, v{T+6}",f"v_mul_f32 v{L+1}, v{T+6}, v{L}"]
        else:
            for mh in range(2): o+=[f"v_mul_f32 v{T+46+mh}, {F(LOG2E)}, v{T+4+mh}"]
            o+=[f"v_and_b32 v{T+6}, 48, v{V_LANE}"]
            for mh in range(2):
                for r in range(4): o+=[f"ds_bpermute_b32 v{V_LC+4*mh+r}, v{T+6}, v{T+46+mh} offset:{4*r}"]
        return s+ins(o)
    def table_load(g,p3,T):
        s=ins([f"v_lshrrev_b32 v{T+16}, 4, v{V_LANE}",f"v_lshlrev_b32 v{T+18}, 14, v{T+16}",f"v_lshl_add_u32 v{T+18}, v{V_FALL}, 2, v{T+18}",f"v_add_u32 v{T+17}, v{V_FALL}, v{T+16}",
               f"s_lshl_b32 {S.T2}, {S.J}, 2",f"s_add_u32 {S.T2}, {S.T2}, {S.W}",f"s_lshl_b32 {S.T2}, {S.T2}, 8",f"s_add_u32 {S.T2}, {S.T2}, {WS_CS1 if p3 else WS_CSQ}"])
        for t in range(4):
            s.append(("vm",f"buffer_load_dwordx4 {v(T+4*t,4)}, v{T+18}, {WS}, {S.T2} offen {SC}"))
            if t<3: s.append(("i",f"s_add_u32 {S.T2}, {S.T2}, 65536"))
        if p3:
            s+=ins([f"v_lshlrev_b32 v{T+18}, 1, v{T+17}",f"s_lshl_b32 {S.T3}, {S.PAR}, 6",f"s_lshl_b32 {S.T2}, {S.W}, 7",f"s_add_u32 {S.T2}, {S.T2}, {S.T3}",
                    f"s_cmp_eq_u32 {S.T2}, 448\ns_cselect_b32 {S.T2}, -64, {S.T2}\ns_cselect_b32 {S.T3}, 32, 0",f"v_xor_b32 v{T+17}, {S.T3}, v{T+17}",
                    f"s_mul_i32 {S.T3}, {S.J}, 448",f"s_add_u32 {S.T2}, {S.T2}, {S.T3}"])
            s.append(("vm",f"buffer_load_ushort v{T+19}, v{T+18}, {B1}, {S.T2} offen",16))
        return s
    def table_make(g,p3,T,tk):
        o=[]
        for c in range(4): o+=[f"v_add_f32 v{T+c}, v{T+c}, v{T+4+c}",f"v_add_f32 v{T+8+c}, v{T+8+c}, v{T+12+c}"]
        for c in range(4): o+=[f"v_add_f32 v{T+c}, v{T+c}, v{T+8+c}"]
        o+=g.red4(T,T+1,T+2,T+3)
        o+=[f"v_cvt_pk_bf16_f32 v{T+5}, v{T}, 0",f"s_lshl_b32 {S.T2}, {S.W}, 10",f"v_lshlrev_b32 v{T+8}, 16, v{T+5}",f"v_sub_f32 v{T+8}, v{T}, v{T+8}",
            f"v_cvt_pk_bf16_f32 v{T+4}, v{T}, v{T+8}",f"s_add_u32 {S.T2}, {S.T2}, {L_EXT3 if p3 else L_EXT1}",f"v_mov_b32 v{T+7}, 0"]
        if p3: o+=[f"v_lshl_add_u32 v{T+5}, v{T+19}, 16, v{T+5}",f"v_mov_b32 v{T+6}, v{T+19}"]
        else: o+=[f"v_mov_b32 v{T+6}, 0"]
        o+=[f"v_lshl_add_u32 v{T+17}, v{T+17}, 4, {S.T2}"]
        return ins(o)+[("mem",lambda:tk.__setitem__("t",g.p(f"ds_write_b128 v{T+17}, {v(T+4,4)}")))]
    def run_list(g,l):
        for it in l:
            if it[0]=="i": g.p(it[1])
            elif it[0]=="vm": g.vm(it[1],it[2] if len(it)>2 else None)
            elif it[0] in("fn","mem"): it[1]()
    def rowaddr(g,J=S.J):
        T=V_T
        g.p(f"""v_lshlrev_b32 v{T+1}, 9, v{V_FALL}
v_and_b32 v{T+2}, 16, v{V_LANE}
v_lshl_add_u32 v{T+1}, v{T+2}, 1, v{T+1}
v_lshrrev_b32 v{T+2}, 5, v{V_LANE}
v_lshl_add_u32 v{T+1}, v{T+2}, 4, v{T+1}
s_lshl_b32 {S.T0}, {S.MBk}, 16
s_lshl_b32 {S.T1}, {J}, 7
s_add_u32 {S.T0}, {S.T0}, {S.T1}
s_add_u32 {S.T1}, {S.T0}, 32768""")
    def p0(g):
        p=g.p; o=g.o; T=V_T; ACC=V_ACC
        p.raw(f"{NAME}:")
        p(f"s_cmp_ge_u32 s2, 256\ns_cbranch_scc1 L_end")
        p("s_load_dwordx16 s[44:59], s[0:1], 0\ns_load_dwordx2 s[20:21], s[0:1], 80")
        p(f"v_lshrrev_b32 v{T}, 6, v0\nv_and_b32 v{V_LANE}, 63, v0\nv_readfirstlane_b32 {S.W}, v{T}\nv_lshlrev_b32 v{V_L16}, 4, v{V_LANE}\nv_mov_b32 v{V_TS}, 0")
        if o["xm"]==4: p(f"""s_and_b32 {S.PAR}, s2, 1
s_bfe_u32 {S.T0}, s2, 0x20001
s_bfe_u32 {S.T1}, s2, 0x20003
s_lshl_b32 {S.T0}, {S.T0}, 2
s_add_u32 {S.I}, {S.T0}, {S.T1}
s_lshr_b32 {S.T0}, s2, 5
s_lshl_b32 {S.T0}, {S.T0}, 1
s_add_u32 {S.J}, {S.T0}, {S.PAR}""")
        elif o["xm"]==2: p(f"""s_and_b32 {S.I}, s2, 15
s_lshr_b32 {S.J}, s2, 4
s_and_b32 {S.PAR}, {S.J}, 1""")
        elif o["xm"]==8: p(f"""s_and_b32 {S.PAR}, s2, 1
s_bfe_u32 {S.I}, s2, 0x40002
s_lshr_b32 {S.T0}, s2, 6
s_lshl_b32 {S.T0}, {S.T0}, 2
s_and_b32 {S.T1}, s2, 3
s_add_u32 {S.J}, {S.T0}, {S.T1}""")
        p(f"""s_lshl_b32 {S.MBk}, {S.I}, 2
s_add_u32 {S.MBk}, {S.MBk}, {S.W}""")
        g.stamp("start",True)
        p(f"s_lshl_b32 {S.T0}, {S.PAR}, 6\ns_add_u32 {S.T0}, {S.T0}, {S.MBk}\ns_lshl_b32 {S.T0}, {S.T0}, 7\ns_getpc_b64 s[6:7]"); p.raw("L_pc:")
        p(f"s_add_u32 {S.T0}, {S.T0}, L_tab-L_pc\ns_add_u32 s6, s6, {S.T0}\ns_addc_u32 s7, s7, 0")
        if o["cpf"]==1:
            p(f"s_getpc_b64 s[4:5]\ns_lshr_b32 {S.T2}, s2, 3\ns_lshl_b32 {S.T2}, {S.T2}, 2\ns_add_u32 {S.T2}, {S.T2}, {S.W}\ns_mul_i32 {S.T2}, {S.T2}, 1152\nv_min_u32 v{T+11}, 8, v{V_LANE}\nv_lshl_add_u32 v{T+11}, v{T+11}, 7, {S.T2}\nv_min_u32 v{T+11}, L_tab-L_pc, v{T+11}")
            g.vm(f"global_load_dword v{T+11}, v{T+11}, s[4:5]")
        tl=f"s_load_dwordx16 s[{S_TAB}:{S_TAB+15}], s[6:7], 0\ns_load_dwordx16 s[{S_TAB+16}:{S_TAB+31}], s[6:7], 64"
        if not o["nt0"]: p(tl)
        p(f"v_and_b32 v{T}, 15, v{V_LANE}\nv_lshlrev_b32 v{V_FALL}, 2, v{T}")
        JC,JX="s96","s97"
        p(f"s_lshl_b32 {JC}, {S.W}, 1\ns_xor_b32 {JC}, {JC}, {S.J}\ns_xor_b32 {JX}, {JC}, 1")
        PA,PB,PC,RT,RX=V_WF,V_WF+4,V_WF+8,V_WF+12,V_WF+16
        p(f"""s_lshl_b32 {S.T0}, {S.MBk}, 16
s_lshl_b32 {S.T1}, {JX}, 7
s_add_u32 {S.T0}, {S.T0}, {S.T1}
s_mul_i32 {S.LDSW}, {S.W}, 28672
v_lshrrev_b32 v{T+2}, 3, v{V_LANE}
v_and_b32 v{T+3}, 7, v{V_LANE}
v_and_b32 v{T+9}, 6, v{T+2}
v_xor_b32 v{T+3}, v{T+3}, v{T+9}
v_lshlrev_b32 v{T+3}, 4, v{T+3}
s_add_u32 m0, {S.LDSW}, 24576""")
        for pat,rs in((PC,R2),(PB,R1)):
            p(f"v_mul_u32_u24 v{pat}, {rs}, v{T+2}\nv_add_u32 v{pat}, v{pat}, v{T+3}")
            for q in range(1,4): p(f"v_add_u32 v{pat+q}, {q*(8*rs-1024)}, v{pat}")
        p(f"""s_mov_b32 s26, 0x400000
s_mov_b32 s27, 0x20000
s_mov_b32 s22, 0x10000000
s_mov_b32 s23, 0x20000""")
        p(f"v_mov_b32 v{T+4}, 0\nv_mov_b32 v{T+5}, 0\nv_mov_b32 v{T+6}, 0\nv_mov_b32 v{T+7}, 0\nv_min_u32 v{V_ONE}, 1, v{V_LANE}\nv_lshlrev_b32 v{V_ONE}, 30, v{V_ONE}")
        p.waitall(vm=False)
        p("s_mov_b64 s[24:25], s[44:45]\ns_mov_b64 s[4:5], s[46:47]\ns_mov_b64 s[8:9], s[48:49]\ns_mov_b64 s[12:13], s[52:53]\ns_mov_b64 s[28:29], s[54:55]\ns_mov_b64 s[16:17], s[56:57]\ns_mov_b64 s[100:101], s[58:59]")
        if o["nt0"]: p(tl)
        p(f"s_load_dword {S.EP}, {WSP}, {WS_EP}")
        for q in range(4): tx=g.vm(f"buffer_load_dwordx4 v{PC+q}, {TS}, {S.T0} offen offset:{q*1024} {o['xnt']} lds")
        p(f"""s_mov_b32 {S.T3}, {RQ}
s_cmp_eq_u32 {S.W}, 3
s_cselect_b32 s8, s8, s4
s_cselect_b32 s9, s9, s5
s_cselect_b32 {S.T3}, {R2}, {S.T3}
s_lshl_b32 s10, {S.T3}, 10
s_mov_b32 s11, 0x20000
s_mov_b32 s14, {1024*R1}
s_mov_b32 s15, 0x20000
s_mov_b32 s18, {3584*R2}
s_mov_b32 s19, 0x20000
s_mov_b32 s30, 7168
s_mov_b32 s31, 0x20000
v_mul_u32_u24 v{PA}, {S.T3}, v{T+2}
v_add_u32 v{PA}, v{PA}, v{T+3}
s_mul_i32 s98, {S.I}, {S.T3}
s_lshl_b32 s98, s98, 6
s_add_u32 {S.T2}, {S.W}, 1
s_cmp_lt_u32 {S.W}, 2
s_cselect_b32 {S.T2}, {S.T2}, 0
s_lshl_b32 {S.T2}, {S.T2}, 4
s_add_u32 {S.T2}, {S.T2}, {JC}
s_lshl_b32 {S.T2}, {S.T2}, 7
s_add_u32 s98, s98, {S.T2}
s_lshl_b32 {S.T2}, {S.T3}, 5
s_add_u32 s99, s98, {S.T2}
s_lshl_b32 {S.T3}, {S.T3}, 3
s_sub_u32 {S.T3}, {S.T3}, 1024
v_add_u32 v{PA+1}, {S.T3}, v{PA}
v_add_u32 v{PA+2}, {S.T3}, v{PA+1}
v_add_u32 v{PA+3}, {S.T3}, v{PA+2}
""")
        dt={}
        def rdma(r):
            p(f"s_add_u32 m0, {S.LDSW}, {r*4096}")
            for q in range(4): dt[r]=g.vm(f"buffer_load_dwordx4 v{(PA,PB,PC)[r//2]+q}, {(WO,W1,W2)[r//2]}, s{S_TAB+r if r>1 else 98+r} offen offset:{q*1024} {o['wnt']} lds")
        rdma(0); rdma(1)
        if o["cpf"]==2:
            p(f"s_getpc_b64 s[4:5]\ns_lshr_b32 {S.T2}, s2, 3\ns_lshl_b32 {S.T2}, {S.T2}, 2\ns_add_u32 {S.T2}, {S.T2}, {S.W}\ns_mul_i32 {S.T2}, {S.T2}, 1152\nv_min_u32 v{T+11}, 8, v{V_LANE}\nv_lshl_add_u32 v{T+11}, v{T+11}, 7, {S.T2}\nv_min_u32 v{T+11}, L_tab-L_pc, v{T+11}")
            g.vm(f"global_load_dword v{T+11}, v{T+11}, s[4:5]")
        p(f"""s_mul_i32 {S.KV}, {S.J}, {KVS}
s_add_u32 {S.KV}, {S.KV}, {WS_KV}
s_and_b32 {S.T0}, {S.MBk}, 31
s_min_u32 {S.T0}, {S.T0}, 16
s_lshl_b32 {S.T0}, {S.T0}, 9
s_lshr_b32 {S.T1}, {S.MBk}, 5
s_mul_i32 {S.T1}, {S.T1}, {16*KVS}
s_add_u32 {S.T0}, {S.T0}, {S.T1}
s_mul_i32 {S.T1}, {JC}, {KVS}
s_add_u32 {S.T0}, {S.T0}, {S.T1}
s_add_u32 {S.T0}, {S.T0}, {WS_KV}
v_lshlrev_b32 v{T+2}, 3, v{V_LANE}""")
        g.vm(f"buffer_store_dwordx2 {v(T+4,2)}, v{T+2}, {WS}, {S.T0} offen {SC}")
        p(f"s_mov_b32 s24, s100\ns_mov_b32 s25, s101\ns_mov_b32 s26, 2048\nv_lshlrev_b32 v{T+2}, 1, v{V_LANE}\ns_lshl_b32 {S.T0}, {S.J}, 7")
        g.vm(f"buffer_load_ushort v{T+8}, v{T+2}, {TS}, {S.T0} offen")
        p("s_load_dwordx2 s[24:25], s[0:1], 64\ns_mov_b32 s26, 0x400000")
        p(f"""v_lshrrev_b32 v{T+2}, 2, v{V_LANE}
v_and_b32 v{T+3}, 3, v{V_LANE}
v_lshlrev_b32 v{T+3}, 3, v{T+3}
v_lshl_add_u32 v{RT}, v{T+2}, 7, v{T+3}
v_and_b32 v{T+9}, 6, v{T+2}
v_lshl_add_u32 v{RT}, v{T+9}, 4, v{RT}
v_add_u32 v{RT}, {S.LDSW}, v{RT}""")
        for b in range(1,4): p(f"v_xor_b32 v{RT+b}, {32*b}, v{RT}")
        p(f"""v_lshrrev_b32 v{T+2}, 4, v{V_LANE}
v_lshlrev_b32 v{T+2}, 2, v{T+2}
v_lshl_add_u32 v{V_STAT}, v{T}, 4, v{T+2}
v_lshlrev_b32 v{V_EXT}, 4, v{T}
v_add_u32 v{V_EXT}, {L_EXT1}, v{V_EXT}
v_mov_b32 v{V_XE+3}, 0
v_mov_b32 v{V_XE+7}, 0
v_mov_b32 v{V_RD}, v{V_L16}
v_add_u32 v{V_RD+1}, 0x10000, v{V_L16}
s_mul_i32 {S.T0}, {S.J}, {WTS}
s_add_u32 {S.T0}, {S.T0}, {WS_WT}
s_lshl_b32 {S.T2}, {S.W}, 12
s_add_u32 {S.T2}, {S.T2}, {S.T0}
v_add_u32 v{V_WP}, {S.T2}, v{V_L16}
s_mul_i32 {S.T1}, {JC}, {WTS}
s_add_u32 {S.T1}, {S.T1}, {WS_WT}""")
        p.waitall(vm=False)
        p(f"s_lshr_b32 {S.T2}, {S.J}, 1\ns_mul_i32 {S.T3}, {S.T2}, 896\ns_lshr_b32 {S.T2}, {JC}, 1\ns_lshl_b32 {S.T2}, {S.T2}, 8")
        for r in range(2,6): p(f"s_add_u32 s{S_TAB+r}, s{S_TAB+r}, {S.T3 if r in(2,3) else S.T2}")
        for k in range(24): p(f"s_add_u32 s{S_TAB+8+k}, s{S_TAB+8+k}, {S.T0 if 8<=k<16 else S.T1}")
        p(f"""s_mov_b32 {S.TO}, 0x40000
s_mul_i32 {S.T2}, {S.MBk}, {65536+o["SK"]}
s_lshl_b32 {S.T3}, {S.PAR}, 15
s_sub_u32 {S.AW1}, 8192, {S.T3}
s_add_u32 {S.AW2}, 8192, {S.T3}
s_lshl_b32 {S.T3}, {S.PAR}, 14
s_add_u32 {S.U0}, {S.T2}, {S.T3}
v_add_u32 v{V_XP}, {S.U0}, v{V_L16}
s_xor_b32 {S.T3}, {S.T3}, 16384
s_add_u32 {S.XW}, {S.T2}, {S.T3}
s_lshr_b32 {S.T3}, {JX}, 1
s_lshl_b32 {S.T3}, {S.T3}, 11
s_add_u32 {S.XW}, {S.XW}, {S.T3}
s_mul_i32 {S.HW}, {S.MBk}, {229376+o["SK"]}
s_mul_i32 {S.T2}, {S.PAR}, 114688
s_add_u32 {S.HW}, {S.HW}, {S.T2}
v_add_u32 v{V_HP}, {S.HW}, v{V_L16}
s_lshr_b32 {S.T2}, {S.J}, 1
s_lshl_b32 {S.T2}, {S.T2}, 11
s_add_u32 {S.HW}, {S.HW}, {S.T2}
s_add_u32 {S.U0}, {S.U0}, {S.T2}
s_lshl_b32 {S.STP}, {S.MBk}, 12
s_add_u32 {S.STP}, {S.STP}, {WS_ST}
s_lshl_b32 {S.T2}, {S.MBk}, 4
s_add_u32 {S.T2}, {S.T2}, {S.J}
s_lshl_b32 {S.EXR}, {S.T2}, 12
s_add_u32 {S.EXR}, {S.EXR}, {WS_EX}
s_xor_b32 {S.EXW}, {S.EXR}, 4096
s_lshl_b32 {S.RF}, {S.MBk}, 8
s_lshl_b32 {S.T2}, {S.J}, 2
s_add_u32 {S.RFW}, {S.RF}, {S.T2}
s_xor_b32 {S.RFP}, {S.RFW}, 4
s_lshl_b32 {S.T2}, {S.PAR}, 2
s_add_u32 {S.RFH}, {S.RF}, {S.T2}
s_mov_b32 {S.ONE}, 1
s_mov_b64 {SN}, 0xffff
s_lshl_b32 {S.CF}, {S.J}, 2
s_add_u32 {S.CF}, {S.CF}, {S.W}
s_lshl_b32 {S.CF}, {S.CF}, 7
s_add_u32 {S.CF}, {S.CF}, {WS_COLF}
s_mov_b32 {S.C_EPS}, {F(1e-6*LOG2E)}
s_mov_b32 {S.C_LN2}, {F(LN2)}""")
        p(f"s_lshl_b32 {S.T0}, {S.J}, 14\ns_add_u32 {S.T0}, {S.T0}, {WS_SA-16384}\ns_cmp_eq_u32 {S.J}, 0\ns_cselect_b32 {S.T0}, 0, {S.T0}\ns_cmp_gt_u32 {S.J}, 3\ns_cselect_b32 {S.T0}, {OOB}, {S.T0}\ns_add_u32 {S.T0}, {S.T0}, {S.RF}\nv_lshlrev_b32 v{T+9}, 2, v{V_LANE}")
        g.vm(f"buffer_store_dword v{T+4}, v{T+9}, {WS}, {S.T0} offen {SC}")
        p(f"s_min_u32 {S.T0}, {S.I}, 1\ns_lshl_b32 {S.T0}, {S.T0}, 29\ns_lshl_b32 {S.T1}, {JC}, 2\ns_add_u32 {S.T1}, {S.T1}, {S.W}\ns_lshl_b32 {S.T1}, {S.T1}, 7\ns_add_u32 {S.T0}, {S.T0}, {S.T1}\ns_add_u32 {S.T0}, {S.T0}, {WS_COLF}")
        g.vm(f"buffer_store_dwordx4 {v(T+4,4)}, v{V_ONE}, {WS}, {S.T0} offen {SC}")
        if o["p0o"] in(1,2): rdma(2)
        p.waitall(vm=False)
        p(f"v_lshrrev_b32 v{T+2}, 4, v{V_LANE}\nv_lshlrev_b32 v{T+2}, 3, v{T+2}\nv_lshl_add_u32 v{RX}, v{T}, 7, v{T+2}\nv_and_b32 v{T+2}, 6, v{T}\nv_lshl_add_u32 v{RX}, v{T+2}, 4, v{RX}\nv_add_u32 v{RX}, {S.LDSW}, v{RX}")
        for b in range(1,4): p(f"v_xor_b32 v{RX+b}, {32*b}, v{RX}")
        p.wait(vm=tx)
        for nb in range(4):
            for mh in range(2): p(f"ds_read_b64 {v(V_RES+8*(nb>>1)+4*mh+2*(nb&1),2)}, v{RX+nb} offset:{24576+mh*2048}")
        g.stamp("p0x",True)
        g.run_list(g.pub_half(0,0,{})+g.pub_half(1,0,{},JX)); p(f"s_mov_b32 {S.XW}, {S.U0}")
        ON,CSD=T+12,ACC+32
        for i in range(4): p(f"v_mov_b32 v{ON+i}, 0x3f803f80")
        def proc(r):
            b=ACC+16*(r if r<2 else r+2); p.wait(vm=dt[r]); t=None
            for nb in range(4):
                for h in range(2): p(f"ds_read_b64_tr_b16 {v(b+4*nb+2*h,2)}, v{RT+nb} offset:{r*4096+h*2048}")
            for nb in range(4):
                x=f"buffer_store_dwordx4 {v(b+4*nb,4)}, v{V_L16}, {WS}, s{S_TAB+8+4*r+nb} offen"
                if r>=o["late"]: g.later.append(x)
                else: t=g.vm(x+" sc1")
            if r<4:
                for nb in range(4): p(f"{MF} {v(CSD+4*nb,4)}, {v(ON,4)}, {v(b+4*nb,4)}, {v(CSD+4*nb,4) if r&1 else '0'}")
            if r in(1,3):
                p(f"s_lshl_b32 {S.T0}, {S.I}, 6\ns_lshl_b32 {S.T1}, {S.J if r==3 else JC}, 2\ns_add_u32 {S.T0}, {S.T0}, {S.T1}\ns_add_u32 {S.T0}, {S.T0}, {S.W}\ns_lshl_b32 {S.T0}, {S.T0}, 8\ns_add_u32 {S.T0}, {S.T0}, {WS_CS1 if r==3 else WS_CSQ}\nv_lshlrev_b32 v{T+9}, 2, v{V_LANE}")
                for nb in range(1,4): p(f"v_mov_b32_dpp v{CSD}, v{CSD+4*nb} quad_perm:[0,1,2,3] row_mask:{hex(1<<nb)} bank_mask:0xf")
                t=g.vm(f"buffer_store_dword v{CSD}, v{T+9}, {WS}, {S.T0} offen {SC}",16)
            return t
        FW,FR,X2=T+16,T+17,T+2
        p(f"""s_lshl_b32 {S.T0}, {S.MBk}, 4
s_add_u32 {S.T0}, {S.T0}, {S.J}
s_lshl_b32 {S.T1}, {JC}, 2
s_add_u32 {S.T1}, {S.T1}, {S.W}
s_lshl_b32 {S.T1}, {S.T1}, 4
s_add_u32 {S.T1}, {S.T1}, {S.I}
s_add_u32 {S.T1}, {S.T1}, 1024
v_mov_b32 v{FW}, {OOB>>3}
v_writelane_b32 v{FW}, {S.T0}, 0
v_writelane_b32 v{FW}, {S.T1}, 1
v_lshlrev_b32 v{FW}, 3, v{FW}
s_lshl_b32 {S.T0}, {S.MBk}, 7
s_lshl_b32 {S.T1}, {S.J}, 2
s_add_u32 {S.T1}, {S.T1}, {S.W}
s_lshl_b32 {S.T1}, {S.T1}, 7
s_add_u32 {S.T1}, {S.T1}, 8192
v_lshl_add_u32 v{FR}, v{V_FALL}, 1, {S.T0}
v_lshl_add_u32 v{X2}, v{V_FALL}, 1, {S.T1}
v_mov_b32_dpp v{FR}, v{X2} quad_perm:[0,1,2,3] row_mask:0xa bank_mask:0xf
s_mov_b32 {S.T3}, {WS_F0}
s_add_u32 {S.EP}, {S.EP}, 0x9e3779b9
v_mov_b32 v{X2}, {S.EP}""")
        if o["p0o"]==0: proc(0); tkc=proc(1); rdma(2); rdma(3)
        elif o["p0o"]==1: proc(0); rdma(3); tkc=proc(1); rdma(4)
        elif o["p0o"]==2: rdma(3); proc(0); tkc=proc(1); rdma(4); rdma(5)
        elif o["p0o"]==3: proc(0); tkc=proc(1)
        else: proc(0); tkc=proc(1); rdma(2)
        p(f"v_lshlrev_b32 v{T+8}, 16, v{T+8}\nv_add_u32 v{T+10}, {L_B2}, v{T+9}\nds_write_b32 v{T+10}, v{T+8}")
        if o["p0o"]==1: proc(2); rdma(5)
        elif o["p0o"]==2: proc(2); proc(3)
        p.wait(vm=tkc)
        g.vm(f"buffer_store_dword v{X2}, v{FW}, {WS}, {S.T3} offen {SC}",8); g.stamp("p0arr",True)
        if o["p0o"]==0: rdma(4); proc(2); rdma(5); proc(3)
        elif o["p0o"]==1: proc(3)
        elif o["p0o"]==3: rdma(2); rdma(3); rdma(4); rdma(5); proc(2); proc(3)
        elif o["p0o"]==4: rdma(3); rdma(4); proc(2); rdma(5); proc(3)
        pl=f"s_mov_b32 exec_hi, 0\nv_mov_b32 v{V_FLG}, 0\nbuffer_atomic_add v{V_FLG}, v{FR}, {WS}, {S.T3} offen sc0 sc1\ns_mov_b32 exec_hi, -1"
        proc(4); p(pl); proc(5); g.stamp("p0til",True)
        rf=f"v_cmp_ne_u32 {SM}, {S.EP}, v{V_FLG}\ns_nop 0\ns_cmp_lg_u32 s100, 0\ns_cbranch_scc1 L_slowx"
        p(rf); p.raw("L_backx:")
        g.slow.append(f"L_slowx:\n{pl}\ns_sub_u32 {S.TO}, {S.TO}, 1\ns_cbranch_scc1 L_end\ns_waitcnt vmcnt(0)\n{rf}\ns_branch L_backx")
        p.waitall(vm=False); p(f"s_lshl_b32 {S.LDSW}, {S.W}, 12\ns_barrier")
        g.stamp("p1start",True); g.pump(o["pre0"])
        if o["ipf"]:
            p(f"s_lshr_b32 s6, s2, 3\ns_lshl_b32 s6, s6, 2\ns_add_u32 s6, s6, {S.W}\ns_lshl_b32 s6, s6, 7\ns_add_u32 s6, s6, {o.get('ipo',6144)}\nv_mov_b32 v{V_CP}, s6")
        g.t=0; g.free_at=o["pre0"]*o["COST"]
    def build(g):
        p=g.p; o=g.o; T=V_T; g.p0()
        U=[]; Aq=[]; bulk=[]; row=[]; col=[]; qt=[]; marks=[]; pan=[]
        z0=lambda ks,b:"0" if ks==0 else None
        aB=lambda bases:(lambda b:(bases[b>>1]+4*(b&1),bases[b>>1]+8+4*(b&1)))
        def phi(x,r,d):
            return wave([lambda e:f"v_mul_f32 v{x[e]}, v{x[e]}, v{r[e]}",lambda e:f"v_exp_f32 v{T+e%4}, v{x[e]} clamp",lambda e:f"v_max_f32 v{x[e]}, {S.C_EPS}, v{x[e]}",
                         lambda e:f"v_fma_f32 v{x[e]}, v{x[e]}, {S.C_LN2}, v{T+e%4}"],len(x),lambda e:[f"v_cvt_pk_bf16_f32 v{d+e//2}, v{x[e-1]}, v{x[e]}"] if e&1 else [])
        sev=lambda nm:(lambda ks:f"{nm}s{ks>>4}r")
        for it in range(2):
            B=lambda x:V_ACC+16*((x+4*it)%8); tk={}; first=it==0; xi=2*it
            key=f"x{xi}"; g.panel(key,32); pan.append((key,32,V_XP,WS_X+xi*XB,(lambda ks:None) if first else sev(key)))
            aK=lambda nb:(B(2*((nb>>1)&1)+(nb>>2))+8*(nb&1),B(2*((nb>>1)&1)+(nb>>2))+8*(nb&1)+4)
            aQ=aB([0]*4+[B(4),B(5)]); ev=f"st1_{it}"; n0=len(U); L1=o["L1"]
            d=g.stair(U,"q",key,32,[("k0",(0,1),L1[0]),("v0",(4,5),L1[1]),("k1",(2,3),L1[2]),("v1",(6,7),L1[3])],aK,True,z0,(o["KX"],[g.ext(256*b,aK(b),True,False,ev) for b in range(8)]))
            U[n0]["stamp"]=f"p1s{it}"
            if it: U[n0]["pre"]="fin0_0"
            marks+=[(n0,"vp0"),(d["k0"]+1,"vp1"),(len(U),"vpq")]; nq=len(U)
            U+=[g.ext(256*b,aQ(b),False,True,ev) for b in range(8,12)]; U[nq]["stamp"]=f"p1q{it}"
            d.update(g.stair(U,"q",key,32,[("q0",(8,9),0),("q1",(10,11),o["LQ"])],aQ))
            if first:
                bulk+=g.side_stats(False,xi,g.table_load(False,T+16)+[("delay",700)])+g.table_make(False,T+16,tk)
                bulk+=[("delay",150),("fn",lambda tk=tk:(p.wait(lg=tk["t"]),g.barrier()))]
            else: bulk+=[("wait",key+"s1r")]+g.side_stats(False,xi,[("delay",o["sd"])])
            bulk+=[("ev",ev)]
            if first:
                if len(g.later)<=8: row.append(("ev","lt0"))
                for k,x in enumerate(g.later):
                    row+=[("at",o["lt"][0]+k*o["lt"][1]),("mem",lambda x=x:g.gstore([x]))]
                    if k==len(g.later)-9: row.append(("ev","lt0"))
                row+=[("ev","lt0"),("ev","lt1")]; U[nq]["pre"]="lt0"
            FR,PQ,KD,ZD,ON,RC,L2E,AW,ARK,ARV,VAT,VAZ,VLD,VLZ=T+8,T+16,T+24,T+28,T+32,T+36,T+38,T+39,T+40,T+41,T+42,T+43,T+44,T+45
            kvo=it*16*KVS
            bulk+=ins([f"s_add_u32 {S.T0}, {S.LDSW}, {L_SCR}",f"v_add_u32 v{AW}, {S.T0}, v{V_L16}",f"s_lshr_b32 {S.T0}, {S.W}, 1",f"s_and_b32 {S.T1}, {S.W}, 1",
                       f"s_lshl_b32 {S.T2}, {S.T0}, 10",f"s_add_u32 {S.T3}, {S.T2}, {L_SCR}",f"v_add_u32 v{ARK}, {S.T3}, v{V_L16}",
                       f"s_lshl_b32 {S.T3}, {S.T1}, 10",f"s_add_u32 {S.T3}, {S.T3}, {L_SCR+2048}",f"v_add_u32 v{ARV}, {S.T3}, v{V_L16}",
                       f"v_and_b32 v{VLZ}, 48, v{V_LANE}",f"v_lshl_add_u32 v{VLD}, v{V_FALL}, 4, v{VLZ}",
                       f"v_lshl_add_u32 v{VAZ}, v{VLZ}, 25, v{V_FALL}",f"v_lshl_add_u32 v{VAT}, v{VLZ}, 4, v{V_FALL}",
                       f"s_lshl_b32 {S.T3}, {S.T1}, 11",f"s_add_u32 {S.T2}, {S.T2}, {S.T3}",f"v_add_u32 v{VAT}, {S.T2}, v{VAT}",
                       f"s_lshl_b32 {S.T0}, {S.T0}, 6",f"s_lshl_b32 {S.T1}, {S.T1}, 28",f"s_add_u32 {S.T0}, {S.T0}, {S.T1}",f"v_add_u32 v{VAZ}, {S.T0}, v{VAZ}",
                       f"v_mov_b32 v{L2E}, {F(LOG2E)}"]+[f"v_mov_b32 v{ON+i}, 0x3f803f80" for i in range(4)])
            for h in range(2):
                KF,VF=B(2*h),B(2*h+1)
                bulk+=[("at",d[f"k{h}"]+1)]
                bulk+=ins(phi([KF+e for e in range(16)],[V_LC+e%8 for e in range(16)],FR))
                if h: bulk.append(("fn",g.barrier))
                for b in range(2): bulk+=[("i",f"ds_write_b128 v{AW}, {v(FR+4*b,4)} offset:{b*1024}"),("delay",o["wp"])]
                bulk+=ins([f"s_add_u32 {S.T0}, {S.KV}, {kvo+h*4096}",f"s_add_u32 {S.T1}, {S.KV}, {kvo+8192+h*128}"])+[("at",d[f"v{h}"]+1)]
                for b in range(2):
                    x=[VF+8*b+i for i in range(8)]
                    bulk+=ins([f"v_mul_f32 v{x[i]}, v{x[i]}, v{V_LC+i}" for i in range(8)]+[f"v_cvt_pk_bf16_f32 v{FR+4*b+i}, v{x[2*i]}, v{x[2*i+1]}" for i in range(4)])
                    bulk.append(("mem",lambda b=b,tk=tk:tk.__setitem__(0,p(f"ds_write_b128 v{AW}, {v(FR+4*b,4)} offset:{2048+b*1024}"))))
                bulk+=[("delay",o["l1"]),("fn",lambda tk=tk:(p.wait(lg=tk[0]),g.barrier()))]
                for sw in range(4): bulk+=ins([f"ds_read_b128 {v(KF+4*sw,4)}, v{ARK} offset:{sw*4096}",f"ds_read_b128 {v(VF+4*sw,4)}, v{ARV} offset:{sw*4096}"])+[("delay",o["rp"])]
                bulk+=[("delay",o["l2"])]
                for sw in range(4): bulk+=ins([f"{MF} {v(KD,4)}, {v(VF+4*sw,4)}, {v(KF+4*sw,4)}, {'0' if sw==0 else v(KD,4)}",f"{MF} {v(ZD,4)}, {v(ON,4)}, {v(KF+4*sw,4)}, {'0' if sw==0 else v(ZD,4)}"])
                bulk+=[("delay",80)]+([("wait","lt1")] if h else [])
                for r in range(4): bulk.append(("mem",lambda r=r:g.vm(f"buffer_atomic_add_f32 v{KD+r}, v{VAT}, {WS}, {S.T0} offen offset:{r*64} sc1",24)))
                bulk+=[("mem",lambda h=h,tk=tk:tk.__setitem__(("kv",h),g.vm(f"buffer_atomic_add_f32 v{ZD}, v{VAZ}, {WS}, {S.T1} offen sc1",16))),("ev",f"kva{it}{h}")]
                co=8*it+4*h
                col+=ins([f"s_add_u32 {S.U0}, {S.KV}, {kvo+h*4096}",f"s_add_u32 {S.U1}, {S.KV}, {kvo+8192+h*128}"])
                col+=g.stage(S.PC,f"kva{it}{h}",S.CF,S.CF,co,tk,("kv",h),16,(o["kvd1"],o["kvd2"],o["kvd3"]),lambda nm=f"kv{it}{h}":(g.barrier(),g.stamp(nm)))
                for e in range(2):
                    for dh in range(2): col.append(("mem",lambda r=KF+8*e+4*dh,of=e*2048+dh*1024:g.vm(f"buffer_load_dwordx4 {v(r,4)}, v{VLD}, {WS}, {S.U0} offen offset:{of} {SC}",o["kvc"]))); col.append(("delay",o["kvp"]))
                for dh in range(2): col.append(("mem",lambda r=KF+16+4*dh,of=dh*64:g.vm(f"buffer_load_dwordx4 {v(r,4)}, v{VLZ}, {WS}, {S.U1} offen offset:{of} {SC}",16)))
                col+=[("ev",f"kvl{it}{h}")]
            if first:
                bulk+=ins([f"s_add_u32 {S.T0}, {S.XW}, {WS_X}",f"s_add_u32 {S.T1}, {S.XW}, {WS_X+32768}"])
                bulk+=[("vm",f"buffer_load_dwordx4 {v(V_RES+4*k,4)}, v{V_L16}, {WS}, {S.T1 if k>1 else S.T0} offen offset:{(k&1)*1024} {SC}") for k in range(4)]+[("delay",600)]
            for k in range(16): bulk+=ins([f"v_lshlrev_b32 v{B(6)+2*k}, 16, v{V_RES+k}",f"v_and_b32 v{B(6)+2*k+1}, 0xffff0000, v{V_RES+k}"])
            bulk+=[("ev",f"ci2_{it}")]
            for h in range(2):
                KR=B(2*h); Q=B(4+h); DN=KR+24
                bulk+=[("at",d[f"q{h}"]+(h==0))]
                bulk+=ins(phi([Q+e for e in range(16)],[T+46+e//8 for e in range(16)],PQ))
                bulk+=[("i",f"s_add_u32 {S.T0}, {S.XW}, {WS_O+it*XB+h*32768}"),("wait",f"kvl{it}{h}"),("since",f"kvl{it}{h}",o["kvd4"])]
                for e in range(3): bulk+=ins([f"v_cvt_pk_bf16_f32 v{KR+8*e+i}, v{KR+8*e+2*i}, v{KR+8*e+2*i+1}" for i in range(4)])
                for e in(2,0,1):
                    for mh in range(2): bulk.append(("i",f"{MF} {v(DN+4*mh if e==2 else Q+8*mh+4*e,4)}, {v(KR+8*e,4)}, {v(PQ+4*mh,4)}, 0"))
                bulk+=ins([f"v_fma_f32 v{RC+mh}, v{DN+4*mh}, v{L2E}, {S.C_EPS}" for mh in range(2)]+[f"v_rcp_f32 v{RC+mh}, v{RC+mh}" for mh in range(2)])
                for mh in range(2): bulk+=ins([f"v_mul_f32 v{Q+8*mh+i}, v{Q+8*mh+i}, v{RC+mh}" for i in range(8)]+[f"v_cvt_pk_bf16_f32 v{DN+4*mh+i}, v{Q+8*mh+2*i}, v{Q+8*mh+2*i+1}" for i in range(4)])
                bulk+=[("mem",lambda h=h,tk=tk,DN=DN:tk.__setitem__(("o",h),g.gstore([f"buffer_store_dwordx4 {v(DN+4*mh,4)}, v{V_L16}, {WS}, {S.T0} offen offset:{mh*1024}" for mh in range(2)]))),("ev",f"o{it}s{h}")]
                if h==0 and "o" in o["qw"]: qt+=[("at",d["q0"]+o["qo"]),("quiet",1),("wait",f"o{it}s0"),("quiet",-1)]
                row+=g.rowstage(f"o{it}s{h}",24*it+4*h,tk,("o",h))
            key=f"o{it}"; g.panel(key,32); pan.append((key,32,V_XP,WS_O+it*XB,sev(key))); n0=len(U); marks.append((n0,"vp2"))
            d=g.stair(U,"o",key,32,[(0,(0,1),0),(1,(2,3),o["L2"])],aB([B(6),B(7)])); U[n0]["pre"]=f"ci2_{it}"; U[n0]["stamp"]=f"p2s{it}"
            if first: bulk+=g.table_load(True,T+8)+[("delay",700)]+g.table_make(True,T+8,tk)+[("delay",150),("fn",lambda tk=tk:(p.wait(lg=tk["t"]),g.barrier()))]
            for k2 in range(2):
                bulk+=[("at",d[k2]+(k2==0))]+ins([f"v_cvt_pk_bf16_f32 v{V_RES+k}, v{B(6)+2*k}, v{B(6)+2*k+1}" for k in range(8*k2,8*k2+8)])+g.pub_half(k2,xi+1,tk)
                if k2==0 and "x" in o["qw"]: qt+=[("at",d[0]-o["qn"]),("quiet",1),("wait",f"x{xi+1}s0"),("quiet",-1)]
                row+=g.rowstage(f"x{xi+1}s{k2}",24*it+8+4*k2,tk,("x",k2))
            key=f"x{xi+1}"; g.panel(key,32); pan.append((key,32,V_XP,WS_X+(xi+1)*XB,sev(key))); n0=len(U); ev=f"st3_{it}"
            a3=aB([B(b) for b in range(7)]); L3=o["L3"]; b0=len(L3)
            done=g.stair(U,"1",key,32,[(b,(2*b,2*b+1),L3[b]) for b in range(b0)],a3,first=z0,mid=(min(28,32-max(L3)),[g.ext(4096+256*b,a3(b),False,False,ev) for b in range(2*b0)]))
            U[n0]["stamp"]=f"p3s{it}"; U[n0]["pre"]=f"o{it}s1"; marks+=[(n0,"vp0"),(done[0]+1,"vp3")]; nb_=len(U)
            for nb in o["G3"]:
                U+=[g.ext(4096+256*b,a3(b),False,True,ev) for b in range(2*b0,2*(b0+nb))]
                done.update(g.stair(U,"1",key,32,[(b,(2*b,2*b+1),0) for b in range(b0,b0+nb)],a3)); b0+=nb
            assert b0==7; U[nb_]["stamp"]=f"p3b{it}"
            key=f"h{it}"; g.panel(key,56); FB=o["FB"]; L4=o["L4"]
            pan.append((key,56,V_HP,WS_H+it*HB,lambda ks,it=it:"hf%d_%d"%(it,min(i for i,x in enumerate(FB) if ks//8<x))))
            KB=[B(7),B(0)]; SB=[B(1),B(2)]; RX=B(3); B2R=T+16; n0=len(U)
            d=g.stair(U,"2",key,56,[("S0",(4,5),L4[2]),("S1",(6,7),L4[3]),("K0",(0,1),L4[0]),("K1",(2,3),L4[1])],aB(KB+SB),first=lambda ks,b:(None if ks or b<4 else "0"))
            U[n0]["pre"]=f"e3_{it}"; U[n0]["stamp"]=f"p4s{it}"; U[d["S0"]+1]["stamp"]=f"p4k{it}"; marks+=[(n0,"vp4"),(d["S0"]+1,"vp5")]
            bulk+=[("wait",f"x{xi+1}s1r")]+g.side_stats(True,xi+1,[("delay",o["sd"])])+[("ev",ev)]
            bulk+=ins([f"v_and_b32 v{T}, 48, v{V_LANE}",f"v_add_u32 v{T}, {L_B2}, v{T}"]+[f"ds_read_b128 {v(B2R+4*b,4)}, v{T} offset:{64*b}" for b in range(4)])
            def cinit(k2):
                l=[]
                for k in range(8):
                    dd=KB[k2]+2*k; bb=B2R+8*k2+(2*k)%8
                    l+=[f"v_lshlrev_b32 v{dd}, 16, v{V_RES+8*k2+k}",f"v_and_b32 v{dd+1}, 0xffff0000, v{V_RES+8*k2+k}",f"v_add_f32 v{dd}, v{dd}, v{bb}",f"v_add_f32 v{dd+1}, v{dd+1}, v{bb+1}"]
                return ins(l)
            bulk+=[("delay",100)]+cinit(0); batch=[]
            for b in range(7):
                bulk.append(("at",done[b]+1))
                X=B(b); t=lambda e:T+e%8; L=lambda e:V_LC+3*(e//8); O0=T+32+8*(b&1)
                bulk+=ins(wave([lambda e:f"v_mul_f32 v{t(e)}, v{X+e}, v{X+e}",lambda e:f"v_fma_f32 v{t(e)}, v{t(e)}, v{L(e)+1}, v{L(e)}",lambda e:f"v_mul_f32 v{t(e)}, v{t(e)}, v{X+e}",
                                lambda e:f"v_exp_f32 v{t(e)}, v{t(e)}",lambda e:f"v_fma_f32 v{t(e)}, v{t(e)}, v{L(e)+2}, v{L(e)+2}",lambda e:f"v_rcp_f32 v{t(e)}, v{t(e)}",
                                lambda e:f"v_mul_f32 v{X+e}, v{t(e)}, v{X+e}"],16,lambda e:[f"v_cvt_pk_bf16_f32 v{O0+e//2}, v{X+e-1}, v{X+e}"] if e&1 else []))
                for mh in range(2):
                    Oo=O0+4*mh
                    batch.append((Oo,b,mh))
                    if len(batch)>=o["HBT"] or (mh and b+1 in FB):
                        for bb in sorted({x[1] for x in batch}): bulk.append(("i",f"s_add_u32 {S.T0 if bb&1 else S.T1}, {S.HW}, {WS_H+it*HB+bb*16384}"))
                        bulk.append(("mem",lambda b=b,batch=batch,tk=tk:tk.__setitem__(("h",b),g.gstore([f"buffer_store_dwordx4 {v(r,4)}, v{V_L16}, {WS}, {S.T0 if bb&1 else S.T1} offen offset:{m*1024}" for r,bb,m in batch]))))
                        batch=[]
                if b+1 in FB:
                    bulk.append(("ev",f"hs{it}{b}"))
                    (col if b&1 else row).extend(g.stage(S.PC if b&1 else S.PR,f"hs{it}{b}",S.RFH,S.RFH,128+8*(7*it+b),tk,("h",b),8,(o["hd1"],o["hd2"],o["hd3"]))+[("ev",f"hf{it}_{FB.index(b+1)}")])
                if b==0: bulk+=cinit(1)
                if b==2: bulk.append(("ev",f"e3_{it}"))
            for k2 in range(2):
                bulk+=[("i",f"s_add_u32 {S.T0}, {S.EXW}, {it*4*MB}"),("at",d[f"S{k2}"]+1)]+ins([f"v_cvt_pk_bf16_f32 v{RX+8*k2+k}, v{SB[k2]+2*k}, v{SB[k2]+2*k+1}" for k in range(8)])
                bulk+=[("mem",lambda k2=k2,tk=tk,RX=RX:tk.__setitem__(("e",k2),g.gstore([f"buffer_store_dwordx4 {v(RX+8*k2+4*m,4)}, v{V_L16}, {WS}, {S.T0} offen offset:{(2*k2+m)*1024}" for m in range(2)]))),("ev",f"es{it}{k2}")]
                if o["ex1"]:
                    if k2: col+=[("i",f"s_add_u32 {S.U0}, {S.EXR}, {it*4*MB}")]+g.stage(S.PC,f"es{it}1",S.RFW,S.RFP,64,tk,("e",1),it+1,(o["exd1"],o["exd2"],o["exd3"]))+[("mem",lambda r=RX+4*m,of=m*1024:g.vm(f"buffer_load_dwordx4 {v(r,4)}, v{V_L16}, {WS}, {S.U0} offen offset:{of} {SC}")) for m in range(4)]+[("ev",f"el{it}0"),("ev",f"el{it}1")]
                    continue
                col+=[("i",f"s_add_u32 {S.U0}, {S.EXR}, {it*4*MB}")]+g.stage(S.PC,f"es{it}{k2}",S.RFW,S.RFP,64,tk,("e",k2),2*it+k2+1,(o["exd1"],o["exd2"],o["exd3"]),lambda nm=f"ex{it}{k2}":g.stamp(nm))
                col+=[("mem",lambda r=RX+8*k2+4*m,of=(2*k2+m)*1024:g.vm(f"buffer_load_dwordx4 {v(r,4)}, v{V_L16}, {WS}, {S.U0} offen offset:{of} {SC}")) for m in range(2)]+[("ev",f"el{it}{k2}")]
            if "e" in o["qw"]: qt+=[("at",d["S0"]-o["qn"]),("quiet",1),("wait",f"es{it}0"),("quiet",-1)]
            if "y" in o["qw"] and it==0: qt+=[("wait","el00"),("quiet",1),("wait","x2s0"),("quiet",-1)]
            if it: bulk.append(("fn",g.rowaddr))
            for k2 in range(2):
                bulk+=[("wait",f"el{it}{k2}"),("since",f"el{it}{k2}",o["exd4"])]
                for k in range(8): bulk+=ins([f"v_lshlrev_b32 v{SB[k2]+2*k}, 16, v{RX+8*k2+k}",f"v_and_b32 v{SB[k2]+2*k+1}, 0xffff0000, v{RX+8*k2+k}"])
                bulk+=[("at",d[f"K{k2}"]+(k2==0))]
                for k in range(8): bulk+=ins([f"v_add_f32 v{KB[k2]+2*k}, v{KB[k2]+2*k}, v{SB[k2]+2*k}",f"v_add_f32 v{KB[k2]+2*k+1}, v{KB[k2]+2*k+1}, v{SB[k2]+2*k+1}",
                                              f"v_cvt_pk_bf16_f32 v{V_RES+8*k2+k}, v{KB[k2]+2*k}, v{KB[k2]+2*k+1}"])
                bulk+=[("ev",f"fin{it}_{k2}")]
                if it==0: bulk+=g.pub_half(k2,2,tk); row+=g.rowstage(f"x2s{k2}",16+4*k2,tk,("x",k2))
                else:
                    for k in(2*k2,2*k2+1):
                        bulk+=ins([f"v_permlane16_swap_b32 v{V_RES+4*k}, v{V_RES+4*k+2}",f"v_permlane16_swap_b32 v{V_RES+4*k+1}, v{V_RES+4*k+3}"])
                        bulk+=[("mem",lambda k=k:g.vm(f"buffer_store_dwordx4 {v(V_RES+4*k,4)}, v{T+1}, {TS}, {S.T1 if k&1 else S.T0} offen offset:{64*(k>>1)} {o['osc'] if k<o['oscn'] else ''}"))]
            assert g.nu==NSL*16*(it+1)
        lastuse={}
        for n,u in enumerate(U):
            if u["akey"]: lastuse[g.kbase[u["akey"][0]]+u["akey"][1]]=n
        for key,n,vb,off,ev in pan: Aq+=g.aloads(key,n,vb,off,lambda k:(lambda n:k<32 or n>=lastuse[k-32]),ev)
        vp=[0]*len(U)
        for (n,nm),(m,_) in zip(marks,marks[1:]+[(len(U),0)]): vp[n:m]=[o[nm]]*(m-n)
        g.stream(U,Aq,[qt,row,col,bulk],lambda n:vp[n])
        assert not(row or col or bulk),(row[:2],col[:2],bulk[:2])
        p(f"s_add_u32 {S.T2}, s2, {S.W}\ns_min_u32 {S.T2}, {S.T2}, 1\ns_lshl_b32 {S.T2}, {S.T2}, 30\ns_add_u32 {S.T2}, {S.T2}, {WS_EP}\nv_mov_b32 v{V_FLG}, {S.EP}")
        p(f"buffer_store_dword v{V_FLG}, v{V_ONE}, {WS}, {S.T2} offen")
        return g.finish()
    def table(g):
        rows=[]; P=lambda m,ks,nb:g.pos[(m,ks,nb)]*1024
        for par in range(2):
            for mb in range(64):
                i,w=divmod(mb,4); src=[]; pos=[]
                for r in range(2):
                    ks=2*i+r; kp=r*16+((i&1)^par)*8+(i>>1)
                    if w<3: src.append(ks*32*RQ+(2048,4096,0)[w]+128*par); pos+=[P("q",kp,4*w+nb) for nb in range(4)]
                    else: src.append(ks*32*R2+128*par); pos+=[P("o",kp,nb) for nb in range(4)]
                for r in range(2):
                    ks=2*i+r; kp=r*16+((i&1)^par)*8+(i>>1)
                    if w<3: src.append(ks*32*R1+512*par+128*w); pos+=[P("1",kp,4*w+nb) for nb in range(4)]
                    else: src.append(ks*32*R1+384); pos+=[P("1",kp,12+(nb&1)) if nb>>1==par else OOB for nb in range(4)]
                for r in range(2):
                    q=7*i+min(2*w+r,6); ks,pr=divmod(q,2); b,jj=divmod(ks,8)
                    row=448*jj+224*par+((32+32*b if b<6 else 0) if par else 32*b)
                    src.append(row*R2+128*(pr^par) if 2*w+r<7 else OOB); pos+=[P("2",ks,4*pr+nb) if 2*w+r<7 else OOB for nb in range(4)]
                rows.append(src+[0,0]+pos)
        return ".p2align 7\n.type L_tab,@object\nL_tab:\n"+"".join(".long "+",".join(map(str,r))+"\n" for r in rows)
    def finish(g):
        p=g.p
        if g.o["prof"]:
            p.waitall(); g.stamp("end"); g.flush_stamps()
            p(f"s_lshl_b32 {S.T0}, s2, 2\ns_add_u32 {S.T0}, {S.T0}, {S.W}\ns_lshl_b32 {S.T0}, {S.T0}, 8\ns_add_u32 {S.T0}, {S.T0}, {WS_TS}\nv_lshlrev_b32 v{V_T}, 2, v{V_LANE}")
            p(f"buffer_store_dword v{V_TS}, v{V_T}, {WS}, {S.T0} offen")
            if g.o.get("dbg"):
                p("s_load_dwordx2 s[96:97], s[0:1], 72\ns_mov_b32 s98, 256\ns_mov_b32 s99, 0x20000"); p.waitall()
                sel=[0,0]+[g.names.index(n) for n in g.o["dbg"]]
                for k,l in enumerate(sel[1:],1):
                    p(f"v_readlane_b32 {S.T1}, v{V_TS}, {l}")
                    if k==1: p(f"s_not_b32 {S.T1}, {S.T1}")
                    p(f"v_writelane_b32 v{V_T+1}, {S.T1}, {k}")
                p(f"s_cmp_lg_u32 {S.W}, 0\ns_cbranch_scc1 L_end\ns_mov_b64 exec, {hex((1<<len(sel))-2)}\nbuffer_atomic_umax v{V_T+1}, v{V_T}, s[96:99], 0 offen sc1")
        p.raw("s_endpgm")
        p.out[p.out.index("@ISLAND@")]="s_branch L_over\nL_end:\ns_endpgm\n"+"\n".join(g.slow)+"\nL_over:"
        p.raw(g.table())
        hdr=open("cdna_kernels/"+NAME[:-7]+".s.ref").read().split("; Override")[0]
        hdr+=f"; @launch grid=(256,1,1) block=(256,1,1) lds={LDS_BYTES}\n"
        hdr+=f'.amdgcn_target "amdgcn-amd-amdhsa--gfx950"\n.text\n.globl {NAME}\n.p2align 8\n.type {NAME},@function\n'
        kd=f""".section .rodata,"a"
.p2align 6
.amdhsa_kernel {NAME}
  .amdhsa_next_free_vgpr 512
  .amdhsa_next_free_sgpr 102
  .amdhsa_accum_offset 256
  .amdhsa_group_segment_fixed_size 0
  .amdhsa_kernarg_size 88
  .amdhsa_user_sgpr_count 2
  .amdhsa_user_sgpr_kernarg_segment_ptr 1
  .amdhsa_system_sgpr_workgroup_id_x 1
  .amdhsa_float_denorm_mode_32 3
.end_amdhsa_kernel
"""
        return hdr+p.text()+kd
def make(**o):
    g=Gen(**o); s=g.build(); return s,g
if __name__=="__main__":
    o={}
    for x in sys.argv[2:]:
        k,val=x.split("="); o[k]=eval(val)
    s,g=make(**o); open(sys.argv[1],"w").write(s)
    print("bytes",len(s),"lines",s.count("\n"),"nops",g.p.nops,"autowaits",g.p.autow,"est cyc",g.t,"pen",g.p.pen,"forced",g.forced,"lgbad",g.lgbad,"stall",g.stall); print(g.log)
```

```python
import sys, math, struct
from ir import *
NAME="interleave_layers__linear_attn_block__dense_activation_gelu__prompt_kernel"
def f2u(x): return struct.unpack("<I",struct.pack("<f",x))[0]
def F(x): return hex(f2u(x))
LOG2E=1.4426950408889634; LN2=0.6931471805599453
MB=1<<20
WS_ROWF=0; WS_COLF=16384; WS_F0=0x8000; WS_EP=0x6000; WS_SA=0x10000; WS_CSQ=0x40000; WS_CS1=0x80000; WS_KV=0xc0000; WS_ST=0x140000; WS_TS=0x240000
WS_X=3*MB; XB=4*MB+0x40000; WS_O=WS_X+4*XB; WS_EX=30*MB; WS_H=38*MB; HB=15*MB; WS_WT=68*MB
KVS=8704; WTS=88*16384+2048
OOB=0x40000000
L_SCR=131072; L_EXT1=147456; L_EXT3=L_EXT1+4096; L_B2=L_EXT3+4096; LDS_BYTES=L_B2+256
RQ,R2,R1=6144,2048,7168
class S: pass
_s=["I","J","W","MBk","PAR","T0","T1","T2","T3","U0","U1","LDSW","EP","ONE","TO",
    "HW","XW","STP","KV","EXW","EXR","RF","RFW","RFP","CF","RFH","PR","PC","AW1","AW2","C_EPS","C_LN2"]
for n,x in enumerate(_s): setattr(S,x,f"s{32+n}")
assert len(_s)<=32
SM='s[100:101]'; SN='s[98:99]'
S_TAB=64
WQ,WO,W1,W2,WS,TS,B1="s[4:7]","s[8:11]","s[12:15]","s[16:19]","s[20:23]","s[24:27]","s[28:31]"
WSP="s[20:21]"
V_L16,V_ONE,V_FALL,V_STAT,V_WP,V_A,V_RD,_,V_EXT,V_FLG,V_TS,V_LANE,V_CP,_,V_XP,V_HP=range(16)
V_WF=16; V_RES=48; V_XE=64; V_LC=72; V_ACC=80; V_T=208
def icost(t):
    c=0
    for l in t.split("\n"):
        op=l.split()[0]
        c+=8 if (op in TRANS or op.startswith(("v_mfma","buffer_"))) else 4
    return c
def ismem(it): return it[0] in("vm","mem") or (it[0]=="i" and it[1].startswith(("ds_","buffer_","global_")))
def v(a,n=1): return f"v{a}" if n==1 else f"v[{a}:{a+n-1}]"
def a_(a,n=4): return f"a[{a}:{a+n-1}]"
MF="v_mfma_f32_16x16x32_bf16"
SC="sc1"
NSL=88
def ins(l): return [("i",x) for x in l]

def wave(stages,n,tail):
    l=[]
    for t in range(n+len(stages)):
        for s_,f in enumerate(stages):
            if 0<=t-s_<n: l.append(f(t-s_))
        if 0<=t-len(stages)<n: l+=tail(t-len(stages))
    return l

DOC=""";
; Prologue: x and the four weight matrices are re-tiled once into MFMA fragment order in d_ws (plus column sums for the
;   sum(k) all-reduced with f32 atomics -> normalised attention output -> output projection + residual -> up projection, gelu ->
;   down projection (K split over column pairs) + bias + residual.  Weights stream through a 128 KiB LDS ring (LDS-DMA), the
;   activation panel of a wave sits in the accumulation registers.  LayerNorm is applied as rstd * (x W - mean * colsum(W)).
; Hand-offs between workgroups: write-through stores, s_waitcnt, device-scope counter; the first one uses words tagged from
;   an epoch word so that nothing an earlier launch left in d_ws can pass for it.  Every wait is bounded.
; Generated by a script of my own (instruction scheduling, wait counts and wait states are computed statically).
"""

class Gen:
    def __init__(g,**o):
        g.o=dict(D=7,SL=800,WE=4,L1=(0,14,14,14),KX=18,LQ=32,L2=16,L3=(0,0,0,0),G3=(3,),L4=(24,28,0,8),FB=(1,2,3,4,5,6,7),cpf=True,HBT=2,xm=4,STG=200,
                 DEPTH=440,LOW=150,LEAD=24,FULL=520,URG=48,COST=72,prof=False,vp0=2.0,vp1=3.2,vpq=5.0,vp2=8.0,vp3=3.4,vp4=2.8,vp5=3,SK=512,half=(),osc='sc1',inl=True,oscn=4,qw='',qn=12,qo=12,xb=100,ex1=False,nt0=True,late=2,lt=(150,10),sat=True,rdb=300,gp=True,kvc=140,kvp=100,wp=40,rp=30,la=3,cmax=8,cmin=-16,ipf=192,sd=1100,l1=128,l2=128,QD=-100000,QL=30,abl='',
                 rd1=750,rd2=450,rd3=700,ld2=200,ld3=350,LAT0=200,burst=8,kvd1=1100,kvd2=700,kvd3=850,kvd4=600,hd1=800,hd2=800,hd3=750,
                 exd1=750,exd2=600,exd3=850,exd4=600,pre0=8,p0o=4,wnt='nt',xnt='nt',tst='sc1')
        g.o.update(o); g.p=Prog(); g.slow=[]; g.nlab=0; g.tsq=[]; g.names=[]
        g.dma_t={}; g.lastrd={}; g.ready=set(); g.released=set(); g.nextD=0; g.maxD=2*NSL*4; g.t=0; g.free_at=0; g.ev=set()
        g.nu=0; g.pos={}; g.nunit=0; g.forced=0; g.m0dirty=False; g.instream=False; g.later=[]; g.sm=[]; g.lgbad=0; g.nk=0; g.kbase={}; g.nstage=0
    def stamp(g,name,now=False):
        if not g.o["prof"]: return
        if g.o.get("fine") and not(name[0]=="u" or name in("start","end","p3s0","p3s1")): return
        if len(g.tsq)==8 and not now: g.flush_stamps()
        r=S_TAB+6 if now else S_TAB+2*len(g.tsq)
        g.p(f"s_sub_u32 s{r}, 0, {S.TO}" if g.o['prof']=='to' else f"{'s_memtime' if g.o['prof']=='cy' else 's_memrealtime'} s[{r}:{r+1}]"); g.tsq.append((name,r))
        if now: g.flush_stamps()
    def flush_stamps(g):
        if not g.o["prof"] or not g.tsq: return
        p=g.p; p.waitall(vm=False)
        for name,r in g.tsq:
            assert len(g.names)<64; p(f"v_writelane_b32 v{V_TS}, s{r}, {len(g.names)}"); g.names.append(name)
        g.tsq=[]
    def vm(g,text,cost=None):
        ab=g.o["abl"] if g.instream else ""
        if g.o.get("skipA") and text.startswith("global_load_dwordx4"):
            g.ska=getattr(g,"ska",0)+1
            if g.ska>64 and g.ska%g.o["skipA"]==1: return max(g.p.nvm-8,1)
        if ("s" in ab and text.startswith("buffer_store_dwordx4") and TS not in text) or ("a" in ab and text.startswith("global_load_dwordx4")) or ("w" in ab and "load_lds" in text) or ("k" in ab and "add_f32" in text): t=g.p.nvm
        else: t=g.p(text)
        c=g.o["COST"] if cost is None else cost
        g.t=max(g.t,g.free_at-g.o["FULL"])
        g.free_at=max(g.free_at,g.t)+c; return t
    def barrier(g):
        p=g.p; p("s_barrier")
        for s,t in g.lastrd.items():
            if t<=p.lgdone: g.released.add(s)
        for s,(t,n) in g.dma_t.items():
            if n==4 and t<=p.vmdone: g.ready.add(s)
    def dma_ok(g):
        s=g.nextD//4
        return g.nextD<g.maxD and (s<8 or (s-8) in g.released) and (s<32 or "kvl01" in g.ev) and (s<60 or "o0s1r" in g.ev)
    def dma_ops(g):
        s,q=divmod(g.nextD,4); g.nextD+=1; p=g.p; ops=[]
        I_=lambda t:ops.append((4,lambda:p(t)))
        if q==0 or g.m0dirty: I_(f"s_add_u32 m0, {S.LDSW}, {(s%8)*16384}")
        if q==0 and s and g.o.get("fakeW"): I_(f"v_add_u32 v{V_WP}, {16384 if s%4 else hex((-3*16384)&0xffffffff)}, v{V_WP}")
        elif q==0 and s: I_(f"v_add_u32 v{V_WP}, {16384 if s!=NSL else hex((16384*(1-NSL))&0xffffffff)}, v{V_WP}")
        g.m0dirty=False
        def go(): g.dma_t[s]=(g.vm(f"global_load_lds_dwordx4 v{V_WP}, {WSP} offset:{q*1024} {SC}"),q+1)
        ops.append((4,go,1)); return ops
    def dma(g):
        for x in g.dma_ops(): x[1]()
    def pump(g,n):
        while n>0 and g.dma_ok(): g.dma(); n-=1
    def arrive(g,soff,off,ticket):
        if "p" in g.o["abl"]: return
        g.p.wait(vm=ticket); g.p(f"s_atomic_add {S.ONE}, {WSP}, {soff} offset:{off}"); g.sm.append(g.t+g.o["SL"])
    def poll_issue(g,r,soff,off):
        if "p" in g.o["abl"]: return
        g.p(f"s_atomic_add {r}, {WSP}, {soff} offset:{off} glc"); g.sm.append(1e18)
    def poll_check(g,r,soff,off,target):
        if "p" not in g.o["abl"]: g.sm.remove(1e18)
        if "c" in g.o["abl"]: return
        p=g.p; n=g.nlab; g.nlab+=1
        p(f"s_cmp_lt_u32 {r}, {target}")
        g.retry(n,f"""L_slow{n}:
s_waitcnt lgkmcnt(0)
s_cmp_ge_u32 {r}, {target}
s_cbranch_scc1 L_back{n}
s_mov_b32 {r}, 0
s_atomic_add {r}, {WSP}, {soff} offset:{off} glc
s_sub_u32 {S.TO}, {S.TO}, 1
s_cbranch_scc0 L_slow{n}
s_endpgm""")
    def stage(g,r,ev,aoff,poff,off,tk,key,target,d,after=None):
        return [("wait",ev),("i",f"s_mov_b32 {r}, 0"),("since",ev,d[0]),("fn",lambda:g.arrive(aoff,off,tk[key])),("delay",d[1]),("fn",lambda:g.poll_issue(r,poff,off)),("delay",d[2]),
                ("fn",lambda:(g.poll_check(r,poff,off,target),after() if after else None))]
    def retry(g,n,body):
        p=g.p
        if g.o["inl"]: p(f"s_cbranch_scc0 L_back{n}"); p.raw(body)
        else: p(f"s_cbranch_scc1 L_slow{n}"); g.slow.append(body)
        p.raw(f"L_back{n}:")
    def gstore(g,l,cost=None):
        for x in l:
            t=g.vm(x+" sc1",g.o["STG"] if cost is None else cost)
            if cost is None: g.p.cyc+=48
        return t
    def panel(g,key,n): g.kbase[key]=g.nk; g.nk+=n
    def areg(g,key,ks): return 8*((g.kbase[key]+ks)%32)
    def unit(g,mat,key,ks,nb,acc,tr,first):
        u=g.nu; g.nu+=1; a=g.areg(key,ks)
        assert g.pos.setdefault((mat,ks,nb),u%(NSL*16))==u%(NSL*16)
        return dict(slot=u//16,rd=(V_RD+(u%128)//64,(u%64)*1024),x=[a_(a),a_(a+4)],acc=acc,tr=tr,first=first,akey=(key,ks))
    def stair(g,U,mat,key,n,blocks,accf,tr=False,first=lambda ks,nb:None,mid=None):
        done={}
        for ks in range(n):
            if mid and ks==mid[0]: U+=mid[1]
            for name,nbs,lag in blocks:
                if ks<n-lag:
                    for nb in nbs: U.append(g.unit(mat,key,ks,nb,accf(nb),tr,first(ks,nb)))
                    done[name]=len(U)-1
        for name,nbs,lag in blocks:
            for ks in range(n-lag,n):
                for nb in nbs: U.append(g.unit(mat,key,ks,nb,accf(nb),tr,first(ks,nb)))
                done[name]=len(U)-1
        return done
    def ext(g,off,accs,tr,first,ev):
        return dict(slot=None,rd=(V_EXT,off),x=[v(V_XE,4),v(V_XE+4,4)],acc=accs,tr=tr,first="0" if first else None,akey=None,ev=ev)
    def stream(g,U,Aq,sides,vpu,lat=550):
        p=g.p; D=g.o["D"]; WE=g.o["WE"]; NF=D+1; N=len(U); base=g.nunit
        firstuse={}; lastu={}; firstu={}
        for n,u in enumerate(U):
            if u["akey"]: firstuse.setdefault(u["akey"],n)
            if u["slot"] is not None: lastu[u["slot"]]=n; firstu.setdefault(u["slot"],n)
        At={}; rd_t={}; st=dict(n=-1,dl=1e9,th=0,c0=0,q=0); mq=[]; g.instream=True; p.onlg=lambda k:setattr(g,'lgbad',g.lgbad+(k<=sum(x>g.t for x in g.sm) and any(x>g.t for x in g.sm))); g.stall=0; g.log=[]; g.evlog=[]; g.evt={}
        def tpeek(side,force=False):
            while side:
                it=side[0]
                if it[0]=="at":
                    if st["n"]<it[1]: return None
                elif it[0]=="quiet": st["q"]+=it[1]
                elif it[0]=="wait":
                    if it[1] not in g.ev: return None
                elif it[0]=="since":
                    side[0]=("delay",it[2],g.evt[it[1]]+it[2]); continue
                elif it[0]=="delay":
                    if len(it)==2: side[0]=it=("delay",it[1],g.t+it[1])
                    if g.t<it[2] and not force: return None
                elif it[0]=="ev":
                    if it[1] not in g.ev: g.evlog.append((st["n"],it[1])); g.evt[it[1]]=g.t
                    g.ev.add(it[1])
                else:
                    if it[0]=="vm" and not force and g.free_at-g.t>g.o["DEPTH"]+100: return None
                    return 8 if it[0] in("fn","mem") else icost(it[1])
                side.pop(0)
            return None
        def side_peek(force=False):
            for s_ in reversed(sides): tpeek(s_)
            for k,s_ in enumerate(sides):
                c=tpeek(s_)
                if c is not None: st["th"]=k; return c
            if force:
                dl=[(s_[0][2],k) for k,s_ in enumerate(sides) if s_ and s_[0][0]=="delay"]+[(g.free_at-g.o["DEPTH"]-100,k) for k,s_ in enumerate(sides) if s_ and s_[0][0]=="vm"]
                if dl: t_,k=min(dl); g.stall+=max(t_-g.t,0); g.t=max(g.t,t_); return side_peek(True)
            return None
        def side_emit():
            it=sides[st["th"]].pop(0)
            if it[0] in("fn","mem"): it[1]()
            elif it[0]=="vm": g.vm(it[1],it[2] if len(it)>2 else None)
            elif "v" in g.o["abl"] and it[1].startswith(("v_mul_f32","v_fma_f32","v_exp","v_rcp","v_max_f32","v_cvt_pk","v_dot2","v_add_f32")): p.cyc+=icost(it[1])
            else:
                p(it[1])
                if it[1].startswith("v_mfma"): p.cyc+=8
        def until(ev):
            s0=g.stall; k=0
            while True:
                for s_ in reversed(sides): tpeek(s_)
                if ev in g.ev: break
                fill()
                c=side_peek(True)
                if ev in g.ev: break
                assert c is not None,("stuck",ev,st["n"],[x[:2] for x in sides])
                c0=p.cyc; side_emit(); g.t+=p.cyc-c0; st["c0"]+=p.cyc-c0; k+=1
            if k: g.log.append((st["n"],ev,k,g.stall-s0))
        def fill():
            while g.free_at-g.t<g.o["LOW"]:
                refill(True)
                if not mq: break
                flush()
        def flush():
            while mq: mq.pop(0)[1]()
        def nextA():
            x=Aq.pop(0); return x["ops"](At)
        def A_ok(): return Aq and Aq[0]["ok"](st["n"]) and (Aq[0].get("ev") is None or Aq[0]["ev"] in g.ev)
        def refill(force=False):
            if mq: return
            da=firstuse.get(Aq[0]["id"][:2],1e8) if A_ok() else None
            dd=(firstu.get(g.nextD//4,1e9)-D-WE) if g.dma_ok() else None
            if da is None and dd is None: return
            dl=min(x for x in(da,dd) if x is not None)
            if not force and g.free_at-g.t>(g.o["QD"] if st["q"] and dl-st["n"]>g.o["QL"] else g.o["DEPTH"]) and dl-st["n"]>g.o["LEAD"]: return
            st["dl"]=dl
            mq.extend(nextA() if dd is None or (da is not None and da<=dd) else g.dma_ops())
        def rd(n):
            u=U[n]; r=V_WF+4*(n%NF); s=u["slot"]
            if s is None: until(u["ev"])
            elif firstu[s]==n:
                if g.dma_t.get(s,(0,0))[1]<4:
                    flush(); g.forced+=1
                    while g.nextD<4*(s+1):
                        if not g.dma_ok(): p.waitall(vm=False); g.barrier(); assert g.dma_ok()
                        g.dma()
                if s not in g.ready: p.wait(vm=g.dma_t[s][0])
                g.barrier(); assert s in g.ready
            rd_t[n]=p(f"ds_read_b128 {v(r,4)}, v{u['rd'][0]} offset:{u['rd'][1]}")
            if s is not None and lastu[s]==n: g.lastrd[s]=rd_t[n]
        def hoist(sd,want):
            seen=[]
            for k,it in enumerate(sd[:g.o["la"]+1]):
                if it[0]!="i" or "\n" in it[1] or not it[1].startswith("v_") or it[1].startswith(("v_mfma","v_cmp","v_permlane")): return False
                x=I(it[1])
                if k and icost(it[1])==want and all(not(set(y.wr)&(set(x.rd)|set(x.wr)) or set(y.rd)&set(x.wr)) for y in seen) and not any(need(y,x)>d for d,y in enumerate(reversed(p.hist[-2:]))):
                    sd.insert(0,sd.pop(k)); return True
                seen.append(x)
            return False
        cr=dict(c=0.0)
        def peek():
            refill()
            if mq: return mq[0][0]
            return side_peek()
        def emit():
            if mq: mq.pop(0)[1]()
            else: cr["c"]-=side_peek(); side_emit()
        for _ in range(g.o['burst']): refill(True); flush()
        for _ in range(40):
            if side_peek() is None: break
            side_emit()
        for n in range(D): rd(n)
        g.t+=lat; g.free_at+=g.o["LAT0"]
        for n,u in enumerate(U):
            st["c0"]=p.cyc; r=V_WF+4*(n%NF)
            if n==N//2: p.raw("@ISLAND@")
            if g.o["ipf"] and n%g.o["ipf"]==0 and n<N-300:
                mq.extend([(4,lambda:p("s_getpc_b64 s[4:5]")),(4,lambda:g.vm(f"global_load_dword v{V_CP+1}, v{V_CP}, s[4:5]",8),1)])
            if u.get("pre"): until(u["pre"])
            if u.get("stamp"): g.stamp(u["stamp"])
            fine=g.o.get("fine")
            if fine and fine[0]<=base+n<fine[0]+fine[2]*fine[1] and (base+n-fine[0])%fine[1]==0: g.stamp(f"u{base+n}_{g.t}_{p.nvm}")
            tv=None; g.sm=[x for x in g.sm if x>g.t]
            reg=rd_t[n]>p.lgdone; span=max(1,WE-len(g.sm)) if reg else 1
            for m in range(n,min(N,n+span)):
                w=U[m]
                if w["akey"] and firstuse[w["akey"]]==m:
                    k=w["akey"]+(1,)
                    if m==n and k not in At:
                        flush(); g.forced+=1
                        while k not in At:
                            if Aq[0].get("ev") and Aq[0]["ev"] not in g.ev: until(Aq[0]["ev"]); continue
                            assert Aq[0]["ok"](st["n"]); mq.extend(nextA()); flush()
                        for _ in range(g.o["burst"]-2): refill(True); flush()
                        g.stall+=lat; g.t+=lat; g.free_at+=g.o["LAT0"]; g.log.append((n,"A late",u["akey"]))
                    if k in At: tv=At[k]
            if reg:
                for m in range(n+D,min(N,n+D+span)):
                    s=U[m]["slot"]
                    if s is not None and firstu[s]==m and g.dma_t.get(s,(0,0))[1]==4: tv=max(tv or 0,g.dma_t[s][0])
            p.wait(vm=tv,lg=rd_t[min(n+span-1,N-1)])
            cr["c"]=max(min(cr["c"],g.o["cmax"]),g.o["cmin"])+4*vpu(n)
            def mf(mh):
                acc=v(u["acc"][mh],4); c=u["first"] or acc; w=v(r,4); x=u["x"][mh]
                p(f"{MF} {acc}, {x}, {w}, {c}" if u["tr"] else f"{MF} {acc}, {w}, {x}, {c}")
            wnext=4 if n+1<N and rd_t[n+1]>p.lgdone else 0
            def urgent(): return mq and (g.free_at-g.t<g.o["LOW"] and st["dl"]-n<g.o["URG"] or st["dl"]-n<g.o["LEAD"]-4)
            def due(c): return cr["c"]>=c or st["th"]!=len(sides)-1
            def gap(room,last):
                c1=p.gap0
                while True:
                    free=room-(p.cyc-c1); refill()
                    if mq and len(mq[0])==3 and not p.vseen and (free>=4 or urgent()): mq.pop(0)[1](); continue
                    c=side_peek(); m=c is not None and ismem(sides[st["th"]][0])
                    if m and not p.vseen and (c<=free or due(c)): cr["c"]-=c; side_emit(); continue
                    if mq and len(mq[0])==2 and (free>=4 or (last and urgent())): mq.pop(0)[1](); continue
                    if c is not None and not m and g.o["la"] and free in(4,8) and c!=free and hoist(sides[st["th"]],free): c=free
                    if c is not None and not m and (c<=free or (last and due(c))): cr["c"]-=c; side_emit(); continue
                    return
            mf(0); r1=n+D<N
            sr=g.nextD//4-8
            if g.o["xb"] and not mq and g.nextD<g.maxD and sr>=0 and sr not in g.released and g.lastrd.get(sr,1e9)<=p.lgdone and g.free_at-g.t<g.o["xb"] and not A_ok(): g.barrier()
            refill(); cs=side_peek()
            if r1 and not(wnext and cs==8 and not mq): rd(n+D); r1=False
            gap(8,False)
            mf(1); st["n"]=n
            if r1: rd(n+D)
            gap(8-wnext,True)
            g.t+=max(32,p.cyc-st["c0"])
        g.nunit+=N; flush(); assert not Aq
        st["n"]=1e9
        while side_peek(True) is not None:
            c0=p.cyc; side_emit(); g.t+=p.cyc-c0
    def aloads(g,key,nks,vb,off,ok,ev):
        q=[]; p=g.p
        for ks in range(nks):
            for mh in range(2):
                f=2*ks+mh
                def ops(At,f=f,ks=ks,mh=mh):
                    l=[]
                    if f==0: l.append((4,lambda:p(f"v_add_u32 v{V_A}, {off+4096}, v{vb}")))
                    elif f%8==0 and g.o.get("fakeA"): l.append((4,lambda:p(f"v_add_u32 v{V_A}, 0, v{V_A}")))
                    elif f%8==0: l.append((4,lambda:p(f"v_add_u32 v{V_A}, {8192 if f%16 or nks!=32 else S.AW2 if f==32 else S.AW1}, v{V_A}")))
                    l.append((4,lambda:At.__setitem__((key,ks,mh),g.vm(f"global_load_dwordx4 {a_(g.areg(key,ks)+4*mh)}, v{V_A}, {WSP} offset:{(f%8)*1024-4096} {SC}")),1))
                    return l
                q.append(dict(id=(key,ks,mh),ops=ops,ok=ok(g.kbase[key]+ks),ev=ev(ks)))
        return q
    def red4(g,a,b,c,d):
        return [f"v_permlane32_swap_b32 v{a}, v{c}",f"v_permlane32_swap_b32 v{b}, v{d}",f"v_add_f32 v{a}, v{a}, v{c}",f"v_add_f32 v{b}, v{b}, v{d}",
                f"v_permlane16_swap_b32 v{a}, v{b}",f"v_add_f32 v{a}, v{a}, v{b}"]
    def pub_half(g,k2,xi,tk,J=S.J):
        T=V_T; s=ins([f"s_add_u32 {S.T0}, {S.XW}, {WS_X+xi*XB+k2*32768}"])
        s.append(("mem",lambda:tk.__setitem__(("x",k2),g.gstore([f"buffer_store_dwordx4 {v(V_RES+8*k2+4*mh,4)}, v{V_L16}, {WS}, {S.T0} offen offset:{mh*1024}" for mh in range(2)]))))
        if k2==0: s+=[("ev",f"x{xi}s0"),("i",f"v_mov_b32 v{T+4}, 0x3f803f80")]
        l=[]
        for i in range(4):
            for mh in range(2):
                r=V_RES+8*k2+4*mh+i; z=(i==0 and k2==0)
                l+=[f"v_dot2_f32_bf16 v{T+2*mh}, v{r}, v{T+4}, {'0' if z else v(T+2*mh)}",f"v_dot2_f32_bf16 v{T+2*mh+1}, v{r}, v{r}, {'0' if z else v(T+2*mh+1)}"]
        s.append(("fn",lambda:g.p("\n".join(l))))
        if k2 and xi and g.o["sat"]:
            s+=ins([f"s_add_u32 {S.T0}, {S.RF}, {WS_SA+(xi-1)*16384}"]+g.red4(T,T+1,T+2,T+3))
            s+=[("mem",lambda:tk.__setitem__(("x",k2),g.vm(f"buffer_atomic_add_f32 v{T}, v{V_STAT}, {WS}, {S.T0} offen sc1",16))),("ev",f"x{xi}s1")]
        elif k2:
            s+=ins([f"s_lshl_b32 {S.T0}, {J}, 8",f"s_add_u32 {S.T0}, {S.T0}, {S.STP}",f"s_add_u32 {S.T0}, {S.T0}, {xi*0x40000}"]+g.red4(T,T+1,T+2,T+3))
            s+=[("mem",lambda:tk.__setitem__(("x",k2),g.gstore([f"buffer_store_dword v{T}, v{V_STAT}, {WS}, {S.T0} offen"],16))),("ev",f"x{xi}s1")]
        return s
    def rowstage(g,name,co,tk,key):
        o=g.o
        return g.stage(S.PR,name,S.RF,S.RF,co,tk,key,16,(o["rd1"]+(o["rdb"] if key==("x",1) and o["sat"] else 0),o["rd2"],o["rd3"]),lambda:g.stamp(name))+[("ev",name+"r")]
    def side_stats(g,p3,xi,mid):
        T=V_T; o=[]
        if xi and g.o["sat"]:
            s=ins([f"s_add_u32 {S.T0}, {S.RF}, {WS_SA+(xi-1)*16384}",f"v_lshlrev_b32 v{T+4}, 2, v{V_FALL}"])+[("vm",f"buffer_load_dwordx4 {v(T,4)}, v{T+4}, {WS}, {S.T0} offen {SC}",24)]+mid
        else:
            s=ins([f"s_add_u32 {S.T0}, {S.STP}, {xi*0x40000}"])
            for t in range(4): s.append(("vm",f"buffer_load_dwordx4 {v(T+4*t,4)}, v{V_L16}, {WS}, {S.T0} offen offset:{t*1024} {SC}"))
            s+=mid
            for c in range(4): o+=[f"v_add_f32 v{T+c}, v{T+c}, v{T+4+c}",f"v_add_f32 v{T+8+c}, v{T+8+c}, v{T+12+c}"]
            for c in range(4): o+=[f"v_add_f32 v{T+c}, v{T+c}, v{T+8+c}"]
            for sw in("32","16"):
                for c in range(4): o+=[f"v_mov_b32 v{T+4+c}, v{T+c}"]
                for c in range(4): o+=[f"v_permlane{sw}_swap_b32 v{T+c}, v{T+4+c}"]
                for c in range(4): o+=[f"v_add_f32 v{T+c}, v{T+c}, v{T+4+c}"]
        for mh in range(2): o+=[f"v_mul_f32 v{T+2*mh}, {F(-1/1024)}, v{T+2*mh}",f"v_mul_f32 v{T+2*mh+1}, {F(1/1024)}, v{T+2*mh+1}"]
        for mh in range(2): o+=[f"v_fma_f32 v{T+2*mh+1}, -v{T+2*mh}, v{T+2*mh}, v{T+2*mh+1}"]
        for mh in range(2): o+=[f"v_max_f32 v{T+2*mh+1}, 0, v{T+2*mh+1}"]
        for mh in range(2): o+=[f"v_add_f32 v{T+2*mh+1}, {F(1e-5)}, v{T+2*mh+1}"]
        for mh in range(2): o+=[f"v_rsq_f32 v{T+4+mh}, v{T+2*mh+1}"]
        for mh in range(2): o+=[f"v_mul_f32 v{T+2*mh+1}, v{T+2*mh+1}, v{T+4+mh}"]
        for mh in range(2):
            m,sg,X=T+2*mh,T+2*mh+1,V_XE+4*mh
            o+=[f"v_cvt_pk_bf16_f32 v{T+6}, v{m}, v{m}",f"v_cvt_pk_bf16_f32 v{T+7}, v{sg}, v{sg}",
                f"v_lshlrev_b32 v{T+8}, 16, v{T+6}",f"v_lshlrev_b32 v{T+9}, 16, v{T+7}",
                f"v_sub_f32 v{T+8}, v{m}, v{T+8}",f"v_sub_f32 v{T+9}, v{sg}, v{T+9}",
                f"v_cvt_pk_bf16_f32 v{T+8}, v{T+8}, v{sg}",f"v_cvt_pk_bf16_f32 v{T+9}, v{T+9}, 0",
                f"v_cndmask_b32 v{X}, 0, v{T+6}, {SN}",f"v_cndmask_b32 v{X+1}, 0, v{T+8}, {SN}",f"v_cndmask_b32 v{X+2}, 0, v{T+9}, {SN}"]
        if p3:
            c0=-2*math.sqrt(2/math.pi)*LOG2E
            for mh in range(2):
                r=T+4+mh; L=V_LC+3*mh
                o+=[f"v_mul_f32 v{L}, {F(c0)}, v{r}",f"v_mul_f32 v{T+6}, v{r}, v{r}",f"v_mov_b32 v{L+2}, v{T+2*mh+1}",
                    f"v_mul_f32 v{T+6}, {F(0.044715)}, v{T+6}",f"v_mul_f32 v{L+1}, v{T+6}, v{L}"]
        else:
            for mh in range(2): o+=[f"v_mul_f32 v{T+46+mh}, {F(LOG2E)}, v{T+4+mh}"]
            o+=[f"v_and_b32 v{T+6}, 48, v{V_LANE}"]
            for mh in range(2):
                for r in range(4): o+=[f"ds_bpermute_b32 v{V_LC+4*mh+r}, v{T+6}, v{T+46+mh} offset:{4*r}"]
        return s+ins(o)
    def table_load(g,p3,T):
        s=ins([f"v_lshrrev_b32 v{T+16}, 4, v{V_LANE}",f"v_lshlrev_b32 v{T+18}, 14, v{T+16}",f"v_lshl_add_u32 v{T+18}, v{V_FALL}, 2, v{T+18}",f"v_add_u32 v{T+17}, v{V_FALL}, v{T+16}",
               f"s_lshl_b32 {S.T2}, {S.J}, 2",f"s_add_u32 {S.T2}, {S.T2}, {S.W}",f"s_lshl_b32 {S.T2}, {S.T2}, 8",f"s_add_u32 {S.T2}, {S.T2}, {WS_CS1 if p3 else WS_CSQ}"])
        for t in range(4):
            s.append(("vm",f"buffer_load_dwordx4 {v(T+4*t,4)}, v{T+18}, {WS}, {S.T2} offen {SC}"))
            if t<3: s.append(("i",f"s_add_u32 {S.T2}, {S.T2}, 65536"))
        if p3:
            s+=ins([f"v_lshlrev_b32 v{T+18}, 1, v{T+17}",f"s_lshl_b32 {S.T3}, {S.PAR}, 6",f"s_lshl_b32 {S.T2}, {S.W}, 7",f"s_add_u32 {S.T2}, {S.T2}, {S.T3}",
                    f"s_cmp_eq_u32 {S.T2}, 448\ns_cselect_b32 {S.T2}, -64, {S.T2}\ns_cselect_b32 {S.T3}, 32, 0",f"v_xor_b32 v{T+17}, {S.T3}, v{T+17}",
                    f"s_mul_i32 {S.T3}, {S.J}, 448",f"s_add_u32 {S.T2}, {S.T2}, {S.T3}"])
            s.append(("vm",f"buffer_load_ushort v{T+19}, v{T+18}, {B1}, {S.T2} offen",16))
        return s
    def table_make(g,p3,T,tk):
        o=[]
        for c in range(4): o+=[f"v_add_f32 v{T+c}, v{T+c}, v{T+4+c}",f"v_add_f32 v{T+8+c}, v{T+8+c}, v{T+12+c}"]
        for c in range(4): o+=[f"v_add_f32 v{T+c}, v{T+c}, v{T+8+c}"]
        o+=g.red4(T,T+1,T+2,T+3)
        o+=[f"v_cvt_pk_bf16_f32 v{T+5}, v{T}, 0",f"s_lshl_b32 {S.T2}, {S.W}, 10",f"v_lshlrev_b32 v{T+8}, 16, v{T+5}",f"v_sub_f32 v{T+8}, v{T}, v{T+8}",
            f"v_cvt_pk_bf16_f32 v{T+4}, v{T}, v{T+8}",f"s_add_u32 {S.T2}, {S.T2}, {L_EXT3 if p3 else L_EXT1}",f"v_mov_b32 v{T+7}, 0"]
        if p3: o+=[f"v_lshl_add_u32 v{T+5}, v{T+19}, 16, v{T+5}",f"v_mov_b32 v{T+6}, v{T+19}"]
        else: o+=[f"v_mov_b32 v{T+6}, 0"]
        o+=[f"v_lshl_add_u32 v{T+17}, v{T+17}, 4, {S.T2}"]
        return ins(o)+[("mem",lambda:tk.__setitem__("t",g.p(f"ds_write_b128 v{T+17}, {v(T+4,4)}")))]
    def run_list(g,l):
        for it in l:
            if it[0]=="i": g.p(it[1])
            elif it[0]=="vm": g.vm(it[1],it[2] if len(it)>2 else None)
            elif it[0] in("fn","mem"): it[1]()
    def rowaddr(g,J=S.J):
        T=V_T
        g.p(f"""v_lshlrev_b32 v{T+1}, 9, v{V_FALL}
v_and_b32 v{T+2}, 16, v{V_LANE}
v_lshl_add_u32 v{T+1}, v{T+2}, 1, v{T+1}
v_lshrrev_b32 v{T+2}, 5, v{V_LANE}
v_lshl_add_u32 v{T+1}, v{T+2}, 4, v{T+1}
s_lshl_b32 {S.T0}, {S.MBk}, 16
s_lshl_b32 {S.T1}, {J}, 7
s_add_u32 {S.T0}, {S.T0}, {S.T1}
s_add_u32 {S.T1}, {S.T0}, 32768""")
    def p0(g):
        p=g.p; o=g.o; T=V_T; ACC=V_ACC
        p.raw(f"{NAME}:")
        p(f"s_cmp_ge_u32 s2, 256\ns_cbranch_scc1 L_end")
        p("s_load_dwordx16 s[44:59], s[0:1], 0\ns_load_dwordx2 s[20:21], s[0:1], 80")
        p(f"v_lshrrev_b32 v{T}, 6, v0\nv_and_b32 v{V_LANE}, 63, v0\nv_readfirstlane_b32 {S.W}, v{T}\nv_lshlrev_b32 v{V_L16}, 4, v{V_LANE}\nv_mov_b32 v{V_TS}, 0")
        if o["xm"]==4: p(f"""s_and_b32 {S.PAR}, s2, 1
s_bfe_u32 {S.T0}, s2, 0x20001
s_bfe_u32 {S.T1}, s2, 0x20003
s_lshl_b32 {S.T0}, {S.T0}, 2
s_add_u32 {S.I}, {S.T0}, {S.T1}
s_lshr_b32 {S.T0}, s2, 5
s_lshl_b32 {S.T0}, {S.T0}, 1
s_add_u32 {S.J}, {S.T0}, {S.PAR}""")
        elif o["xm"]==2: p(f"""s_and_b32 {S.I}, s2, 15
s_lshr_b32 {S.J}, s2, 4
s_and_b32 {S.PAR}, {S.J}, 1""")
        elif o["xm"]==8: p(f"""s_and_b32 {S.PAR}, s2, 1
s_bfe_u32 {S.I}, s2, 0x40002
s_lshr_b32 {S.T0}, s2, 6
s_lshl_b32 {S.T0}, {S.T0}, 2
s_and_b32 {S.T1}, s2, 3
s_add_u32 {S.J}, {S.T0}, {S.T1}""")
        p(f"""s_lshl_b32 {S.MBk}, {S.I}, 2
s_add_u32 {S.MBk}, {S.MBk}, {S.W}""")
        g.stamp("start",True)
        p(f"s_lshl_b32 {S.T0}, {S.PAR}, 6\ns_add_u32 {S.T0}, {S.T0}, {S.MBk}\ns_lshl_b32 {S.T0}, {S.T0}, 7\ns_getpc_b64 s[6:7]"); p.raw("L_pc:")
        p(f"s_add_u32 {S.T0}, {S.T0}, L_tab-L_pc\ns_add_u32 s6, s6, {S.T0}\ns_addc_u32 s7, s7, 0")
        if o["cpf"]==1:
            p(f"s_getpc_b64 s[4:5]\ns_lshr_b32 {S.T2}, s2, 3\ns_lshl_b32 {S.T2}, {S.T2}, 2\ns_add_u32 {S.T2}, {S.T2}, {S.W}\ns_mul_i32 {S.T2}, {S.T2}, 1152\nv_min_u32 v{T+11}, 8, v{V_LANE}\nv_lshl_add_u32 v{T+11}, v{T+11}, 7, {S.T2}\nv_min_u32 v{T+11}, L_tab-L_pc, v{T+11}")
            g.vm(f"global_load_dword v{T+11}, v{T+11}, s[4:5]")
        tl=f"s_load_dwordx16 s[{S_TAB}:{S_TAB+15}], s[6:7], 0\ns_load_dwordx16 s[{S_TAB+16}:{S_TAB+31}], s[6:7], 64"
        if not o["nt0"]: p(tl)
        p(f"v_and_b32 v{T}, 15, v{V_LANE}\nv_lshlrev_b32 v{V_FALL}, 2, v{T}")
        JC,JX="s96","s97"
        p(f"s_lshl_b32 {JC}, {S.W}, 1\ns_xor_b32 {JC}, {JC}, {S.J}\ns_xor_b32 {JX}, {JC}, 1")
        PA,PB,PC,RT,RX=V_WF,V_WF+4,V_WF+8,V_WF+12,V_WF+16
        p(f"""s_lshl_b32 {S.T0}, {S.MBk}, 16
s_lshl_b32 {S.T1}, {JX}, 7
s_add_u32 {S.T0}, {S.T0}, {S.T1}
s_mul_i32 {S.LDSW}, {S.W}, 28672
v_lshrrev_b32 v{T+2}, 3, v{V_LANE}
v_and_b32 v{T+3}, 7, v{V_LANE}
v_and_b32 v{T+9}, 6, v{T+2}
v_xor_b32 v{T+3}, v{T+3}, v{T+9}
v_lshlrev_b32 v{T+3}, 4, v{T+3}
s_add_u32 m0, {S.LDSW}, 24576""")
        for pat,rs in((PC,R2),(PB,R1)):
            p(f"v_mul_u32_u24 v{pat}, {rs}, v{T+2}\nv_add_u32 v{pat}, v{pat}, v{T+3}")
            for q in range(1,4): p(f"v_add_u32 v{pat+q}, {q*(8*rs-1024)}, v{pat}")
        p(f"""s_mov_b32 s26, 0x400000
s_mov_b32 s27, 0x20000
s_mov_b32 s22, 0x10000000
s_mov_b32 s23, 0x20000""")
        p(f"v_mov_b32 v{T+4}, 0\nv_mov_b32 v{T+5}, 0\nv_mov_b32 v{T+6}, 0\nv_mov_b32 v{T+7}, 0\nv_min_u32 v{V_ONE}, 1, v{V_LANE}\nv_lshlrev_b32 v{V_ONE}, 30, v{V_ONE}")
        p.waitall(vm=False)
        p("s_mov_b64 s[24:25], s[44:45]\ns_mov_b64 s[4:5], s[46:47]\ns_mov_b64 s[8:9], s[48:49]\ns_mov_b64 s[12:13], s[52:53]\ns_mov_b64 s[28:29], s[54:55]\ns_mov_b64 s[16:17], s[56:57]\ns_mov_b64 s[100:101], s[58:59]")
        if o["nt0"]: p(tl)
        p(f"s_load_dword {S.EP}, {WSP}, {WS_EP}")
        for q in range(4): tx=g.vm(f"buffer_load_dwordx4 v{PC+q}, {TS}, {S.T0} offen offset:{q*1024} {o['xnt']} lds")
        p(f"""s_mov_b32 {S.T3}, {RQ}
s_cmp_eq_u32 {S.W}, 3
s_cselect_b32 s8, s8, s4
s_cselect_b32 s9, s9, s5
s_cselect_b32 {S.T3}, {R2}, {S.T3}
s_lshl_b32 s10, {S.T3}, 10
s_mov_b32 s11, 0x20000
s_mov_b32 s14, {1024*R1}
s_mov_b32 s15, 0x20000
s_mov_b32 s18, {3584*R2}
s_mov_b32 s19, 0x20000
s_mov_b32 s30, 7168
s_mov_b32 s31, 0x20000
v_mul_u32_u24 v{PA}, {S.T3}, v{T+2}
v_add_u32 v{PA}, v{PA}, v{T+3}
s_mul_i32 s98, {S.I}, {S.T3}
s_lshl_b32 s98, s98, 6
s_add_u32 {S.T2}, {S.W}, 1
s_cmp_lt_u32 {S.W}, 2
s_cselect_b32 {S.T2}, {S.T2}, 0
s_lshl_b32 {S.T2}, {S.T2}, 4
s_add_u32 {S.T2}, {S.T2}, {JC}
s_lshl_b32 {S.T2}, {S.T2}, 7
s_add_u32 s98, s98, {S.T2}
s_lshl_b32 {S.T2}, {S.T3}, 5
s_add_u32 s99, s98, {S.T2}
s_lshl_b32 {S.T3}, {S.T3}, 3
s_sub_u32 {S.T3}, {S.T3}, 1024
v_add_u32 v{PA+1}, {S.T3}, v{PA}
v_add_u32 v{PA+2}, {S.T3}, v{PA+1}
v_add_u32 v{PA+3}, {S.T3}, v{PA+2}
""")
        dt={}
        def rdma(r):
            p(f"s_add_u32 m0, {S.LDSW}, {r*4096}")
            for q in range(4): dt[r]=g.vm(f"buffer_load_dwordx4 v{(PA,PB,PC)[r//2]+q}, {(WO,W1,W2)[r//2]}, s{S_TAB+r if r>1 else 98+r} offen offset:{q*1024} {o['wnt']} lds")
        rdma(0); rdma(1)
        if o["cpf"]==2:
            p(f"s_getpc_b64 s[4:5]\ns_lshr_b32 {S.T2}, s2, 3\ns_lshl_b32 {S.T2}, {S.T2}, 2\ns_add_u32 {S.T2}, {S.T2}, {S.W}\ns_mul_i32 {S.T2}, {S.T2}, 1152\nv_min_u32 v{T+11}, 8, v{V_LANE}\nv_lshl_add_u32 v{T+11}, v{T+11}, 7, {S.T2}\nv_min_u32 v{T+11}, L_tab-L_pc, v{T+11}")
            g.vm(f"global_load_dword v{T+11}, v{T+11}, s[4:5]")
        p(f"""s_mul_i32 {S.KV}, {S.J}, {KVS}
s_add_u32 {S.KV}, {S.KV}, {WS_KV}
s_and_b32 {S.T0}, {S.MBk}, 31
s_min_u32 {S.T0}, {S.T0}, 16
s_lshl_b32 {S.T0}, {S.T0}, 9
s_lshr_b32 {S.T1}, {S.MBk}, 5
s_mul_i32 {S.T1}, {S.T1}, {16*KVS}
s_add_u32 {S.T0}, {S.T0}, {S.T1}
s_mul_i32 {S.T1}, {JC}, {KVS}
s_add_u32 {S.T0}, {S.T0}, {S.T1}
s_add_u32 {S.T0}, {S.T0}, {WS_KV}
v_lshlrev_b32 v{T+2}, 3, v{V_LANE}""")
        g.vm(f"buffer_store_dwordx2 {v(T+4,2)}, v{T+2}, {WS}, {S.T0} offen {SC}")
        p(f"s_mov_b32 s24, s100\ns_mov_b32 s25, s101\ns_mov_b32 s26, 2048\nv_lshlrev_b32 v{T+2}, 1, v{V_LANE}\ns_lshl_b32 {S.T0}, {S.J}, 7")
        g.vm(f"buffer_load_ushort v{T+8}, v{T+2}, {TS}, {S.T0} offen")
        p("s_load_dwordx2 s[24:25], s[0:1], 64\ns_mov_b32 s26, 0x400000")
        p(f"""v_lshrrev_b32 v{T+2}, 2, v{V_LANE}
v_and_b32 v{T+3}, 3, v{V_LANE}
v_lshlrev_b32 v{T+3}, 3, v{T+3}
v_lshl_add_u32 v{RT}, v{T+2}, 7, v{T+3}
v_and_b32 v{T+9}, 6, v{T+2}
v_lshl_add_u32 v{RT}, v{T+9}, 4, v{RT}
v_add_u32 v{RT}, {S.LDSW}, v{RT}""")
        for b in range(1,4): p(f"v_xor_b32 v{RT+b}, {32*b}, v{RT}")
        p(f"""v_lshrrev_b32 v{T+2}, 4, v{V_LANE}
v_lshlrev_b32 v{T+2}, 2, v{T+2}
v_lshl_add_u32 v{V_STAT}, v{T}, 4, v{T+2}
v_lshlrev_b32 v{V_EXT}, 4, v{T}
v_add_u32 v{V_EXT}, {L_EXT1}, v{V_EXT}
v_mov_b32 v{V_XE+3}, 0
v_mov_b32 v{V_XE+7}, 0
v_mov_b32 v{V_RD}, v{V_L16}
v_add_u32 v{V_RD+1}, 0x10000, v{V_L16}
s_mul_i32 {S.T0}, {S.J}, {WTS}
s_add_u32 {S.T0}, {S.T0}, {WS_WT}
s_lshl_b32 {S.T2}, {S.W}, 12
s_add_u32 {S.T2}, {S.T2}, {S.T0}
v_add_u32 v{V_WP}, {S.T2}, v{V_L16}
s_mul_i32 {S.T1}, {JC}, {WTS}
s_add_u32 {S.T1}, {S.T1}, {WS_WT}""")
        p.waitall(vm=False)
        p(f"s_lshr_b32 {S.T2}, {S.J}, 1\ns_mul_i32 {S.T3}, {S.T2}, 896\ns_lshr_b32 {S.T2}, {JC}, 1\ns_lshl_b32 {S.T2}, {S.T2}, 8")
        for r in range(2,6): p(f"s_add_u32 s{S_TAB+r}, s{S_TAB+r}, {S.T3 if r in(2,3) else S.T2}")
        for k in range(24): p(f"s_add_u32 s{S_TAB+8+k}, s{S_TAB+8+k}, {S.T0 if 8<=k<16 else S.T1}")
        p(f"""s_mov_b32 {S.TO}, 0x40000
s_mul_i32 {S.T2}, {S.MBk}, {65536+o["SK"]}
s_lshl_b32 {S.T3}, {S.PAR}, 15
s_sub_u32 {S.AW1}, 8192, {S.T3}
s_add_u32 {S.AW2}, 8192, {S.T3}
s_lshl_b32 {S.T3}, {S.PAR}, 14
s_add_u32 {S.U0}, {S.T2}, {S.T3}
v_add_u32 v{V_XP}, {S.U0}, v{V_L16}
s_xor_b32 {S.T3}, {S.T3}, 16384
s_add_u32 {S.XW}, {S.T2}, {S.T3}
s_lshr_b32 {S.T3}, {JX}, 1
s_lshl_b32 {S.T3}, {S.T3}, 11
s_add_u32 {S.XW}, {S.XW}, {S.T3}
s_mul_i32 {S.HW}, {S.MBk}, {229376+o["SK"]}
s_mul_i32 {S.T2}, {S.PAR}, 114688
s_add_u32 {S.HW}, {S.HW}, {S.T2}
v_add_u32 v{V_HP}, {S.HW}, v{V_L16}
s_lshr_b32 {S.T2}, {S.J}, 1
s_lshl_b32 {S.T2}, {S.T2}, 11
s_add_u32 {S.HW}, {S.HW}, {S.T2}
s_add_u32 {S.U0}, {S.U0}, {S.T2}
s_lshl_b32 {S.STP}, {S.MBk}, 12
s_add_u32 {S.STP}, {S.STP}, {WS_ST}
s_lshl_b32 {S.T2}, {S.MBk}, 4
s_add_u32 {S.T2}, {S.T2}, {S.J}
s_lshl_b32 {S.EXR}, {S.T2}, 12
s_add_u32 {S.EXR}, {S.EXR}, {WS_EX}
s_xor_b32 {S.EXW}, {S.EXR}, 4096
s_lshl_b32 {S.RF}, {S.MBk}, 8
s_lshl_b32 {S.T2}, {S.J}, 2
s_add_u32 {S.RFW}, {S.RF}, {S.T2}
s_xor_b32 {S.RFP}, {S.RFW}, 4
s_lshl_b32 {S.T2}, {S.PAR}, 2
s_add_u32 {S.RFH}, {S.RF}, {S.T2}
s_mov_b32 {S.ONE}, 1
s_mov_b64 {SN}, 0xffff
s_lshl_b32 {S.CF}, {S.J}, 2
s_add_u32 {S.CF}, {S.CF}, {S.W}
s_lshl_b32 {S.CF}, {S.CF}, 7
s_add_u32 {S.CF}, {S.CF}, {WS_COLF}
s_mov_b32 {S.C_EPS}, {F(1e-6*LOG2E)}
s_mov_b32 {S.C_LN2}, {F(LN2)}""")
        p(f"s_lshl_b32 {S.T0}, {S.J}, 14\ns_add_u32 {S.T0}, {S.T0}, {WS_SA-16384}\ns_cmp_eq_u32 {S.J}, 0\ns_cselect_b32 {S.T0}, 0, {S.T0}\ns_cmp_gt_u32 {S.J}, 3\ns_cselect_b32 {S.T0}, {OOB}, {S.T0}\ns_add_u32 {S.T0}, {S.T0}, {S.RF}\nv_lshlrev_b32 v{T+9}, 2, v{V_LANE}")
        g.vm(f"buffer_store_dword v{T+4}, v{T+9}, {WS}, {S.T0} offen {SC}")
        p(f"s_min_u32 {S.T0}, {S.I}, 1\ns_lshl_b32 {S.T0}, {S.T0}, 29\ns_lshl_b32 {S.T1}, {JC}, 2\ns_add_u32 {S.T1}, {S.T1}, {S.W}\ns_lshl_b32 {S.T1}, {S.T1}, 7\ns_add_u32 {S.T0}, {S.T0}, {S.T1}\ns_add_u32 {S.T0}, {S.T0}, {WS_COLF}")
        g.vm(f"buffer_store_dwordx4 {v(T+4,4)}, v{V_ONE}, {WS}, {S.T0} offen {SC}")
        if o["p0o"] in(1,2): rdma(2)
        p.waitall(vm=False)
        p(f"v_lshrrev_b32 v{T+2}, 4, v{V_LANE}\nv_lshlrev_b32 v{T+2}, 3, v{T+2}\nv_lshl_add_u32 v{RX}, v{T}, 7, v{T+2}\nv_and_b32 v{T+2}, 6, v{T}\nv_lshl_add_u32 v{RX}, v{T+2}, 4, v{RX}\nv_add_u32 v{RX}, {S.LDSW}, v{RX}")
        for b in range(1,4): p(f"v_xor_b32 v{RX+b}, {32*b}, v{RX}")
        p.wait(vm=tx)
        for nb in range(4):
            for mh in range(2): p(f"ds_read_b64 {v(V_RES+8*(nb>>1)+4*mh+2*(nb&1),2)}, v{RX+nb} offset:{24576+mh*2048}")
        g.stamp("p0x",True)
        g.run_list(g.pub_half(0,0,{})+g.pub_half(1,0,{},JX)); p(f"s_mov_b32 {S.XW}, {S.U0}")
        ON,CSD=T+12,ACC+32
        for i in range(4): p(f"v_mov_b32 v{ON+i}, 0x3f803f80")
        def proc(r):
            b=ACC+16*(r if r<2 else r+2); p.wait(vm=dt[r]); t=None
            for nb in range(4):
                for h in range(2): p(f"ds_read_b64_tr_b16 {v(b+4*nb+2*h,2)}, v{RT+nb} offset:{r*4096+h*2048}")
            for nb in range(4):
                x=f"buffer_store_dwordx4 {v(b+4*nb,4)}, v{V_L16}, {WS}, s{S_TAB+8+4*r+nb} offen"
                if r>=o["late"]: g.later.append(x)
                else: t=g.vm(x+" sc1")
            if r<4:
                for nb in range(4): p(f"{MF} {v(CSD+4*nb,4)}, {v(ON,4)}, {v(b+4*nb,4)}, {v(CSD+4*nb,4) if r&1 else '0'}")
            if r in(1,3):
                p(f"s_lshl_b32 {S.T0}, {S.I}, 6\ns_lshl_b32 {S.T1}, {S.J if r==3 else JC}, 2\ns_add_u32 {S.T0}, {S.T0}, {S.T1}\ns_add_u32 {S.T0}, {S.T0}, {S.W}\ns_lshl_b32 {S.T0}, {S.T0}, 8\ns_add_u32 {S.T0}, {S.T0}, {WS_CS1 if r==3 else WS_CSQ}\nv_lshlrev_b32 v{T+9}, 2, v{V_LANE}")
                for nb in range(1,4): p(f"v_mov_b32_dpp v{CSD}, v{CSD+4*nb} quad_perm:[0,1,2,3] row_mask:{hex(1<<nb)} bank_mask:0xf")
                t=g.vm(f"buffer_store_dword v{CSD}, v{T+9}, {WS}, {S.T0} offen {SC}",16)
            return t
        FW,FR,X2=T+16,T+17,T+2
        p(f"""s_lshl_b32 {S.T0}, {S.MBk}, 4
s_add_u32 {S.T0}, {S.T0}, {S.J}
s_lshl_b32 {S.T1}, {JC}, 2
s_add_u32 {S.T1}, {S.T1}, {S.W}
s_lshl_b32 {S.T1}, {S.T1}, 4
s_add_u32 {S.T1}, {S.T1}, {S.I}
s_add_u32 {S.T1}, {S.T1}, 1024
v_mov_b32 v{FW}, {OOB>>3}
v_writelane_b32 v{FW}, {S.T0}, 0
v_writelane_b32 v{FW}, {S.T1}, 1
v_lshlrev_b32 v{FW}, 3, v{FW}
s_lshl_b32 {S.T0}, {S.MBk}, 7
s_lshl_b32 {S.T1}, {S.J}, 2
s_add_u32 {S.T1}, {S.T1}, {S.W}
s_lshl_b32 {S.T1}, {S.T1}, 7
s_add_u32 {S.T1}, {S.T1}, 8192
v_lshl_add_u32 v{FR}, v{V_FALL}, 1, {S.T0}
v_lshl_add_u32 v{X2}, v{V_FALL}, 1, {S.T1}
v_mov_b32_dpp v{FR}, v{X2} quad_perm:[0,1,2,3] row_mask:0xa bank_mask:0xf
s_mov_b32 {S.T3}, {WS_F0}
s_add_u32 {S.EP}, {S.EP}, 0x9e3779b9
v_mov_b32 v{X2}, {S.EP}""")
        if o["p0o"]==0: proc(0); tkc=proc(1); rdma(2); rdma(3)
        elif o["p0o"]==1: proc(0); rdma(3); tkc=proc(1); rdma(4)
        elif o["p0o"]==2: rdma(3); proc(0); tkc=proc(1); rdma(4); rdma(5)
        elif o["p0o"]==3: proc(0); tkc=proc(1)
        else: proc(0); tkc=proc(1); rdma(2)
        p(f"v_lshlrev_b32 v{T+8}, 16, v{T+8}\nv_add_u32 v{T+10}, {L_B2}, v{T+9}\nds_write_b32 v{T+10}, v{T+8}")
        if o["p0o"]==1: proc(2); rdma(5)
        elif o["p0o"]==2: proc(2); proc(3)
        p.wait(vm=tkc)
        g.vm(f"buffer_store_dword v{X2}, v{FW}, {WS}, {S.T3} offen {SC}",8); g.stamp("p0arr",True)
        if o["p0o"]==0: rdma(4); proc(2); rdma(5); proc(3)
        elif o["p0o"]==1: proc(3)
        elif o["p0o"]==3: rdma(2); rdma(3); rdma(4); rdma(5); proc(2); proc(3)
        elif o["p0o"]==4: rdma(3); rdma(4); proc(2); rdma(5); proc(3)
        pl=f"s_mov_b32 exec_hi, 0\nv_mov_b32 v{V_FLG}, 0\nbuffer_atomic_add v{V_FLG}, v{FR}, {WS}, {S.T3} offen sc0 sc1\ns_mov_b32 exec_hi, -1"
        proc(4); p(pl); proc(5); g.stamp("p0til",True)
        rf=f"v_cmp_ne_u32 {SM}, {S.EP}, v{V_FLG}\ns_nop 0\ns_cmp_lg_u32 s100, 0\ns_cbranch_scc1 L_slowx"
        p(rf); p.raw("L_backx:")
        g.slow.append(f"L_slowx:\n{pl}\ns_sub_u32 {S.TO}, {S.TO}, 1\ns_cbranch_scc1 L_end\ns_waitcnt vmcnt(0)\n{rf}\ns_branch L_backx")
        p.waitall(vm=False); p(f"s_lshl_b32 {S.LDSW}, {S.W}, 12\ns_barrier")
        g.stamp("p1start",True); g.pump(o["pre0"])
        if o["ipf"]:
            p(f"s_lshr_b32 s6, s2, 3\ns_lshl_b32 s6, s6, 2\ns_add_u32 s6, s6, {S.W}\ns_lshl_b32 s6, s6, 7\ns_add_u32 s6, s6, {o.get('ipo',6144)}\nv_mov_b32 v{V_CP}, s6")
        g.t=0; g.free_at=o["pre0"]*o["COST"]
    def build(g):
        p=g.p; o=g.o; T=V_T; g.p0()
        U=[]; Aq=[]; bulk=[]; row=[]; col=[]; qt=[]; marks=[]; pan=[]
        z0=lambda ks,b:"0" if ks==0 else None
        aB=lambda bases:(lambda b:(bases[b>>1]+4*(b&1),bases[b>>1]+8+4*(b&1)))
        def phi(x,r,d):
            return wave([lambda e:f"v_mul_f32 v{x[e]}, v{x[e]}, v{r[e]}",lambda e:f"v_exp_f32 v{T+e%4}, v{x[e]} clamp",lambda e:f"v_max_f32 v{x[e]}, {S.C_EPS}, v{x[e]}",
                         lambda e:f"v_fma_f32 v{x[e]}, v{x[e]}, {S.C_LN2}, v{T+e%4}"],len(x),lambda e:[f"v_cvt_pk_bf16_f32 v{d+e//2}, v{x[e-1]}, v{x[e]}"] if e&1 else [])
        sev=lambda nm:(lambda ks:f"{nm}s{ks>>4}r")
        for it in range(2):
            B=lambda x:V_ACC+16*((x+4*it)%8); tk={}; first=it==0; xi=2*it
            key=f"x{xi}"; g.panel(key,32); pan.append((key,32,V_XP,WS_X+xi*XB,(lambda ks:None) if first else sev(key)))
            aK=lambda nb:(B(2*((nb>>1)&1)+(nb>>2))+8*(nb&1),B(2*((nb>>1)&1)+(nb>>2))+8*(nb&1)+4)
            aQ=aB([0]*4+[B(4),B(5)]); ev=f"st1_{it}"; n0=len(U); L1=o["L1"]
            d=g.stair(U,"q",key,32,[("k0",(0,1),L1[0]),("v0",(4,5),L1[1]),("k1",(2,3),L1[2]),("v1",(6,7),L1[3])],aK,True,z0,(o["KX"],[g.ext(256*b,aK(b),True,False,ev) for b in range(8)]))
            U[n0]["stamp"]=f"p1s{it}"
            if it: U[n0]["pre"]="fin0_0"
            marks+=[(n0,"vp0"),(d["k0"]+1,"vp1"),(len(U),"vpq")]; nq=len(U)
            U+=[g.ext(256*b,aQ(b),False,True,ev) for b in range(8,12)]; U[nq]["stamp"]=f"p1q{it}"
            d.update(g.stair(U,"q",key,32,[("q0",(8,9),0),("q1",(10,11),o["LQ"])],aQ))
            if first:
                bulk+=g.side_stats(False,xi,g.table_load(False,T+16)+[("delay",700)])+g.table_make(False,T+16,tk)
                bulk+=[("delay",150),("fn",lambda tk=tk:(p.wait(lg=tk["t"]),g.barrier()))]
            else: bulk+=[("wait",key+"s1r")]+g.side_stats(False,xi,[("delay",o["sd"])])
            bulk+=[("ev",ev)]
            if first:
                if len(g.later)<=8: row.append(("ev","lt0"))
                for k,x in enumerate(g.later):
                    row+=[("at",o["lt"][0]+k*o["lt"][1]),("mem",lambda x=x:g.gstore([x]))]
                    if k==len(g.later)-9: row.append(("ev","lt0"))
                row+=[("ev","lt0"),("ev","lt1")]; U[nq]["pre"]="lt0"
            FR,PQ,KD,ZD,ON,RC,L2E,AW,ARK,ARV,VAT,VAZ,VLD,VLZ=T+8,T+16,T+24,T+28,T+32,T+36,T+38,T+39,T+40,T+41,T+42,T+43,T+44,T+45
            kvo=it*16*KVS
            bulk+=ins([f"s_add_u32 {S.T0}, {S.LDSW}, {L_SCR}",f"v_add_u32 v{AW}, {S.T0}, v{V_L16}",f"s_lshr_b32 {S.T0}, {S.W}, 1",f"s_and_b32 {S.T1}, {S.W}, 1",
                       f"s_lshl_b32 {S.T2}, {S.T0}, 10",f"s_add_u32 {S.T3}, {S.T2}, {L_SCR}",f"v_add_u32 v{ARK}, {S.T3}, v{V_L16}",
                       f"s_lshl_b32 {S.T3}, {S.T1}, 10",f"s_add_u32 {S.T3}, {S.T3}, {L_SCR+2048}",f"v_add_u32 v{ARV}, {S.T3}, v{V_L16}",
                       f"v_and_b32 v{VLZ}, 48, v{V_LANE}",f"v_lshl_add_u32 v{VLD}, v{V_FALL}, 4, v{VLZ}",
                       f"v_lshl_add_u32 v{VAZ}, v{VLZ}, 25, v{V_FALL}",f"v_lshl_add_u32 v{VAT}, v{VLZ}, 4, v{V_FALL}",
                       f"s_lshl_b32 {S.T3}, {S.T1}, 11",f"s_add_u32 {S.T2}, {S.T2}, {S.T3}",f"v_add_u32 v{VAT}, {S.T2}, v{VAT}",
                       f"s_lshl_b32 {S.T0}, {S.T0}, 6",f"s_lshl_b32 {S.T1}, {S.T1}, 28",f"s_add_u32 {S.T0}, {S.T0}, {S.T1}",f"v_add_u32 v{VAZ}, {S.T0}, v{VAZ}",
                       f"v_mov_b32 v{L2E}, {F(LOG2E)}"]+[f"v_mov_b32 v{ON+i}, 0x3f803f80" for i in range(4)])
            for h in range(2):
                KF,VF=B(2*h),B(2*h+1)
                bulk+=[("at",d[f"k{h}"]+1)]
                bulk+=ins(phi([KF+e for e in range(16)],[V_LC+e%8 for e in range(16)],FR))
                if h: bulk.append(("fn",g.barrier))
                for b in range(2): bulk+=[("i",f"ds_write_b128 v{AW}, {v(FR+4*b,4)} offset:{b*1024}"),("delay",o["wp"])]
                bulk+=ins([f"s_add_u32 {S.T0}, {S.KV}, {kvo+h*4096}",f"s_add_u32 {S.T1}, {S.KV}, {kvo+8192+h*128}"])+[("at",d[f"v{h}"]+1)]
                for b in range(2):
                    x=[VF+8*b+i for i in range(8)]
                    bulk+=ins([f"v_mul_f32 v{x[i]}, v{x[i]}, v{V_LC+i}" for i in range(8)]+[f"v_cvt_pk_bf16_f32 v{FR+4*b+i}, v{x[2*i]}, v{x[2*i+1]}" for i in range(4)])
                    bulk.append(("mem",lambda b=b,tk=tk:tk.__setitem__(0,p(f"ds_write_b128 v{AW}, {v(FR+4*b,4)} offset:{2048+b*1024}"))))
                bulk+=[("delay",o["l1"]),("fn",lambda tk=tk:(p.wait(lg=tk[0]),g.barrier()))]
                for sw in range(4): bulk+=ins([f"ds_read_b128 {v(KF+4*sw,4)}, v{ARK} offset:{sw*4096}",f"ds_read_b128 {v(VF+4*sw,4)}, v{ARV} offset:{sw*4096}"])+[("delay",o["rp"])]
                bulk+=[("delay",o["l2"])]
                for sw in range(4): bulk+=ins([f"{MF} {v(KD,4)}, {v(VF+4*sw,4)}, {v(KF+4*sw,4)}, {'0' if sw==0 else v(KD,4)}",f"{MF} {v(ZD,4)}, {v(ON,4)}, {v(KF+4*sw,4)}, {'0' if sw==0 else v(ZD,4)}"])
                bulk+=[("delay",80)]+([("wait","lt1")] if h else [])
                for r in range(4): bulk.append(("mem",lambda r=r:g.vm(f"buffer_atomic_add_f32 v{KD+r}, v{VAT}, {WS}, {S.T0} offen offset:{r*64} sc1",24)))
                bulk+=[("mem",lambda h=h,tk=tk:tk.__setitem__(("kv",h),g.vm(f"buffer_atomic_add_f32 v{ZD}, v{VAZ}, {WS}, {S.T1} offen sc1",16))),("ev",f"kva{it}{h}")]
                co=8*it+4*h
                col+=ins([f"s_add_u32 {S.U0}, {S.KV}, {kvo+h*4096}",f"s_add_u32 {S.U1}, {S.KV}, {kvo+8192+h*128}"])
                col+=g.stage(S.PC,f"kva{it}{h}",S.CF,S.CF,co,tk,("kv",h),16,(o["kvd1"],o["kvd2"],o["kvd3"]),lambda nm=f"kv{it}{h}":(g.barrier(),g.stamp(nm)))
                for e in range(2):
                    for dh in range(2): col.append(("mem",lambda r=KF+8*e+4*dh,of=e*2048+dh*1024:g.vm(f"buffer_load_dwordx4 {v(r,4)}, v{VLD}, {WS}, {S.U0} offen offset:{of} {SC}",o["kvc"]))); col.append(("delay",o["kvp"]))
                for dh in range(2): col.append(("mem",lambda r=KF+16+4*dh,of=dh*64:g.vm(f"buffer_load_dwordx4 {v(r,4)}, v{VLZ}, {WS}, {S.U1} offen offset:{of} {SC}",16)))
                col+=[("ev",f"kvl{it}{h}")]
            if first:
                bulk+=ins([f"s_add_u32 {S.T0}, {S.XW}, {WS_X}",f"s_add_u32 {S.T1}, {S.XW}, {WS_X+32768}"])
                bulk+=[("vm",f"buffer_load_dwordx4 {v(V_RES+4*k,4)}, v{V_L16}, {WS}, {S.T1 if k>1 else S.T0} offen offset:{(k&1)*1024} {SC}") for k in range(4)]+[("delay",600)]
            for k in range(16): bulk+=ins([f"v_lshlrev_b32 v{B(6)+2*k}, 16, v{V_RES+k}",f"v_and_b32 v{B(6)+2*k+1}, 0xffff0000, v{V_RES+k}"])
            bulk+=[("ev",f"ci2_{it}")]
            if it:
                bulk+=ins([f"s_add_u32 {S.T2}, s2, {S.W}",f"s_min_u32 {S.T2}, {S.T2}, 1",f"s_lshl_b32 {S.T2}, {S.T2}, 30",f"s_add_u32 {S.T2}, {S.T2}, {WS_EP}",f"v_mov_b32 v{V_FLG}, {S.EP}"])
                bulk+=[("vm",f"buffer_store_dword v{V_FLG}, v{V_ONE}, {WS}, {S.T2} offen sc1",8)]
            for h in range(2):
                KR=B(2*h); Q=B(4+h); DN=KR+24
                bulk+=[("at",d[f"q{h}"]+(h==0))]
                bulk+=ins(phi([Q+e for e in range(16)],[T+46+e//8 for e in range(16)],PQ))
                bulk+=[("i",f"s_add_u32 {S.T0}, {S.XW}, {WS_O+it*XB+h*32768}"),("wait",f"kvl{it}{h}"),("since",f"kvl{it}{h}",o["kvd4"])]
                for e in range(3): bulk+=ins([f"v_cvt_pk_bf16_f32 v{KR+8*e+i}, v{KR+8*e+2*i}, v{KR+8*e+2*i+1}" for i in range(4)])
                for e in(2,0,1):
                    for mh in range(2): bulk.append(("i",f"{MF} {v(DN+4*mh if e==2 else Q+8*mh+4*e,4)}, {v(KR+8*e,4)}, {v(PQ+4*mh,4)}, 0"))
                bulk+=ins([f"v_fma_f32 v{RC+mh}, v{DN+4*mh}, v{L2E}, {S.C_EPS}" for mh in range(2)]+[f"v_rcp_f32 v{RC+mh}, v{RC+mh}" for mh in range(2)])
                for mh in range(2): bulk+=ins([f"v_mul_f32 v{Q+8*mh+i}, v{Q+8*mh+i}, v{RC+mh}" for i in range(8)]+[f"v_cvt_pk_bf16_f32 v{DN+4*mh+i}, v{Q+8*mh+2*i}, v{Q+8*mh+2*i+1}" for i in range(4)])
                bulk+=[("mem",lambda h=h,tk=tk,DN=DN:tk.__setitem__(("o",h),g.gstore([f"buffer_store_dwordx4 {v(DN+4*mh,4)}, v{V_L16}, {WS}, {S.T0} offen offset:{mh*1024}" for mh in range(2)]))),("ev",f"o{it}s{h}")]
                if h==0 and "o" in o["qw"]: qt+=[("at",d["q0"]+o["qo"]),("quiet",1),("wait",f"o{it}s0"),("quiet",-1)]
                row+=g.rowstage(f"o{it}s{h}",24*it+4*h,tk,("o",h))
            key=f"o{it}"; g.panel(key,32); pan.append((key,32,V_XP,WS_O+it*XB,sev(key))); n0=len(U); marks.append((n0,"vp2"))
            d=g.stair(U,"o",key,32,[(0,(0,1),0),(1,(2,3),o["L2"])],aB([B(6),B(7)])); U[n0]["pre"]=f"ci2_{it}"; U[n0]["stamp"]=f"p2s{it}"
            if first: bulk+=g.table_load(True,T+8)+[("delay",700)]+g.table_make(True,T+8,tk)+[("delay",150),("fn",lambda tk=tk:(p.wait(lg=tk["t"]),g.barrier()))]
            for k2 in range(2):
                bulk+=[("at",d[k2]+(k2==0))]+ins([f"v_cvt_pk_bf16_f32 v{V_RES+k}, v{B(6)+2*k}, v{B(6)+2*k+1}" for k in range(8*k2,8*k2+8)])+g.pub_half(k2,xi+1,tk)
                if k2==0 and "x" in o["qw"]: qt+=[("at",d[0]-o["qn"]),("quiet",1),("wait",f"x{xi+1}s0"),("quiet",-1)]
                row+=g.rowstage(f"x{xi+1}s{k2}",24*it+8+4*k2,tk,("x",k2))
            key=f"x{xi+1}"; g.panel(key,32); pan.append((key,32,V_XP,WS_X+(xi+1)*XB,sev(key))); n0=len(U); ev=f"st3_{it}"
            a3=aB([B(b) for b in range(7)]); L3=o["L3"]; b0=len(L3)
            done=g.stair(U,"1",key,32,[(b,(2*b,2*b+1),L3[b]) for b in range(b0)],a3,first=z0,mid=(min(28,32-max(L3)),[g.ext(4096+256*b,a3(b),False,False,ev) for b in range(2*b0)]))
            U[n0]["stamp"]=f"p3s{it}"; U[n0]["pre"]=f"o{it}s1"; marks+=[(n0,"vp0"),(done[0]+1,"vp3")]; nb_=len(U)
            for nb in o["G3"]:
                U+=[g.ext(4096+256*b,a3(b),False,True,ev) for b in range(2*b0,2*(b0+nb))]
                done.update(g.stair(U,"1",key,32,[(b,(2*b,2*b+1),0) for b in range(b0,b0+nb)],a3)); b0+=nb
            assert b0==7; U[nb_]["stamp"]=f"p3b{it}"
            key=f"h{it}"; g.panel(key,56); FB=o["FB"]; L4=o["L4"]
            pan.append((key,56,V_HP,WS_H+it*HB,lambda ks,it=it:"hf%d_%d"%(it,min(i for i,x in enumerate(FB) if ks//8<x))))
            KB=[B(7),B(0)]; SB=[B(1),B(2)]; RX=B(3); B2R=T+16; n0=len(U)
            d=g.stair(U,"2",key,56,[("S0",(4,5),L4[2]),("S1",(6,7),L4[3]),("K0",(0,1),L4[0]),("K1",(2,3),L4[1])],aB(KB+SB),first=lambda ks,b:(None if ks or b<4 else "0"))
            U[n0]["pre"]=f"e3_{it}"; U[n0]["stamp"]=f"p4s{it}"; U[d["S0"]+1]["stamp"]=f"p4k{it}"; marks+=[(n0,"vp4"),(d["S0"]+1,"vp5")]
            bulk+=[("wait",f"x{xi+1}s1r")]+g.side_stats(True,xi+1,[("delay",o["sd"])])+[("ev",ev)]
            bulk+=ins([f"v_and_b32 v{T}, 48, v{V_LANE}",f"v_add_u32 v{T}, {L_B2}, v{T}"]+[f"ds_read_b128 {v(B2R+4*b,4)}, v{T} offset:{64*b}" for b in range(4)])
            def cinit(k2):
                l=[]
                for k in range(8):
                    dd=KB[k2]+2*k; bb=B2R+8*k2+(2*k)%8
                    l+=[f"v_lshlrev_b32 v{dd}, 16, v{V_RES+8*k2+k}",f"v_and_b32 v{dd+1}, 0xffff0000, v{V_RES+8*k2+k}",f"v_add_f32 v{dd}, v{dd}, v{bb}",f"v_add_f32 v{dd+1}, v{dd+1}, v{bb+1}"]
                return ins(l)
            bulk+=[("delay",100)]+cinit(0); batch=[]
            for b in range(7):
                bulk.append(("at",done[b]+1))
                X=B(b); t=lambda e:T+e%8; L=lambda e:V_LC+3*(e//8); O0=T+32+8*(b&1)
                bulk+=ins(wave([lambda e:f"v_mul_f32 v{t(e)}, v{X+e}, v{X+e}",lambda e:f"v_fma_f32 v{t(e)}, v{t(e)}, v{L(e)+1}, v{L(e)}",lambda e:f"v_mul_f32 v{t(e)}, v{t(e)}, v{X+e}",
                                lambda e:f"v_exp_f32 v{t(e)}, v{t(e)}",lambda e:f"v_fma_f32 v{t(e)}, v{t(e)}, v{L(e)+2}, v{L(e)+2}",lambda e:f"v_rcp_f32 v{t(e)}, v{t(e)}",
                                lambda e:f"v_mul_f32 v{X+e}, v{t(e)}, v{X+e}"],16,lambda e:[f"v_cvt_pk_bf16_f32 v{O0+e//2}, v{X+e-1}, v{X+e}"] if e&1 else []))
                for mh in range(2):
                    Oo=O0+4*mh
                    batch.append((Oo,b,mh))
                    if len(batch)>=o["HBT"] or (mh and b+1 in FB):
                        for bb in sorted({x[1] for x in batch}): bulk.append(("i",f"s_add_u32 {S.T0 if bb&1 else S.T1}, {S.HW}, {WS_H+it*HB+bb*16384}"))
                        bulk.append(("mem",lambda b=b,batch=batch,tk=tk:tk.__setitem__(("h",b),g.gstore([f"buffer_store_dwordx4 {v(r,4)}, v{V_L16}, {WS}, {S.T0 if bb&1 else S.T1} offen offset:{m*1024}" for r,bb,m in batch]))))
                        batch=[]
                if b+1 in FB:
                    bulk.append(("ev",f"hs{it}{b}"))
                    (col if b&1 else row).extend(g.stage(S.PC if b&1 else S.PR,f"hs{it}{b}",S.RFH,S.RFH,128+8*(7*it+b),tk,("h",b),8,(o["hd1"],o["hd2"],o["hd3"]))+[("ev",f"hf{it}_{FB.index(b+1)}")])
                if b==0: bulk+=cinit(1)
                if b==2: bulk.append(("ev",f"e3_{it}"))
            for k2 in range(2):
                bulk+=[("i",f"s_add_u32 {S.T0}, {S.EXW}, {it*4*MB}"),("at",d[f"S{k2}"]+1)]+ins([f"v_cvt_pk_bf16_f32 v{RX+8*k2+k}, v{SB[k2]+2*k}, v{SB[k2]+2*k+1}" for k in range(8)])
                bulk+=[("mem",lambda k2=k2,tk=tk,RX=RX:tk.__setitem__(("e",k2),g.gstore([f"buffer_store_dwordx4 {v(RX+8*k2+4*m,4)}, v{V_L16}, {WS}, {S.T0} offen offset:{(2*k2+m)*1024}" for m in range(2)]))),("ev",f"es{it}{k2}")]
                if o["ex1"]:
                    if k2: col+=[("i",f"s_add_u32 {S.U0}, {S.EXR}, {it*4*MB}")]+g.stage(S.PC,f"es{it}1",S.RFW,S.RFP,64,tk,("e",1),it+1,(o["exd1"],o["exd2"],o["exd3"]))+[("mem",lambda r=RX+4*m,of=m*1024:g.vm(f"buffer_load_dwordx4 {v(r,4)}, v{V_L16}, {WS}, {S.U0} offen offset:{of} {SC}")) for m in range(4)]+[("ev",f"el{it}0"),("ev",f"el{it}1")]
                    continue
                col+=[("i",f"s_add_u32 {S.U0}, {S.EXR}, {it*4*MB}")]+g.stage(S.PC,f"es{it}{k2}",S.RFW,S.RFP,64,tk,("e",k2),2*it+k2+1,(o["exd1"],o["exd2"],o["exd3"]),lambda nm=f"ex{it}{k2}":g.stamp(nm))
                col+=[("mem",lambda r=RX+8*k2+4*m,of=(2*k2+m)*1024:g.vm(f"buffer_load_dwordx4 {v(r,4)}, v{V_L16}, {WS}, {S.U0} offen offset:{of} {SC}")) for m in range(2)]+[("ev",f"el{it}{k2}")]
            if "e" in o["qw"]: qt+=[("at",d["S0"]-o["qn"]),("quiet",1),("wait",f"es{it}0"),("quiet",-1)]
            if "y" in o["qw"] and it==0: qt+=[("wait","el00"),("quiet",1),("wait","x2s0"),("quiet",-1)]
            if it: bulk.append(("fn",g.rowaddr))
            for k2 in range(2):
                bulk+=[("wait",f"el{it}{k2}"),("since",f"el{it}{k2}",o["exd4"])]
                for k in range(8): bulk+=ins([f"v_lshlrev_b32 v{SB[k2]+2*k}, 16, v{RX+8*k2+k}",f"v_and_b32 v{SB[k2]+2*k+1}, 0xffff0000, v{RX+8*k2+k}"])
                bulk+=[("at",d[f"K{k2}"]+(k2==0))]
                for k in range(8): bulk+=ins([f"v_add_f32 v{KB[k2]+2*k}, v{KB[k2]+2*k}, v{SB[k2]+2*k}",f"v_add_f32 v{KB[k2]+2*k+1}, v{KB[k2]+2*k+1}, v{SB[k2]+2*k+1}",
                                              f"v_cvt_pk_bf16_f32 v{V_RES+8*k2+k}, v{KB[k2]+2*k}, v{KB[k2]+2*k+1}"])
                bulk+=[("ev",f"fin{it}_{k2}")]
                if it==0: bulk+=g.pub_half(k2,2,tk); row+=g.rowstage(f"x2s{k2}",16+4*k2,tk,("x",k2))
                else:
                    for k in(2*k2,2*k2+1):
                        bulk+=ins([f"v_permlane16_swap_b32 v{V_RES+4*k}, v{V_RES+4*k+2}",f"v_permlane16_swap_b32 v{V_RES+4*k+1}, v{V_RES+4*k+3}"])
                        bulk+=[("mem",lambda k=k:g.vm(f"buffer_store_dwordx4 {v(V_RES+4*k,4)}, v{T+1}, {TS}, {S.T1 if k&1 else S.T0} offen offset:{64*(k>>1)} {o['osc'] if k<o['oscn'] else ''}"))]
            assert g.nu==NSL*16*(it+1)
        lastuse={}
        for n,u in enumerate(U):
            if u["akey"]: lastuse[g.kbase[u["akey"][0]]+u["akey"][1]]=n
        for key,n,vb,off,ev in pan: Aq+=g.aloads(key,n,vb,off,lambda k:(lambda n:k<32 or n>=lastuse[k-32]),ev)
        vp=[0]*len(U)
        for (n,nm),(m,_) in zip(marks,marks[1:]+[(len(U),0)]): vp[n:m]=[o[nm]]*(m-n)
        g.stream(U,Aq,[qt,row,col,bulk],lambda n:vp[n])
        assert not(row or col or bulk),(row[:2],col[:2],bulk[:2])
        return g.finish()
    def table(g):
        rows=[]; P=lambda m,ks,nb:g.pos[(m,ks,nb)]*1024
        for par in range(2):
            for mb in range(64):
                i,w=divmod(mb,4); src=[]; pos=[]
                for r in range(2):
                    ks=2*i+r; kp=r*16+((i&1)^par)*8+(i>>1)
                    if w<3: src.append(ks*32*RQ+(2048,4096,0)[w]+128*par); pos+=[P("q",kp,4*w+nb) for nb in range(4)]
                    else: src.append(ks*32*R2+128*par); pos+=[P("o",kp,nb) for nb in range(4)]
                for r in range(2):
                    ks=2*i+r; kp=r*16+((i&1)^par)*8+(i>>1)
                    if w<3: src.append(ks*32*R1+512*par+128*w); pos+=[P("1",kp,4*w+nb) for nb in range(4)]
                    else: src.append(ks*32*R1+384); pos+=[P("1",kp,12+(nb&1)) if nb>>1==par else OOB for nb in range(4)]
                for r in range(2):
                    q=7*i+min(2*w+r,6); ks,pr=divmod(q,2); b,jj=divmod(ks,8)
                    row=448*jj+224*par+((32+32*b if b<6 else 0) if par else 32*b)
                    src.append(row*R2+128*(pr^par) if 2*w+r<7 else OOB); pos+=[P("2",ks,4*pr+nb) if 2*w+r<7 else OOB for nb in range(4)]
                rows.append(src+[0,0]+pos)
        return ".p2align 7\n.type L_tab,@object\nL_tab:\n"+"".join(".long "+",".join(map(str,r))+"\n" for r in rows)
    def finish(g):
        p=g.p
        if g.o["prof"]:
            p.waitall(); g.stamp("end"); g.flush_stamps()
            p(f"s_lshl_b32 {S.T0}, s2, 2\ns_add_u32 {S.T0}, {S.T0}, {S.W}\ns_lshl_b32 {S.T0}, {S.T0}, 8\ns_add_u32 {S.T0}, {S.T0}, {WS_TS}\nv_lshlrev_b32 v{V_T}, 2, v{V_LANE}")
            p(f"buffer_store_dword v{V_TS}, v{V_T}, {WS}, {S.T0} offen")
            if g.o.get("dbg"):
                p("s_load_dwordx2 s[96:97], s[0:1], 72\ns_mov_b32 s98, 256\ns_mov_b32 s99, 0x20000"); p.waitall()
                sel=[0,0]+[g.names.index(n) for n in g.o["dbg"]]
                for k,l in enumerate(sel[1:],1):
                    p(f"v_readlane_b32 {S.T1}, v{V_TS}, {l}")
                    if k==1: p(f"s_not_b32 {S.T1}, {S.T1}")
                    p(f"v_writelane_b32 v{V_T+1}, {S.T1}, {k}")
                p(f"s_cmp_lg_u32 {S.W}, 0\ns_cbranch_scc1 L_end\ns_mov_b64 exec, {hex((1<<len(sel))-2)}\nbuffer_atomic_umax v{V_T+1}, v{V_T}, s[96:99], 0 offen sc1")
        p.raw("s_endpgm")
        p.out[p.out.index("@ISLAND@")]="s_branch L_over\nL_end:\ns_endpgm\n"+"\n".join(g.slow)+"\nL_over:"
        p.raw(g.table())
        hdr=open("cdna_kernels/"+NAME[:-7]+".s.ref").read().split("; Override")[0]
        hdr+=f"; @launch grid=(256,1,1) block=(256,1,1) lds={LDS_BYTES}\n"
        hdr+=DOC
        hdr+=f'.amdgcn_target "amdgcn-amd-amdhsa--gfx950"\n.text\n.globl {NAME}\n.p2align 8\n.type {NAME},@function\n'
        kd=f""".section .rodata,"a"
.p2align 6
.amdhsa_kernel {NAME}
  .amdhsa_next_free_vgpr 512
  .amdhsa_next_free_sgpr 102
  .amdhsa_accum_offset 256
  .amdhsa_group_segment_fixed_size 0
  .amdhsa_kernarg_size 88
  .amdhsa_user_sgpr_count 2
  .amdhsa_user_sgpr_kernarg_segment_ptr 1
  .amdhsa_system_sgpr_workgroup_id_x 1
  .amdhsa_float_denorm_mode_32 3
.end_amdhsa_kernel
"""
        return hdr+p.text()+kd
def make(**o):
    g=Gen(**o); s=g.build(); return s,g
if __name__=="__main__":
    o={}
    for x in sys.argv[2:]:
        k,val=x.split("="); o[k]=eval(val)
    s,g=make(**o); open(sys.argv[1],"w").write(s)
    print("bytes",len(s),"lines",s.count("\n"),"nops",g.p.nops,"autowaits",g.p.autow,"est cyc",g.t,"pen",g.p.pen,"forced",g.forced,"lgbad",g.lgbad,"stall",g.stall); print(g.log)
```
